```python
import torch

def _softmax(x, axis=-1):
    return torch.softmax(x, dim=axis)

def _gelu(x):
    return torch.nn.functional.gelu(x, approximate='tanh')

def _silu(x):
    return torch.nn.functional.silu(x)

def _sigmoid(x):
    return torch.sigmoid(x)

def _layernorm(x, axis=-1, eps=1e-05):
    m = x.mean(dim=axis, keepdim=True)
    v = x.var(dim=axis, keepdim=True, unbiased=False)
    return (x - m) / torch.sqrt(v + eps)

def _scatter_add(tgt, idx, src, axis=0):
    return tgt.clone().index_add_(axis, idx, src)

def _segment_sum(src, seg, n):
    out = torch.zeros((n,) + src.shape[1:], dtype=src.dtype)
    return out.index_add_(0, seg, src)

def _pad(x, pw):
    flat = tuple((v for pair in reversed(pw) for v in pair))
    return torch.nn.functional.pad(x, flat)
kernel_name = 'adaLN_cond__ssm_conv_h3__dense_activation_squared_relu__prompt'

def setup_inputs():

    _w = lambda a: (lambda t: t.to(torch.bfloat16) if t.is_floating_point() else t)(torch.as_tensor(a))

    def _A_setup():
        B, S, D = (1, 2048, 512)
        ks = 4
        return {'q': _w((lambda *s: torch.randn(*s, dtype=torch.bfloat16) * 0.05)(B, S, D)), 'k': _w((lambda *s: torch.randn(*s, dtype=torch.bfloat16) * 0.8)(B, S, D)), 'v': _w((lambda *s: torch.randn(*s, dtype=torch.bfloat16) * 0.8)(B, S, D)), 'shift_k': _w((lambda *s: torch.randn(*s, dtype=torch.bfloat16) * 0.8)(D, ks) * 0.5), 'ssm_k': _w((lambda *s: torch.randn(*s, dtype=torch.bfloat16) * 0.8)(D, S) * (1.0 / S ** 0.5)), 'ssm_D': _w((lambda *s: torch.randn(*s, dtype=torch.bfloat16) * 0.8)(D))}
    _A_in = _A_setup()

    def _B_setup():
        B, S, D, F = (1, 2048, 512, 1376)
        return {'x': _w((lambda *s: torch.randn(*s, dtype=torch.bfloat16) * 0.05)(B, S, D)), 'w1': _w((lambda *s: torch.randn(*s, dtype=torch.bfloat16) * 0.05)(D, F)), 'b1': _w((lambda *s: torch.randn(*s, dtype=torch.bfloat16) * 0.4)(F)), 'w2': _w((lambda *s: torch.randn(*s, dtype=torch.bfloat16) * 0.05)(F, D)), 'b2': _w((lambda *s: torch.randn(*s, dtype=torch.bfloat16) * 3.2)(D))}
    _B_in = _B_setup()
    return {'A_q': _A_in['q'], 'A_k': _A_in['k'], 'A_v': _A_in['v'], 'A_shift_k': _A_in['shift_k'], 'A_ssm_k': _A_in['ssm_k'], 'A_ssm_D': _A_in['ssm_D'], 'B_x': _B_in['x'], 'B_w1': _B_in['w1'], 'B_b1': _B_in['b1'], 'B_w2': _B_in['w2'], 'B_b2': _B_in['b2'], 'c': _w((lambda *s: torch.randn(*s, dtype=torch.bfloat16) * 0.1)(1, 512) * 8.0), 'w_mod': _w((lambda *s: torch.randn(*s, dtype=torch.bfloat16) * 0.1)(512, 6 * 512) * 512 ** (-0.5) * 8.0)}

def reference(A_q, A_k, A_v, A_shift_k, A_ssm_k, A_ssm_D, B_x, B_w1, B_b1, B_w2, B_b2, c, w_mod):

    def _A_ref(q, k, v, shift_k, ssm_k, ssm_D):
        B, S, D = q.shape
        ks = shift_k.shape[-1]
        k_pad = _pad(k, ((0, 0), (ks - 1, 0), (0, 0)))
        k_shift = torch.zeros_like(k)
        for t in range(ks):
            k_shift = k_shift + k_pad[:, t:t + S, :] * shift_k[:, ks - 1 - t][None, None, :]
        kv = k_shift * v
        L = 2 * S
        kv_pad = _pad(kv, ((0, 0), (0, S), (0, 0)))
        kf_pad = _pad(ssm_k, ((0, 0), (0, S)))
        kv_f = (lambda x, axes=(-2, -1): torch.fft.rfft2(x.float(), dim=axes))(kv_pad[:, None, :, :], axes=(1, 2))
        kf_f = (lambda x, axes=(-2, -1): torch.fft.rfft2(x.float(), dim=axes))(kf_pad[:, None, :], axes=(1, 2))
        kf_f = (lambda x, *d: x.permute(*d))(kf_f, 1, 2, 0)
        y_f = kv_f * kf_f[None, :, :, :]
        y = (lambda x, s, axes=(-2, -1): torch.fft.irfft2(x, s=s, dim=axes).to(torch.bfloat16))(y_f, (1, L), axes=(1, 2))[:, 0, :S, :]
        y = y + kv * ssm_D[None, None, :]
        return q * y

    def _B_ref(x, w1, b1, w2, b2):
        h = torch.einsum('bsd,df->bsf', x, w1) + b1
        zero = torch.zeros_like(h)
        r = torch.where(h > zero, h, zero)
        h = r * r
        out = torch.einsum('bsf,fd->bsd', h, w2) + b2
        return out
    x = A_q
    mod = (_silu(c) @ w_mod).reshape(c.shape[0], 6, 1, -1)
    sa, ca, ga, sb, cb, gb = (mod[:, 0].clone(), mod[:, 1].clone(), mod[:, 2].clone(), mod[:, 3].clone(), mod[:, 4].clone(), mod[:, 5].clone())
    h = _layernorm(x, axis=-1) * (1 + ca) + sa
    x = x + ga * _A_ref(h, A_k, A_v, A_shift_k, A_ssm_k, A_ssm_D)
    h = _layernorm(x, axis=-1) * (1 + cb) + sb
    x = x + gb * _B_ref(h, B_w1, B_b1, B_w2, B_b2)
    return x
```

```python
class Asm:
    def __init__(self):
        self.lines = []
        self.uid = 0
    def __call__(self, s):
        for l in s.strip("\n").split("\n"):
            self.lines.append("    " + l.strip() if not l.strip().endswith(":") else l.strip())
    def raw(self, s):
        self.lines.append(s)
    def label(self, base):
        self.uid += 1
        return f"L_{base}_{self.uid}"
    def text(self):
        return "\n".join(self.lines) + "\n"
    def srd(self, d, base, nbytes):
        self(f"""s_mov_b32 s{d}, s{base}
        s_mov_b32 s{d+1}, s{base+1}
        s_mov_b32 s{d+2}, {nbytes:#x}
        s_mov_b32 s{d+3}, 0x00020000""")
    def srd_off(self, d, base, off, nbytes):
        self(f"""s_add_u32 s{d}, s{base}, {off:#x}
        s_addc_u32 s{d+1}, s{base+1}, 0
        s_mov_b32 s{d+2}, {nbytes:#x}
        s_mov_b32 s{d+3}, 0x00020000""")
    def kernel_begin(self, name):
        self.raw(f".globl {name}\n.p2align 8\n.type {name},@function\n{name}:")
    def kd(self, name, vgpr, sgpr=102, accum=None, agpr=0):
        accum = accum if accum is not None else (vgpr + 3) // 4 * 4
        nfv = accum + agpr if agpr else vgpr
        return f""".p2align 6
.amdhsa_kernel {name}
  .amdhsa_next_free_vgpr {nfv}
  .amdhsa_next_free_sgpr {sgpr}
  .amdhsa_accum_offset {accum}
  .amdhsa_group_segment_fixed_size 0
  .amdhsa_kernarg_size 128
  .amdhsa_user_sgpr_count 2
  .amdhsa_user_sgpr_kernarg_segment_ptr 1
  .amdhsa_system_sgpr_workgroup_id_x 1
.end_amdhsa_kernel
"""

def v(a, n=1):
    return f"v{a}" if n == 1 else f"v[{a}:{a+n-1}]"
def a(x, n=1):
    return f"a{x}" if n == 1 else f"a[{x}:{x+n-1}]"
def s(x, n=1):
    return f"s{x}" if n == 1 else f"s[{x}:{x+n-1}]"
```

```python
import sys
from asmlib import *

S, D, F = 2048, 512, 1376
UR, YT, X1, H2, HID, W1P, W2P, MOD = 0x0, 0x200000, 0x400000, 0x600000, 0x800000, 0xE00000, 0x1000000, 0x1200000
SZ_SD = S * D * 2
SZ_HID = S * F * 2
SZ_W = D * F * 2
NMOD, NPACK = 96, 174

A = Asm()
kds = []

def rnd_pair(A, lo, hi, tmp):
    A(f"""v_cvt_pk_bf16_f32 v{tmp}, v{lo}, v{hi}
    v_lshlrev_b32 v{lo}, 16, v{tmp}
    v_and_b32 v{hi}, 0xffff0000, v{tmp}""")

def k1():
    name = "k1_kernel"
    A.kernel_begin(name)
    A(f"""s_cmp_ge_u32 s2, {256+NMOD+NPACK}
    s_cbranch_scc1 k1_done
    s_load_dwordx4 s[4:7], s[0:1], 8      ; k, v
    s_load_dwordx2 s[8:9], s[0:1], 24     ; shift_k
    s_load_dwordx2 s[10:11], s[0:1], 120  ; ws
    s_load_dwordx4 s[12:15], s[0:1], 88   ; c, w_mod
    s_load_dwordx2 s[16:17], s[0:1], 56   ; w1
    s_load_dwordx2 s[18:19], s[0:1], 72   ; w2
    s_cmp_ge_u32 s2, {256+NMOD}
    s_cbranch_scc1 k1_pack
    s_cmp_ge_u32 s2, 256
    s_cbranch_scc1 k1_mod
    v_and_b32 v1, 31, v0
    v_lshrrev_b32 v2, 5, v0
    s_lshr_b32 s20, s2, 3
    s_and_b32 s21, s2, 7
    v_lshlrev_b32 v3, 2, v1
    s_lshl_b32 s22, s21, 7
    v_add_u32 v3, s22, v3
    v_lshlrev_b32 v4, 13, v2
    s_lshl_b32 s23, s20, 16
    v_add3_u32 v5, v4, v3, s23
    v_add_u32 v6, 4096, v5
    v_subrev_u32 v7, 3072, v5
    v_lshlrev_b32 v8, 2, v3
    s_waitcnt lgkmcnt(0)""")
    A.srd(24, 4, SZ_SD); A.srd(28, 6, SZ_SD); A.srd(32, 8, 4096); A.srd_off(36, 10, UR, SZ_SD)
    KR, VR, W = 10, 21, 32
    A(f"buffer_load_dwordx4 v[{W}:{W+3}], v8, s[32:35], 0 offen")
    for j in range(11):
        ad, off = (7, j * 1024) if j < 3 else ((5, (j - 3) * 1024) if j < 7 else (6, (j - 7) * 1024))
        A(f"buffer_load_dword v{KR+j}, v{ad}, s[24:27], 0 offen offset:{off}")
    for j in range(8):
        ad, off = (5, j * 1024) if j < 4 else (6, (j - 4) * 1024)
        A(f"buffer_load_dword v{VR+j}, v{ad}, s[28:31], 0 offen offset:{off}")
    A(f"""v_lshlrev_b32 v9, 11, v3
    v_lshlrev_b32 v4, 4, v2
    s_lshl_b32 s23, s20, 7
    s_sub_u32 s23, 4080, s23
    v_sub_u32 v9, v9, v4
    v_add_u32 v9, s23, v9
    v_add_u32 v30, 4096, v9
    s_waitcnt vmcnt(19)""")
    WF = 36
    A(f"""v_lshlrev_b32 v{WF+0}, 16, v{W+0}
    v_lshlrev_b32 v{WF+1}, 16, v{W+2}
    v_and_b32 v{WF+2}, 0xffff0000, v{W+0}
    v_and_b32 v{WF+3}, 0xffff0000, v{W+2}
    v_lshlrev_b32 v{WF+4}, 16, v{W+1}
    v_lshlrev_b32 v{WF+5}, 16, v{W+3}
    v_and_b32 v{WF+6}, 0xffff0000, v{W+1}
    v_and_b32 v{WF+7}, 0xffff0000, v{W+3}
    s_waitcnt vmcnt(8)""")
    KF = 44
    for j in range(11):
        A(f"""v_lshlrev_b32 v{KF+2*j}, 16, v{KR+j}
        v_and_b32 v{KF+2*j+1}, 0xffff0000, v{KR+j}""")
    A("s_waitcnt vmcnt(0)")
    KVO = 66
    P, T, VF = 82, 84, 86
    for r in range(8):
        acc = KVO + 2 * r
        A(f"v_pk_mul_f32 v[{acc}:{acc+1}], v[{KF+2*r}:{KF+2*r+1}], v[{WF+6}:{WF+7}]")
        rnd_pair(A, acc, acc + 1, T)
        for t in range(1, 4):
            A(f"v_pk_mul_f32 v[{P}:{P+1}], v[{KF+2*(r+t)}:{KF+2*(r+t)+1}], v[{WF+2*(3-t)}:{WF+2*(3-t)+1}]")
            rnd_pair(A, P, P + 1, T)
            A(f"v_pk_add_f32 v[{acc}:{acc+1}], v[{acc}:{acc+1}], v[{P}:{P+1}]")
            rnd_pair(A, acc, acc + 1, T)
        A(f"""v_lshlrev_b32 v{VF}, 16, v{VR+r}
        v_and_b32 v{VF+1}, 0xffff0000, v{VR+r}
        v_pk_mul_f32 v[{acc}:{acc+1}], v[{acc}:{acc+1}], v[{VF}:{VF+1}]""")
    O = 88
    for e in range(2):
        for j in range(4):
            A(f"v_cvt_pk_bf16_f32 v{O+4*e+j}, v{KVO+2*(7-2*j)+e}, v{KVO+2*(6-2*j)+e}")
    A(f"""buffer_store_dwordx4 v[{O}:{O+3}], v9, s[36:39], 0 offen
    buffer_store_dwordx4 v[{O+4}:{O+7}], v30, s[36:39], 0 offen
    s_endpgm""")
    A(f"""k1_mod:
    s_sub_u32 s20, s2, 256
    v_and_b32 v1, 3, v0
    v_lshrrev_b32 v2, 2, v0
    v_mul_u32_u24 v3, 6144, v2
    v_lshlrev_b32 v4, 4, v1
    s_lshl_b32 s21, s20, 6
    v_add3_u32 v3, v3, v4, s21
    v_lshlrev_b32 v5, 1, v2
    s_waitcnt lgkmcnt(0)""")
    A.srd(24, 12, 1024); A.srd(28, 14, 512 * 3072 * 2); A.srd_off(36, 10, MOD, 3072 * 4)
    for i in range(8):
        A(f"buffer_load_ushort v{10+i}, v5, s[24:27], 0 offen offset:{128*i}")
    for i in range(8):
        A(f"s_mov_b32 s{40+i}, {393216*i}")
    for i in range(8):
        A(f"buffer_load_dwordx4 v[{20+4*i}:{23+4*i}], v3, s[28:31], s{40+i} offen")
    A("s_waitcnt vmcnt(8)")
    for i in range(8):
        A(f"""v_lshlrev_b32 v{10+i}, 16, v{10+i}
        v_mul_f32 v60, 0xbfb8aa3b, v{10+i}
        v_exp_f32 v60, v60
        s_nop 0
        v_add_f32 v60, 1.0, v60
        v_rcp_f32 v60, v60
        s_nop 0
        v_mul_f32 v60, v{10+i}, v60
        v_cvt_pk_bf16_f32 v60, v60, v60
        v_lshlrev_b32 v{10+i}, 16, v60""")
    for j in range(8):
        A(f"v_mov_b32 v{64+j}, 0")
    for i in range(8):
        A(f"s_waitcnt vmcnt({7-i})")
        for j in range(4):
            A(f"""v_lshlrev_b32 v60, 16, v{20+4*i+j}
            v_and_b32 v61, 0xffff0000, v{20+4*i+j}
            v_fmac_f32 v{64+2*j}, v60, v{10+i}
            v_fmac_f32 v{65+2*j}, v61, v{10+i}""")
    A("s_nop 1")
    for sh in (4, 8):
        for j in range(8):
            A(f"v_add_f32_dpp v{64+j}, v{64+j}, v{64+j} row_shr:{sh} row_mask:0xf bank_mask:0xf bound_ctrl:0")
        A("s_nop 1")
    A(f"""v_lshrrev_b32 v6, 4, v0
    v_lshlrev_b32 v6, 7, v6
    v_lshl_add_u32 v6, v1, 5, v6
    v_and_b32 v7, 12, v0
    v_cmp_eq_u32 vcc, 12, v7
    s_and_saveexec_b64 s[50:51], vcc
    ds_write_b128 v6, v[64:67]
    ds_write_b128 v6, v[68:71] offset:16
    s_mov_b64 exec, s[50:51]
    s_waitcnt lgkmcnt(0)
    s_barrier
    v_cmp_gt_u32 vcc, 32, v0
    s_and_saveexec_b64 s[50:51], vcc
    s_cbranch_execz k1_done
    v_lshlrev_b32 v6, 2, v0""")
    for p in range(16):
        A(f"ds_read_b32 v{20+p}, v6 offset:{128*p}")
    A("s_waitcnt lgkmcnt(0)")
    for p in range(1, 16):
        A(f"v_add_f32 v20, v20, v{20+p}")
    A(f"""v_cvt_pk_bf16_f32 v20, v20, v20
    v_lshlrev_b32 v20, 16, v20
    s_lshr_b32 s22, s20, 4
    s_cmp_eq_u32 s22, 1
    s_cselect_b32 s23, 1.0, 0
    s_cmp_eq_u32 s22, 4
    s_cselect_b32 s23, 1.0, s23
    v_add_f32 v20, s23, v20
    v_cvt_pk_bf16_f32 v20, v20, v20
    v_lshlrev_b32 v20, 16, v20
    s_lshl_b32 s21, s20, 7
    v_add_u32 v6, s21, v6
    buffer_store_dword v20, v6, s[36:39], 0 offen
    s_endpgm""")
    A(f"""k1_pack:
    v_lshrrev_b32 v1, 6, v0
    s_nop 0
    v_readfirstlane_b32 s20, v1
    s_sub_u32 s21, s2, {256+NMOD}
    s_lshl_b32 s21, s21, 2
    s_add_u32 s20, s20, s21
    v_and_b32 v1, 63, v0             ; lane
    v_lshlrev_b32 v9, 4, v1          ; lane*16
    s_waitcnt lgkmcnt(0)
    s_cmp_ge_u32 s20, 352
    s_cbranch_scc1 k1_pack2""")
    A.srd(24, 16, SZ_W); A.srd_off(36, 10, W1P, SZ_W)
    A(f"""s_and_b32 s21, s20, 15
    s_lshr_b32 s22, s20, 4
    v_and_b32 v2, 15, v1
    v_lshrrev_b32 v3, 4, v1
    v_mul_u32_u24 v3, {8*2752}, v3
    v_lshl_add_u32 v3, v2, 1, v3
    s_mul_i32 s23, s21, {32*2752}
    s_lshl_b32 s28, s22, 7
    s_add_u32 s23, s23, s28
    v_add_u32 v3, s23, v3""")
    for i in range(8):
        A(f"s_mov_b32 s{40+i}, {2752*i}")
    for u in range(4):
        for i in range(8):
            A(f"buffer_load_ushort v{32+8*u+i}, v3, s[24:27], s{40+i} offen offset:{32*u}")
    A(f"""s_lshl_b32 s23, s22, 16
    s_lshl_b32 s28, s21, 10
    s_add_u32 s23, s23, s28
    v_add_u32 v9, s23, v9""")
    for u in range(4):
        A(f"s_waitcnt vmcnt({8*(3-u)+u})")
        for jj in range(4):
            A(f"v_lshl_or_b32 v{12+4*u+jj}, v{32+8*u+2*jj+1}, 16, v{32+8*u+2*jj}")
        A(f"""s_mov_b32 s29, {16384*u}
        buffer_store_dwordx4 v[{12+4*u}:{15+4*u}], v9, s[36:39], s29 offen""")
    A("s_endpgm")
    A(f"""k1_pack2:
    s_cmp_ge_u32 s20, 696
    s_cbranch_scc1 k1_done
    s_sub_u32 s20, s20, 352""")
    A.srd(24, 18, SZ_W); A.srd_off(36, 10, W2P, SZ_W)
    A(f"""s_lshr_b32 s21, s20, 2
    s_and_b32 s22, s20, 3
    v_and_b32 v2, 31, v1
    v_lshrrev_b32 v3, 5, v1
    v_lshlrev_b32 v3, 13, v3
    v_lshl_add_u32 v3, v2, 1, v3
    s_lshl_b32 s23, s21, 14
    s_lshl_b32 s28, s22, 8
    s_add_u32 s23, s23, s28
    v_add_u32 v3, s23, v3""")
    for i in range(8):
        A(f"s_mov_b32 s{40+i}, {1024*i}")
    for u in range(4):
        for i in range(8):
            A(f"buffer_load_ushort v{32+8*u+i}, v3, s[24:27], s{40+i} offen offset:{64*u}")
    A(f"""s_mul_i32 s23, s22, {4*86*1024}
    s_lshl_b32 s28, s21, 10
    s_add_u32 s23, s23, s28
    v_add_u32 v9, s23, v9""")
    for u in range(4):
        A(f"s_waitcnt vmcnt({8*(3-u)+u})")
        for jj in range(4):
            A(f"v_lshl_or_b32 v{12+4*u+jj}, v{32+8*u+2*jj+1}, 16, v{32+8*u+2*jj}")
        A(f"""s_mov_b32 s29, {86*1024*u}
        buffer_store_dwordx4 v[{12+4*u}:{15+4*u}], v9, s[36:39], s29 offen""")
    A("""k1_done:
    s_endpgm""")
    kds.append(A.kd(name, 96, 56))
    return f"; @launch kernel={name} grid=({256+NMOD+NPACK},1,1) block=(256,1,1) lds=2048"

OSZ = 2368; USZ = 2 * OSZ
L_U = 0; L_HEAD = 2 * USZ; L_RED = L_HEAD + 2 * 256
K2_LDS = L_RED + 4 * 4096
def k2():
    name = "k2_kernel"
    A.kernel_begin(name)
    A(f"""s_cmp_ge_u32 s2, 256
    s_cbranch_scc1 k2_done
    s_load_dwordx4 s[4:7], s[0:1], 32
    s_load_dwordx2 s[10:11], s[0:1], 120  ; ws
    v_lshrrev_b32 v1, 6, v0
    v_and_b32 v2, 63, v0                  ; lane
    v_readfirstlane_b32 s20, v1           ; wave
    v_and_b32 v3, 15, v2                  ; b / a'
    v_lshrrev_b32 v4, 4, v2               ; g
    s_lshr_b32 s21, s20, 1                ; ch
    s_and_b32 s22, s20, 1                 ; hf
    s_and_b32 s23, s2, 7
    s_lshl_b32 s23, s23, 6
    s_lshr_b32 s24, s2, 3
    s_lshl_b32 s24, s24, 1
    s_add_u32 s23, s23, s24               ; d0
    s_add_u32 s25, s23, s21               ; d
    s_waitcnt lgkmcnt(0)""")
    A.srd(28, 4, SZ_SD); A.srd(32, 6, 1024); A.srd_off(36, 10, UR, SZ_SD); A.srd_off(40, 10, YT, SZ_SD)
    A(f"""v_lshlrev_b32 v5, 4, v0
    s_lshl_b32 s26, s23, 12
    v_add_u32 v5, s26, v5
    v_add_u32 v6, 4096, v5
    buffer_load_dwordx4 v[200:203], v5, s[36:39], 0 offen
    buffer_load_dwordx4 v[204:207], v6, s[36:39], 0 offen
    s_lshl_b32 s26, s25, 12
    v_lshlrev_b32 v7, 4, v2
    v_add_u32 v7, s26, v7
    buffer_load_dwordx4 v[208:211], v7, s[28:31], 0 offen
    s_lshl_b32 s27, s25, 1
    v_mov_b32 v8, s27
    buffer_load_ushort v212, v8, s[32:35], 0 offen
    v_lshlrev_b32 v9, 5, v4
    v_lshl_add_u32 v9, v3, 1, v9
    s_lshl_b32 s27, s22, 8
    s_add_u32 s27, s27, s26
    s_add_u32 s27, s27, 98
    v_add_u32 v9, s27, v9
    v_subrev_u32 v10, 128, v9""")
    AF = 64
    def af(q, tt, o): return AF + 4 * (q * 4 + tt * 2 + o)
    for tt in range(2):
        for o in range(2):
            for q in range(8):
                if tt == 1:
                    A(f"buffer_load_dwordx4 v[{af(q,tt,o)}:{af(q,tt,o)+3}], v9, s[28:31], 0 offen offset:{512*q+16*o}")
                elif q >= 1:
                    A(f"buffer_load_dwordx4 v[{af(q,tt,o)}:{af(q,tt,o)+3}], v9, s[28:31], 0 offen offset:{512*q-128+16*o}")
                else:
                    A(f"buffer_load_dwordx4 v[{af(q,tt,o)}:{af(q,tt,o)+3}], v10, s[28:31], 0 offen offset:{16*o}")
    A(f"""v_and_b32 v11, 1, v0
    v_mul_u32_u24 v11, {OSZ}, v11
    v_lshrrev_b32 v12, 1, v0
    v_lshl_add_u32 v11, v12, 4, v11       ; (t&1)*OSZ + (t>>1)*16
    v_mov_b32 v216, 0
    v_mov_b32 v217, 0
    v_mov_b32 v218, 0
    v_mov_b32 v219, 0
    v_mul_u32_u24 v13, {OSZ}, v4
    v_lshl_add_u32 v13, v3, 4, v13
    v_add_u32 v13, 2048, v13
    s_lshl_b32 s27, s21, 8
    s_add_u32 s27, s27, {L_HEAD}
    v_lshlrev_b32 v14, 4, v2
    v_add_u32 v14, s27, v14
    s_cmp_lg_u32 s20, 0
    s_cbranch_scc1 k2_nz
    ds_write_b128 v13, v[216:219]
    k2_nz:
    v_cmp_gt_u32 vcc, 2, v2
    s_and_saveexec_b64 s[44:45], vcc
    ds_write_b128 v14, v[216:219]
    s_mov_b64 exec, s[44:45]
    s_waitcnt vmcnt(35)
    ds_write_b128 v11, v[200:203]
    s_waitcnt vmcnt(34)
    ds_write_b128 v11, v[204:207] offset:{USZ}
    s_waitcnt vmcnt(33)
    v_cmp_gt_u32 vcc, 8, v2
    s_and_saveexec_b64 s[44:45], vcc
    ds_write_b128 v14, v[208:211] offset:32
    s_mov_b64 exec, s[44:45]
    v_sub_u32 v15, v4, v3
    v_lshlrev_b32 v15, 4, v15
    s_mul_i32 s27, s21, {USZ}
    s_lshl_b32 s26, s22, 7
    s_add_u32 s27, s27, s26
    s_add_u32 s27, s27, {L_U + 240}
    v_add_u32 v15, s27, v15
    v_lshlrev_b32 v16, 5, v4
    v_lshl_add_u32 v16, v3, 1, v16
    s_lshl_b32 s27, s21, 8
    s_add_u32 s27, s27, {L_HEAD + 2}
    v_add_u32 v16, s27, v16""")
    ACC = 20
    for i in range(32):
        A(f"v_mov_b32 v{ACC+i}, 0")
    A("""s_waitcnt lgkmcnt(0)
    s_barrier""")
    BF = [192, 224]
    def bload(tt, o, st):
        for dl in range(8):
            A(f"ds_read_b128 v[{BF[st]+4*dl}:{BF[st]+4*dl+3}], v15 offset:{o*OSZ + 16*(112-16*dl+4*tt)}")
    A("""s_waitcnt vmcnt(32)
    v_lshlrev_b32 v17, 16, v212""")
    bload(0, 0, 0)
    A(f"""s_waitcnt vmcnt(16)
    s_cmp_lg_u32 s22, 0
    s_cbranch_scc1 k2_nohead
    ds_read_b128 v[{af(0,0,0)}:{af(0,0,0)+3}], v16
    ds_read_b128 v[{af(0,0,1)}:{af(0,0,1)+3}], v16 offset:16
    k2_nohead:
    s_waitcnt lgkmcnt(0)""")
    taus = [(0, 0), (0, 1), (1, 0), (1, 1)]
    for i, (tt, o) in enumerate(taus):
        st = i & 1
        if i + 1 < 4:
            bload(taus[i + 1][0], taus[i + 1][1], st ^ 1)
        if i == 2: A("s_waitcnt vmcnt(8)")
        if i == 3: A("s_waitcnt vmcnt(0)")
        for dl in range(8):
            for q in range(8 - dl):
                n = q + dl
                A(f"v_mfma_f32_16x16x32_bf16 v[{ACC+4*n}:{ACC+4*n+3}], v[{af(q,tt,o)}:{af(q,tt,o)+3}], v[{BF[st]+4*dl}:{BF[st]+4*dl+3}], v[{ACC+4*n}:{ACC+4*n+3}]")
        if i + 1 < 4:
            A("s_waitcnt lgkmcnt(0)")
    A(f"""s_nop 7
    s_nop 1
    v_lshlrev_b32 v18, 4, v2
    s_lshl_b32 s27, s20, 12
    s_add_u32 s27, s27, {L_RED}
    v_add_u32 v19, s27, v18
    s_xor_b32 s27, s20, 1
    s_lshl_b32 s27, s27, 12
    s_add_u32 s27, s27, {L_RED}
    v_add_u32 v18, s27, v18
    s_cmp_lg_u32 s22, 0
    s_cbranch_scc1 k2_red1""")
    for j in range(4):
        A(f"ds_write_b128 v19, v[{ACC+16+4*j}:{ACC+16+4*j+3}] offset:{1024*j}")
    A("s_branch k2_red2\nk2_red1:")
    for j in range(4):
        A(f"ds_write_b128 v19, v[{ACC+4*j}:{ACC+4*j+3}] offset:{1024*j}")
    A("s_waitcnt lgkmcnt(0)")
    for j in range(16):
        A(f"v_mov_b32 v{ACC+j}, v{ACC+16+j}")
    A(f"""k2_red2:
    s_waitcnt lgkmcnt(0)
    s_barrier""")
    R = 64
    for j in range(4):
        A(f"ds_read_b128 v[{R+4*j}:{R+4*j+3}], v18 offset:{1024*j}")
    A(f"""v_lshrrev_b32 v5, 1, v4
    v_sub_u32 v5, 1, v5
    v_mul_u32_u24 v5, {OSZ}, v5
    v_lshlrev_b32 v6, 4, v3
    v_sub_u32 v5, v5, v6
    v_and_b32 v6, 1, v4
    v_lshlrev_b32 v6, 3, v6
    v_sub_u32 v5, v5, v6
    s_mul_i32 s27, s21, {USZ}
    s_lshl_b32 s26, s22, 10
    s_sub_u32 s27, s27, s26
    s_add_u32 s27, s27, {L_U + 16*(127-48) + 8}
    v_add_u32 v5, s27, v5""")
    U = 80
    for j in range(4):
        A(f"ds_read_b64 v[{U+2*j}:{U+2*j+1}], v5 offset:{256*(3-j)}")
    A(f"""v_lshlrev_b32 v6, 5, v3
    v_lshl_add_u32 v6, v4, 3, v6
    s_lshl_b32 s27, s25, 12
    s_lshl_b32 s26, s22, 11
    s_add_u32 s27, s27, s26
    v_add_u32 v6, s27, v6
    s_waitcnt lgkmcnt(0)""")
    T, X = 90, 92
    for j in range(4):
        y = ACC + 4 * j
        for r in range(4):
            A(f"v_add_f32 v{y+r}, v{y+r}, v{R+4*j+r}")
        rnd_pair(A, y, y + 1, T); rnd_pair(A, y + 2, y + 3, T)
        A(f"""v_and_b32 v{X}, 0xffff0000, v{U+2*j+1}
        v_lshlrev_b32 v{X+1}, 16, v{U+2*j+1}
        v_and_b32 v{X+2}, 0xffff0000, v{U+2*j}
        v_lshlrev_b32 v{X+3}, 16, v{U+2*j}""")
        for r in range(4):
            A(f"v_mul_f32 v{X+r}, v17, v{X+r}")
        rnd_pair(A, X, X + 1, T); rnd_pair(A, X + 2, X + 3, T)
        for r in range(4):
            A(f"v_add_f32 v{y+r}, v{y+r}, v{X+r}")
        A(f"""v_cvt_pk_bf16_f32 v{y}, v{y}, v{y+1}
        v_cvt_pk_bf16_f32 v{y+1}, v{y+2}, v{y+3}
        buffer_store_dwordx2 v[{y}:{y+1}], v6, s[40:43], 0 offen offset:{512*j}""")
    A("""k2_done:
    s_endpgm""")
    kds.append(A.kd(name, 256, 56))
    return f"; @launch kernel={name} grid=(256,1,1) block=(256,1,1) lds={K2_LDS}"

def wave_reduce8(A, base, tmp):
    for ctrl in ("row_shr:1", "row_shr:2", "row_shr:4", "row_shr:8"):
        for j in range(8):
            A(f"v_add_f32_dpp v{base+j}, v{base+j}, v{base+j} {ctrl} row_mask:0xf bank_mask:0xf bound_ctrl:0")
    for j in range(8):
        A(f"v_add_f32_dpp v{base+j}, v{base+j}, v{base+j} row_bcast:15 row_mask:0xa bank_mask:0xf")
    for j in range(8):
        A(f"v_add_f32_dpp v{base+j}, v{base+j}, v{base+j} row_bcast:31 row_mask:0xc bank_mask:0xf")

def k3():
    name = "k3_kernel"
    A.kernel_begin(name)
    A(f"""s_cmp_ge_u32 s2, 256
    s_cbranch_scc1 k3_done
    s_load_dwordx2 s[4:5], s[0:1], 0      ; q
    s_load_dwordx2 s[10:11], s[0:1], 120  ; ws
    v_lshlrev_b32 v1, 2, v0
    s_lshl_b32 s20, s2, 13                ; row0*1024
    v_add_u32 v2, s20, v1
    v_add_u32 v3, 4096, v2
    v_lshlrev_b32 v4, 13, v0              ; (2t)*4096
    s_lshl_b32 s21, s2, 4                 ; row0*2
    v_add_u32 v4, s21, v4
    v_add_u32 v5, 4096, v4
    v_lshlrev_b32 v6, 3, v0
    v_and_b32 v7, 63, v0
    v_lshrrev_b32 v8, 6, v0
    s_waitcnt lgkmcnt(0)""")
    A.srd(24, 4, SZ_SD); A.srd_off(28, 10, YT, SZ_SD); A.srd_off(32, 10, MOD, 12288)
    A.srd_off(36, 10, X1, SZ_SD); A.srd_off(40, 10, H2, SZ_SD)
    XR = 10
    for r in range(8):
        A(f"buffer_load_dword v{XR+r}, v{2 if r<4 else 3}, s[24:27], 0 offen offset:{1024*(r%4)}")
    YR = 20
    A(f"""buffer_load_dwordx4 v[{YR}:{YR+3}], v4, s[28:31], 0 offen
    buffer_load_dwordx4 v[{YR+4}:{YR+7}], v5, s[28:31], 0 offen""")
    M = 28
    A("s_movk_i32 s44, 0x1000\ns_movk_i32 s45, 0x2000")
    for i in range(5):
        so, off = [("0", 0), ("0", 2048), ("s44", 0), ("s44", 2048), ("s45", 0)][i]
        A(f"buffer_load_dwordx2 v[{M+2*i}:{M+2*i+1}], v6, s[32:35], {so} offen offset:{off}")
    X = 40
    SUM = 56; SQ = 64
    ST = 72
    T = 140; P = 142
    A("s_waitcnt vmcnt(7)")
    for r in range(8):
        A(f"""v_lshlrev_b32 v{X+2*r}, 16, v{XR+r}
        v_and_b32 v{X+2*r+1}, 0xffff0000, v{XR+r}""")
    def stats(ldsoff, MEAN, RS):
        for r in range(8):
            A(f"""v_add_f32 v{SUM+r}, v{X+2*r}, v{X+2*r+1}
            v_mul_f32 v{SQ+r}, v{X+2*r}, v{X+2*r}
            v_fmac_f32 v{SQ+r}, v{X+2*r+1}, v{X+2*r+1}""")
        A("s_nop 1")
        wave_reduce8(A, SUM, T); wave_reduce8(A, SQ, T)
        A(f"""v_lshlrev_b32 v9, 6, v8
        v_cmp_eq_u32 vcc, 63, v7
        s_and_saveexec_b64 s[46:47], vcc
        ds_write_b128 v9, v[{SUM}:{SUM+3}] offset:{ldsoff}
        ds_write_b128 v9, v[{SUM+4}:{SUM+7}] offset:{ldsoff+16}
        ds_write_b128 v9, v[{SQ}:{SQ+3}] offset:{ldsoff+32}
        ds_write_b128 v9, v[{SQ+4}:{SQ+7}] offset:{ldsoff+48}
        s_mov_b64 exec, s[46:47]
        v_mov_b32 v9, 0
        s_waitcnt lgkmcnt(0)
        s_barrier""")
        for w in range(4):
            for c in range(4):
                A(f"ds_read_b128 v[{ST+16*w+4*c}:{ST+16*w+4*c+3}], v9 offset:{ldsoff+64*w+16*c}")
        A("s_waitcnt lgkmcnt(0)")
        for i in range(16):
            A(f"""v_add_f32 v{ST+i}, v{ST+i}, v{ST+16+i}
            v_add_f32 v{ST+32+i}, v{ST+32+i}, v{ST+48+i}""")
        for i in range(16):
            A(f"v_add_f32 v{ST+i}, v{ST+i}, v{ST+32+i}")
        for r in range(8):
            A(f"""v_mul_f32 v{MEAN+r}, 0x3b000000, v{ST+r}
            v_mul_f32 v{RS+r}, 0x3b000000, v{ST+8+r}
            v_fma_f32 v{RS+r}, -v{MEAN+r}, v{MEAN+r}, v{RS+r}
            v_max_f32 v{RS+r}, 0, v{RS+r}""")
        for r in range(0, 8, 2):
            rnd_pair(A, MEAN + r, MEAN + r + 1, T)
            rnd_pair(A, RS + r, RS + r + 1, T)
        for r in range(8):
            A(f"v_add_f32 v{RS+r}, 0x3727c5ac, v{RS+r}")
        for r in range(0, 8, 2):
            rnd_pair(A, RS + r, RS + r + 1, T)
        for r in range(8):
            A(f"v_sqrt_f32 v{RS+r}, v{RS+r}")
        A("s_nop 0")
        for r in range(0, 8, 2):
            rnd_pair(A, RS + r, RS + r + 1, T)
        for r in range(8):
            A(f"v_rcp_f32 v{RS+r}, v{RS+r}")
        A("s_nop 0")
    def modulate(r, MEAN, RS, mi, dst):
        A(f"""v_sub_f32 v{dst}, v{X+2*r}, v{MEAN+r}
        v_sub_f32 v{dst+1}, v{X+2*r+1}, v{MEAN+r}""")
        rnd_pair(A, dst, dst + 1, T)
        A(f"""v_mul_f32 v{dst}, v{dst}, v{RS+r}
        v_mul_f32 v{dst+1}, v{dst+1}, v{RS+r}""")
        rnd_pair(A, dst, dst + 1, T)
        A(f"v_pk_mul_f32 v[{dst}:{dst+1}], v[{dst}:{dst+1}], v[{M+2*(mi+1)}:{M+2*(mi+1)+1}]")
        rnd_pair(A, dst, dst + 1, T)
        A(f"v_pk_add_f32 v[{dst}:{dst+1}], v[{dst}:{dst+1}], v[{M+2*mi}:{M+2*mi+1}]")
    MEAN, RS = 144, 152
    stats(0, MEAN, RS)
    A("s_waitcnt vmcnt(0)")
    Y = 146 + 16
    for r in range(8):
        modulate(r, MEAN, RS, 0, P)
        rnd_pair(A, P, P + 1, T)
        if r % 2 == 0:
            A(f"v_lshlrev_b32 v{Y}, 16, v{YR+r//2}\nv_lshlrev_b32 v{Y+1}, 16, v{YR+4+r//2}")
        else:
            A(f"v_and_b32 v{Y}, 0xffff0000, v{YR+r//2}\nv_and_b32 v{Y+1}, 0xffff0000, v{YR+4+r//2}")
        A(f"v_pk_mul_f32 v[{P}:{P+1}], v[{P}:{P+1}], v[{Y}:{Y+1}]")
        rnd_pair(A, P, P + 1, T)
        A(f"v_pk_mul_f32 v[{P}:{P+1}], v[{P}:{P+1}], v[{M+4}:{M+5}]")
        rnd_pair(A, P, P + 1, T)
        A(f"""v_pk_add_f32 v[{P}:{P+1}], v[{P}:{P+1}], v[{X+2*r}:{X+2*r+1}]
        v_cvt_pk_bf16_f32 v{XR+r}, v{P}, v{P+1}
        v_lshlrev_b32 v{X+2*r}, 16, v{XR+r}
        v_and_b32 v{X+2*r+1}, 0xffff0000, v{XR+r}
        buffer_store_dword v{XR+r}, v{2 if r<4 else 3}, s[36:39], 0 offen offset:{1024*(r%4)}""")
    stats(256, MEAN, RS)
    for r in range(8):
        modulate(r, MEAN, RS, 3, P)
        A(f"""v_cvt_pk_bf16_f32 v{YR+r}, v{P}, v{P+1}
        buffer_store_dword v{YR+r}, v{2 if r<4 else 3}, s[40:43], 0 offen offset:{1024*(r%4)}""")
    A("""k3_done:
    s_endpgm""")
    kds.append(A.kd(name, 168, 56))
    return f"; @launch kernel={name} grid=(256,1,1) block=(256,1,1) lds=512"

def k4():
    name = "k4_kernel"
    A.kernel_begin(name)
    A(f"""s_cmp_ge_u32 s2, 256
    s_cbranch_scc1 k4_done
    s_load_dwordx2 s[4:5], s[0:1], 64     ; b1
    s_load_dwordx2 s[10:11], s[0:1], 120  ; ws
    v_lshrrev_b32 v1, 6, v0
    v_and_b32 v2, 63, v0
    v_readfirstlane_b32 s20, v1           ; wave
    v_and_b32 v3, 15, v2                  ; s' / f'
    v_lshrrev_b32 v4, 4, v2               ; g
    s_and_b32 s21, s2, 7
    s_lshr_b32 s22, s2, 6
    s_lshl_b32 s22, s22, 3
    s_add_u32 s21, s21, s22               ; R
    s_lshr_b32 s22, s2, 3
    s_and_b32 s22, s22, 7                 ; fg
    s_mul_i32 s23, s22, 11
    s_add_u32 s23, s23, s20
    s_waitcnt lgkmcnt(0)""")
    A.srd(24, 4, F * 2); A.srd_off(28, 10, H2, SZ_SD); A.srd_off(32, 10, W1P, SZ_W); A.srd_off(36, 10, HID, SZ_HID)
    A(f"""s_lshl_b32 s40, s21, 16             ; R*64*1024
    s_lshl_b32 s41, s20, 14               ; wave*16*1024
    s_add_u32 s40, s40, s41""")
    for i in range(16):
        A(f"""v_xor_b32 v5, {i}, v2
        v_lshlrev_b32 v5, 4, v5
        s_add_u32 s42, s41, {1024*i}
        s_mov_b32 m0, s42
        s_add_u32 s43, s40, {1024*i}
        buffer_load_dwordx4 v5, s[28:31], s43 offen lds""")
    A(f"""v_lshlrev_b32 v6, 4, v2
    s_lshl_b32 s42, s23, 14
    v_add_u32 v6, s42, v6
    v_add_u32 v7, 0x10000, v6             ; tile1
    v_add_u32 v8, 0x20000, v6             ; tile2
    s_cmp_eq_u32 s20, 3
    s_cselect_b32 s44, 0x40000000, 0
    v_add_u32 v8, s44, v8
    s_movk_i32 s45, 0x1000
    s_movk_i32 s46, 0x2000
    s_movk_i32 s47, 0x3000""")
    so = ["0", "s45", "s46", "s47"]
    for t in range(16):
        for j in range(3):
            A(f"buffer_load_dwordx4 a[{(t*3+j)*4}:{(t*3+j)*4+3}], v{6+j}, s[32:35], {so[t//4]} offen offset:{1024*(t%4)}")
    A(f"""v_lshlrev_b32 v9, 3, v4
    s_lshl_b32 s42, s23, 5
    v_add_u32 v9, s42, v9
    buffer_load_dwordx2 v[10:11], v9, s[24:27], 0 offen
    buffer_load_dwordx2 v[12:13], v9, s[24:27], 0 offen offset:128
    buffer_load_dwordx2 v[14:15], v9, s[24:27], 0 offen offset:256""")
    A(f"""v_and_b32 v16, 3, v3
    v_xor_b32 v16, v16, v4
    v_and_b32 v17, 12, v3
    v_lshlrev_b32 v18, 10, v3""")
    for vv in range(4):
        A(f"""v_xor_b32 v19, {4*vv}, v17
        v_add_u32 v19, v19, v16
        v_lshl_add_u32 v{20+vv}, v19, 4, v18""")
    ACC = 32
    for i in range(48):
        A(f"v_mov_b32 v{ACC+i}, 0")
    A("""s_waitcnt vmcnt(51)
    s_barrier""")
    BF = [80, 96]
    def bl(t, st):
        for sg in range(4):
            A(f"ds_read_b128 v[{BF[st]+4*sg}:{BF[st]+4*sg+3}], v{20+t%4} offset:{16384*sg + 256*(t//4)}")
    bl(0, 0)
    for t in range(16):
        st = t & 1
        if t + 1 < 16:
            bl(t + 1, st ^ 1)
            A(f"s_waitcnt vmcnt({3+3*(15-t)}) lgkmcnt(4)")
        else:
            A(f"s_waitcnt vmcnt(3) lgkmcnt(0)")
        for j in range(3):
            for sg in range(4):
                c = ACC + (j * 4 + sg) * 4
                A(f"v_mfma_f32_16x16x32_bf16 v[{c}:{c+3}], a[{(t*3+j)*4}:{(t*3+j)*4+3}], v[{BF[st]+4*sg}:{BF[st]+4*sg+3}], v[{c}:{c+3}]")
    A(f"""v_lshrrev_b32 v5, 1, v4
    v_lshlrev_b32 v5, 9, v5
    v_lshl_add_u32 v5, v3, 4, v5
    v_and_b32 v6, 1, v4
    v_lshl_add_u32 v5, v6, 3, v5
    s_mul_i32 s42, s21, {2*86*1024}
    s_lshl_b32 s43, s23, 10
    s_add_u32 s42, s42, s43
    v_add_u32 v5, s42, v5
    v_add_u32 v6, 4096, v5
    v_add_u32 v7, 8192, v5
    v_add_u32 v7, s44, v7
    s_add_u32 s42, s23, 8
    s_cmp_ge_u32 s42, 86
    s_cselect_b32 s44, 0x40000000, 0
    v_add_u32 v7, s44, v7
    s_mov_b32 s45, {86*1024}
    s_waitcnt vmcnt(0)""")
    B, T = 112, 116
    for j in range(3):
        A(f"""v_lshlrev_b32 v{B}, 16, v{10+2*j}
        v_and_b32 v{B+1}, 0xffff0000, v{10+2*j}
        v_lshlrev_b32 v{B+2}, 16, v{11+2*j}
        v_and_b32 v{B+3}, 0xffff0000, v{11+2*j}""")
        for sg in range(4):
            c = ACC + (j * 4 + sg) * 4
            rnd_pair(A, c, c + 1, T); rnd_pair(A, c + 2, c + 3, T)
            A(f"""v_pk_add_f32 v[{c}:{c+1}], v[{c}:{c+1}], v[{B}:{B+1}]
            v_pk_add_f32 v[{c+2}:{c+3}], v[{c+2}:{c+3}], v[{B+2}:{B+3}]""")
            rnd_pair(A, c, c + 1, T); rnd_pair(A, c + 2, c + 3, T)
            for r in range(4):
                A(f"v_max_f32 v{c+r}, 0, v{c+r}")
            A(f"""v_pk_mul_f32 v[{c}:{c+1}], v[{c}:{c+1}], v[{c}:{c+1}]
            v_pk_mul_f32 v[{c+2}:{c+3}], v[{c+2}:{c+3}], v[{c+2}:{c+3}]
            v_cvt_pk_bf16_f32 v{c}, v{c}, v{c+1}
            v_cvt_pk_bf16_f32 v{c+1}, v{c+2}, v{c+3}
            buffer_store_dwordx2 v[{c}:{c+1}], v{5+j}, s[36:39], {'s45' if sg>>1 else '0'} offen offset:{256*(sg&1)}""")
    A("""k4_done:
    s_endpgm""")
    kds.append(A.kd(name, 120, 56, accum=120, agpr=192))
    return f"; @launch kernel={name} grid=(256,1,1) block=(256,1,1) lds=65536"

def k5():
    name = "k5_kernel"
    A.kernel_begin(name)
    A(f"""s_cmp_ge_u32 s2, 256
    s_cbranch_scc1 k5_done
    s_load_dwordx2 s[4:5], s[0:1], 80     ; b2
    s_load_dwordx2 s[6:7], s[0:1], 104    ; out
    s_load_dwordx2 s[10:11], s[0:1], 120  ; ws
    v_lshrrev_b32 v1, 6, v0
    v_and_b32 v2, 63, v0
    v_readfirstlane_b32 s20, v1           ; wave
    v_and_b32 v3, 31, v2                  ; s'
    v_lshrrev_b32 v4, 5, v2               ; h
    s_and_b32 s21, s2, 7
    s_lshr_b32 s22, s2, 6
    s_lshl_b32 s22, s22, 3
    s_add_u32 s21, s21, s22               ; R
    s_lshr_b32 s22, s2, 3
    s_and_b32 s22, s22, 7
    s_waitcnt lgkmcnt(0)""")
    A.srd(24, 4, 1024); A.srd(28, 6, SZ_SD); A.srd_off(32, 10, HID, SZ_HID); A.srd_off(36, 10, W2P, SZ_W)
    A.srd_off(40, 10, X1, SZ_SD); A.srd_off(44, 10, MOD + 5 * 2048, 2048)
    A(f"""v_lshlrev_b32 v5, 4, v2
    s_lshl_b32 s23, s20, 10
    v_add_u32 v5, s23, v5
    s_mul_i32 s23, s21, {2*86*1024}
    v_add_u32 v6, s23, v5
    v_add_u32 v7, {86*1024}, v6
    s_mul_i32 s23, s22, {2*86*1024}
    v_add_u32 v8, s23, v5                 ; W2P cb0
    v_add_u32 v9, {86*1024}, v8           ; W2P cb1""")
    A(f"""s_lshr_b32 s48, s20, 1
    s_and_b32 s49, s20, 1
    s_lshl_b32 s50, s22, 7
    s_lshl_b32 s51, s49, 6
    s_add_u32 s50, s50, s51
    v_lshlrev_b32 v10, 3, v4
    v_add_u32 v10, s50, v10
    v_lshlrev_b32 v11, 1, v10
    s_lshl_b32 s51, s21, 16
    s_lshl_b32 s52, s48, 15
    s_add_u32 s51, s51, s52
    v_lshlrev_b32 v12, 10, v3
    v_add3_u32 v12, v12, v10, s51""")
    XR, BR, GR = 16, 24, 32
    NST = 12
    def fr(i, k):
        return ((i % NST) * 4 + k) * 4
    def issue(i):
        A(f"s_mov_b32 s53, {4096*i}")
        if i == 21:
            A(f"""s_cmp_ge_u32 s20, 2
            s_cselect_b32 s53, 0x40000000, s53""")
        for k in range(4):
            srd = "s[32:35]" if k < 2 else "s[36:39]"
            A(f"buffer_load_dwordx4 a[{fr(i,k)}:{fr(i,k)+3}], v{6+k}, {srd}, s53 offen")
    for i in range(NST):
        issue(i)
    for q in range(4):
        A(f"buffer_load_dwordx2 v[{XR+2*q}:{XR+2*q+1}], v12, s[40:43], 0 offen offset:{16*q}")
    for q in range(4):
        A(f"buffer_load_dwordx2 v[{BR+2*q}:{BR+2*q+1}], v10, s[24:27], 0 offen offset:{16*q}")
    for q in range(4):
        A(f"buffer_load_dwordx4 v[{GR+4*q}:{GR+4*q+3}], v11, s[44:47], 0 offen offset:{32*q}")
    ACC = 48
    for i in range(64):
        A(f"v_mov_b32 v{ACC+i}, 0")
    for i in range(22):
        last_issued = min(21, max(NST - 1, i + NST - 1))
        n_after = 4 * (last_issued - i) + (12 if i < NST else 0)
        A(f"s_waitcnt vmcnt({min(n_after,63)})")
        for sb in range(2):
            for cb in range(2):
                c = ACC + 16 * (2 * sb + cb)
                A(f"v_mfma_f32_32x32x16_bf16 v[{c}:{c+15}], a[{fr(i,2+cb)}:{fr(i,2+cb)+3}], a[{fr(i,sb)}:{fr(i,sb)+3}], v[{c}:{c+15}]")
        if i + NST < 22:
            issue(i + NST)
    A(f"""s_nop 7
    s_nop 3
    v_lshlrev_b32 v13, 4, v2""")
    for T in range(4):
        lab = A.label("skip")
        A(f"""s_cmp_eq_u32 s20, {T}
        s_cbranch_scc1 {lab}
        s_sub_u32 s53, s20, {T+1}
        s_and_b32 s53, s53, 3
        s_lshl_b32 s53, s53, 12
        s_add_u32 s53, s53, {T*12288}
        v_add_u32 v14, s53, v13""")
        for q in range(4):
            A(f"ds_write_b128 v14, v[{ACC+16*T+4*q}:{ACC+16*T+4*q+3}] offset:{1024*q}")
        A(f"{lab}:")
    OWN = 112
    for T in range(4):
        lab = A.label("mv")
        A(f"""s_cmp_lg_u32 s20, {T}
        s_cbranch_scc1 {lab}""")
        for i in range(16):
            A(f"v_mov_b32 v{OWN+i}, v{ACC+16*T+i}")
        A(f"{lab}:")
    A(f"""s_mul_i32 s53, s20, 12288
    v_add_u32 v14, s53, v13
    s_waitcnt lgkmcnt(0)
    s_barrier""")
    for sl in range(3):
        for q in range(4):
            A(f"ds_read_b128 v[{ACC+16*sl+4*q}:{ACC+16*sl+4*q+3}], v14 offset:{4096*sl+1024*q}")
    A("s_waitcnt lgkmcnt(0)")
    for sl in range(3):
        for i in range(0, 16, 2):
            A(f"v_pk_add_f32 v[{OWN+i}:{OWN+i+1}], v[{OWN+i}:{OWN+i+1}], v[{ACC+16*sl+i}:{ACC+16*sl+i+1}]")
    T, U = 128, 130
    for q in range(4):
        c = OWN + 4 * q
        rnd_pair(A, c, c + 1, T); rnd_pair(A, c + 2, c + 3, T)
        A(f"""v_lshlrev_b32 v{U}, 16, v{BR+2*q}
        v_and_b32 v{U+1}, 0xffff0000, v{BR+2*q}
        v_lshlrev_b32 v{U+2}, 16, v{BR+2*q+1}
        v_and_b32 v{U+3}, 0xffff0000, v{BR+2*q+1}
        v_pk_add_f32 v[{c}:{c+1}], v[{c}:{c+1}], v[{U}:{U+1}]
        v_pk_add_f32 v[{c+2}:{c+3}], v[{c+2}:{c+3}], v[{U+2}:{U+3}]""")
        rnd_pair(A, c, c + 1, T); rnd_pair(A, c + 2, c + 3, T)
        A(f"""v_pk_mul_f32 v[{c}:{c+1}], v[{c}:{c+1}], v[{GR+4*q}:{GR+4*q+1}]
        v_pk_mul_f32 v[{c+2}:{c+3}], v[{c+2}:{c+3}], v[{GR+4*q+2}:{GR+4*q+3}]""")
        rnd_pair(A, c, c + 1, T); rnd_pair(A, c + 2, c + 3, T)
        A(f"""v_lshlrev_b32 v{U}, 16, v{XR+2*q}
        v_and_b32 v{U+1}, 0xffff0000, v{XR+2*q}
        v_lshlrev_b32 v{U+2}, 16, v{XR+2*q+1}
        v_and_b32 v{U+3}, 0xffff0000, v{XR+2*q+1}
        v_pk_add_f32 v[{c}:{c+1}], v[{c}:{c+1}], v[{U}:{U+1}]
        v_pk_add_f32 v[{c+2}:{c+3}], v[{c+2}:{c+3}], v[{U+2}:{U+3}]
        v_cvt_pk_bf16_f32 v{c}, v{c}, v{c+1}
        v_cvt_pk_bf16_f32 v{c+1}, v{c+2}, v{c+3}
        buffer_store_dwordx2 v[{c}:{c+1}], v12, s[28:31], 0 offen offset:{16*q}""")
    A("""k5_done:
    s_endpgm""")
    kds.append(A.kd(name, 136, 56, accum=136, agpr=192))
    return f"; @launch kernel={name} grid=(256,1,1) block=(256,1,1) lds=49152"

launches = [k1(), k2(), k3(), k4(), k5()]
hdr = "\n".join(launches) + "\n.amdgcn_target \"amdgcn-amd-amdhsa--gfx950\"\n.text\n"
out = hdr + A.text() + '.section .rodata,"a"\n' + "".join(kds)
open(sys.argv[1] if len(sys.argv) > 1 else "adaLN_cond__ssm_conv_h3__dense_activation_squared_relu__prompt.s", "w").write(out)
```

```python
import sys
from asmlib import *

S, D, F = 2048, 512, 1376
UR, YT, X1, H2, HID, W1P, W2P, MOD = 0x0, 0x200000, 0x400000, 0x600000, 0x800000, 0xE00000, 0x1000000, 0x1200000
SZ_SD = S * D * 2
SZ_HID = S * F * 2
SZ_W = D * F * 2
NMOD, NPACK = 96, 174

import os
STAMP = os.environ.get("STAMP") == "1"
TS = 0x1400000
A = Asm()
kds = []
_st = {"n": 0}
def stamp():
    if not STAMP: return
    i = _st["n"]; _st["n"] += 1
    A(f"s_memrealtime s[{64+2*i}:{65+2*i}]\ns_waitcnt lgkmcnt(0)")
def stamp_flush(kidx):
    if not STAMP: return
    stamp()
    n = _st["n"]; _st["n"] = 0
    A(f"""s_waitcnt vmcnt(0)
    s_memrealtime s[{64+2*n}:{65+2*n}]
    s_mov_b64 exec, -1
    v_lshrrev_b32 v1, 6, v0
    v_lshlrev_b32 v1, 6, v1
    s_lshl_b32 s60, s2, 8
    s_add_u32 s60, s60, {TS + kidx*1024*256}
    v_add_u32 v1, s60, v1
    s_add_u32 s56, s10, 0
    s_addc_u32 s57, s11, 0
    s_mov_b32 s58, 0x2000000
    s_mov_b32 s59, 0x00020000
    v_and_b32 v2, 63, v0
    v_cmp_eq_u32 vcc, 0, v2
    s_and_saveexec_b64 s[62:63], vcc
    s_waitcnt lgkmcnt(0)""")
    for i in range(n + 1):
        A(f"v_mov_b32 v3, s{64+2*i}\nbuffer_store_dword v3, v1, s[56:59], 0 offen offset:{4*i}")


def rnd_pair(A, lo, hi, tmp):
    if os.environ.get("NOROUND") == "1": return
    A(f"""v_cvt_pk_bf16_f32 v{tmp}, v{lo}, v{hi}
    v_lshlrev_b32 v{lo}, 16, v{tmp}
    v_and_b32 v{hi}, 0xffff0000, v{tmp}""")

def k1():
    name = "k1_kernel"
    A.kernel_begin(name)
    stamp()
    A(f"""s_cmp_ge_u32 s2, {256+NMOD+NPACK}
    s_cbranch_scc1 k1_done
    s_load_dwordx4 s[4:7], s[0:1], 8      ; k, v
    s_load_dwordx2 s[8:9], s[0:1], 24     ; shift_k
    s_load_dwordx2 s[10:11], s[0:1], 120  ; ws
    s_load_dwordx4 s[12:15], s[0:1], 88   ; c, w_mod
    s_load_dwordx2 s[16:17], s[0:1], 56   ; w1
    s_load_dwordx2 s[18:19], s[0:1], 72   ; w2
    s_cmp_ge_u32 s2, {256+NMOD}
    s_cbranch_scc1 k1_pack
    s_cmp_ge_u32 s2, 256
    s_cbranch_scc1 k1_mod
    v_and_b32 v1, 31, v0
    v_lshrrev_b32 v2, 5, v0
    s_lshr_b32 s20, s2, 3
    s_and_b32 s21, s2, 7
    v_lshlrev_b32 v3, 2, v1
    s_lshl_b32 s22, s21, 7
    v_add_u32 v3, s22, v3
    v_lshlrev_b32 v4, 13, v2
    s_lshl_b32 s23, s20, 16
    v_add3_u32 v5, v4, v3, s23
    v_add_u32 v6, 4096, v5
    v_subrev_u32 v7, 3072, v5
    v_lshlrev_b32 v8, 2, v3
    s_waitcnt lgkmcnt(0)""")
    A.srd(24, 4, SZ_SD); A.srd(28, 6, SZ_SD); A.srd(32, 8, 4096); A.srd_off(36, 10, UR, SZ_SD)
    KR, VR, W = 10, 21, 32
    A(f"buffer_load_dwordx4 v[{W}:{W+3}], v8, s[32:35], 0 offen")
    for j in range(11):
        ad, off = (7, j * 1024) if j < 3 else ((5, (j - 3) * 1024) if j < 7 else (6, (j - 7) * 1024))
        A(f"buffer_load_dword v{KR+j}, v{ad}, s[24:27], 0 offen offset:{off}")
    for j in range(8):
        ad, off = (5, j * 1024) if j < 4 else (6, (j - 4) * 1024)
        A(f"buffer_load_dword v{VR+j}, v{ad}, s[28:31], 0 offen offset:{off}")
    A(f"""v_lshlrev_b32 v9, 11, v3
    v_lshlrev_b32 v4, 4, v2
    s_lshl_b32 s23, s20, 7
    s_sub_u32 s23, 4080, s23
    v_sub_u32 v9, v9, v4
    v_add_u32 v9, s23, v9
    v_add_u32 v30, 4096, v9
    s_waitcnt vmcnt(19)""")
    WF = 36
    A(f"""v_lshlrev_b32 v{WF+0}, 16, v{W+0}
    v_lshlrev_b32 v{WF+1}, 16, v{W+2}
    v_and_b32 v{WF+2}, 0xffff0000, v{W+0}
    v_and_b32 v{WF+3}, 0xffff0000, v{W+2}
    v_lshlrev_b32 v{WF+4}, 16, v{W+1}
    v_lshlrev_b32 v{WF+5}, 16, v{W+3}
    v_and_b32 v{WF+6}, 0xffff0000, v{W+1}
    v_and_b32 v{WF+7}, 0xffff0000, v{W+3}
    s_waitcnt vmcnt(8)""")
    KF = 44
    for j in range(11):
        A(f"""v_lshlrev_b32 v{KF+2*j}, 16, v{KR+j}
        v_and_b32 v{KF+2*j+1}, 0xffff0000, v{KR+j}""")
    A("s_waitcnt vmcnt(0)")
    stamp()
    KVO = 66
    P, T, VF = 82, 84, 86
    for r in range(8):
        acc = KVO + 2 * r
        A(f"v_pk_mul_f32 v[{acc}:{acc+1}], v[{KF+2*r}:{KF+2*r+1}], v[{WF+6}:{WF+7}]")
        rnd_pair(A, acc, acc + 1, T)
        for t in range(1, 4):
            A(f"v_pk_mul_f32 v[{P}:{P+1}], v[{KF+2*(r+t)}:{KF+2*(r+t)+1}], v[{WF+2*(3-t)}:{WF+2*(3-t)+1}]")
            rnd_pair(A, P, P + 1, T)
            A(f"v_pk_add_f32 v[{acc}:{acc+1}], v[{acc}:{acc+1}], v[{P}:{P+1}]")
            rnd_pair(A, acc, acc + 1, T)
        A(f"""v_lshlrev_b32 v{VF}, 16, v{VR+r}
        v_and_b32 v{VF+1}, 0xffff0000, v{VR+r}
        v_pk_mul_f32 v[{acc}:{acc+1}], v[{acc}:{acc+1}], v[{VF}:{VF+1}]""")
    O = 88
    for e in range(2):
        for j in range(4):
            A(f"v_cvt_pk_bf16_f32 v{O+4*e+j}, v{KVO+2*(7-2*j)+e}, v{KVO+2*(6-2*j)+e}")
    A(f"""buffer_store_dwordx4 v[{O}:{O+3}], v9, s[36:39], 0 offen
    buffer_store_dwordx4 v[{O+4}:{O+7}], v30, s[36:39], 0 offen""")
    stamp_flush(0)
    A("s_endpgm")
    A(f"""k1_mod:
    s_sub_u32 s20, s2, 256
    v_and_b32 v1, 3, v0
    v_lshrrev_b32 v2, 2, v0
    v_mul_u32_u24 v3, 6144, v2
    v_lshlrev_b32 v4, 4, v1
    s_lshl_b32 s21, s20, 6
    v_add3_u32 v3, v3, v4, s21
    v_lshlrev_b32 v5, 1, v2
    s_waitcnt lgkmcnt(0)""")
    A.srd(24, 12, 1024); A.srd(28, 14, 512 * 3072 * 2); A.srd_off(36, 10, MOD, 3072 * 4)
    for i in range(8):
        A(f"buffer_load_ushort v{10+i}, v5, s[24:27], 0 offen offset:{128*i}")
    for i in range(8):
        A(f"s_mov_b32 s{40+i}, {393216*i}")
    for i in range(8):
        A(f"buffer_load_dwordx4 v[{20+4*i}:{23+4*i}], v3, s[28:31], s{40+i} offen")
    A("s_waitcnt vmcnt(8)")
    for i in range(8):
        A(f"""v_lshlrev_b32 v{10+i}, 16, v{10+i}
        v_mul_f32 v60, 0xbfb8aa3b, v{10+i}
        v_exp_f32 v60, v60
        s_nop 0
        v_add_f32 v60, 1.0, v60
        v_rcp_f32 v60, v60
        s_nop 0
        v_mul_f32 v60, v{10+i}, v60
        v_cvt_pk_bf16_f32 v60, v60, v60
        v_lshlrev_b32 v{10+i}, 16, v60""")
    for j in range(8):
        A(f"v_mov_b32 v{64+j}, 0")
    for i in range(8):
        A(f"s_waitcnt vmcnt({7-i})")
        for j in range(4):
            A(f"""v_lshlrev_b32 v60, 16, v{20+4*i+j}
            v_and_b32 v61, 0xffff0000, v{20+4*i+j}
            v_fmac_f32 v{64+2*j}, v60, v{10+i}
            v_fmac_f32 v{65+2*j}, v61, v{10+i}""")
    A("s_nop 1")
    for sh in (4, 8):
        for j in range(8):
            A(f"v_add_f32_dpp v{64+j}, v{64+j}, v{64+j} row_shr:{sh} row_mask:0xf bank_mask:0xf bound_ctrl:0")
        A("s_nop 1")
    A(f"""v_lshrrev_b32 v6, 4, v0
    v_lshlrev_b32 v6, 7, v6
    v_lshl_add_u32 v6, v1, 5, v6
    v_and_b32 v7, 12, v0
    v_cmp_eq_u32 vcc, 12, v7
    s_and_saveexec_b64 s[50:51], vcc
    ds_write_b128 v6, v[64:67]
    ds_write_b128 v6, v[68:71] offset:16
    s_mov_b64 exec, s[50:51]
    s_waitcnt lgkmcnt(0)
    s_barrier
    v_cmp_gt_u32 vcc, 32, v0
    s_and_saveexec_b64 s[50:51], vcc
    s_cbranch_execz k1_done
    v_lshlrev_b32 v6, 2, v0""")
    for p in range(16):
        A(f"ds_read_b32 v{20+p}, v6 offset:{128*p}")
    A("s_waitcnt lgkmcnt(0)")
    for p in range(1, 16):
        A(f"v_add_f32 v20, v20, v{20+p}")
    A(f"""v_cvt_pk_bf16_f32 v20, v20, v20
    v_lshlrev_b32 v20, 16, v20
    s_lshr_b32 s22, s20, 4
    s_cmp_eq_u32 s22, 1
    s_cselect_b32 s23, 1.0, 0
    s_cmp_eq_u32 s22, 4
    s_cselect_b32 s23, 1.0, s23
    v_add_f32 v20, s23, v20
    v_cvt_pk_bf16_f32 v20, v20, v20
    v_lshlrev_b32 v20, 16, v20
    s_lshl_b32 s21, s20, 7
    v_add_u32 v6, s21, v6
    buffer_store_dword v20, v6, s[36:39], 0 offen
    s_endpgm""")
    A(f"""k1_pack:
    v_lshrrev_b32 v1, 6, v0
    s_nop 0
    v_readfirstlane_b32 s20, v1
    s_sub_u32 s21, s2, {256+NMOD}
    s_lshl_b32 s21, s21, 2
    s_add_u32 s20, s20, s21
    v_and_b32 v1, 63, v0             ; lane
    v_lshlrev_b32 v9, 4, v1          ; lane*16
    s_waitcnt lgkmcnt(0)
    s_cmp_ge_u32 s20, 352
    s_cbranch_scc1 k1_pack2""")
    A.srd(24, 16, SZ_W); A.srd_off(36, 10, W1P, SZ_W)
    A(f"""s_and_b32 s21, s20, 15
    s_lshr_b32 s22, s20, 4
    v_and_b32 v2, 15, v1
    v_lshrrev_b32 v3, 4, v1
    v_mul_u32_u24 v3, {8*2752}, v3
    v_lshl_add_u32 v3, v2, 1, v3
    s_mul_i32 s23, s21, {32*2752}
    s_lshl_b32 s28, s22, 7
    s_add_u32 s23, s23, s28
    v_add_u32 v3, s23, v3""")
    for i in range(8):
        A(f"s_mov_b32 s{40+i}, {2752*i}")
    for u in range(4):
        for i in range(8):
            A(f"buffer_load_ushort v{32+8*u+i}, v3, s[24:27], s{40+i} offen offset:{32*u}")
    A(f"""s_lshl_b32 s23, s22, 16
    s_lshl_b32 s28, s21, 10
    s_add_u32 s23, s23, s28
    v_add_u32 v9, s23, v9""")
    for u in range(4):
        A(f"s_waitcnt vmcnt({8*(3-u)+u})")
        for jj in range(4):
            A(f"v_lshl_or_b32 v{12+4*u+jj}, v{32+8*u+2*jj+1}, 16, v{32+8*u+2*jj}")
        A(f"""s_mov_b32 s29, {16384*u}
        buffer_store_dwordx4 v[{12+4*u}:{15+4*u}], v9, s[36:39], s29 offen""")
    A("s_endpgm")
    A(f"""k1_pack2:
    s_cmp_ge_u32 s20, 696
    s_cbranch_scc1 k1_done
    s_sub_u32 s20, s20, 352""")
    A.srd(24, 18, SZ_W); A.srd_off(36, 10, W2P, SZ_W)
    A(f"""s_lshr_b32 s21, s20, 2
    s_and_b32 s22, s20, 3
    v_and_b32 v2, 31, v1
    v_lshrrev_b32 v3, 5, v1
    v_lshlrev_b32 v3, 13, v3
    v_lshl_add_u32 v3, v2, 1, v3
    s_lshl_b32 s23, s21, 14
    s_lshl_b32 s28, s22, 8
    s_add_u32 s23, s23, s28
    v_add_u32 v3, s23, v3""")
    for i in range(8):
        A(f"s_mov_b32 s{40+i}, {1024*i}")
    for u in range(4):
        for i in range(8):
            A(f"buffer_load_ushort v{32+8*u+i}, v3, s[24:27], s{40+i} offen offset:{64*u}")
    A(f"""s_mul_i32 s23, s22, {4*86*1024}
    s_lshl_b32 s28, s21, 10
    s_add_u32 s23, s23, s28
    v_add_u32 v9, s23, v9""")
    for u in range(4):
        A(f"s_waitcnt vmcnt({8*(3-u)+u})")
        for jj in range(4):
            A(f"v_lshl_or_b32 v{12+4*u+jj}, v{32+8*u+2*jj+1}, 16, v{32+8*u+2*jj}")
        A(f"""s_mov_b32 s29, {86*1024*u}
        buffer_store_dwordx4 v[{12+4*u}:{15+4*u}], v9, s[36:39], s29 offen""")
    A("""k1_done:
    s_endpgm""")
    kds.append(A.kd(name, 96, 100))
    return f"; @launch kernel={name} grid=({256+NMOD+NPACK},1,1) block=(256,1,1) lds=2048"

OSZ = 2368; USZ = 2 * OSZ
L_U = 0; L_HEAD = 2 * USZ; L_RED = L_HEAD + 2 * 256
K2_LDS = L_RED + 4 * 4096
def k2():
    name = "k2_kernel"
    A.kernel_begin(name)
    stamp()
    A(f"""s_cmp_ge_u32 s2, 256
    s_cbranch_scc1 k2_done
    s_load_dwordx4 s[4:7], s[0:1], 32
    s_load_dwordx2 s[10:11], s[0:1], 120  ; ws
    v_lshrrev_b32 v1, 6, v0
    v_and_b32 v2, 63, v0                  ; lane
    v_readfirstlane_b32 s20, v1           ; wave
    v_and_b32 v3, 15, v2                  ; b / a'
    v_lshrrev_b32 v4, 4, v2               ; g
    s_lshr_b32 s21, s20, 1                ; ch
    s_and_b32 s22, s20, 1                 ; hf
    s_and_b32 s23, s2, 7
    s_lshl_b32 s23, s23, 6
    s_lshr_b32 s24, s2, 3
    s_lshl_b32 s24, s24, 1
    s_add_u32 s23, s23, s24               ; d0
    s_add_u32 s25, s23, s21               ; d
    s_waitcnt lgkmcnt(0)""")
    A.srd(28, 4, SZ_SD); A.srd(32, 6, 1024); A.srd_off(36, 10, UR, SZ_SD); A.srd_off(40, 10, YT, SZ_SD)
    A(f"""v_lshlrev_b32 v5, 4, v0
    s_lshl_b32 s26, s23, 12
    v_add_u32 v5, s26, v5
    v_add_u32 v6, 4096, v5
    buffer_load_dwordx4 v[200:203], v5, s[36:39], 0 offen
    buffer_load_dwordx4 v[204:207], v6, s[36:39], 0 offen
    s_lshl_b32 s26, s25, 12
    v_lshlrev_b32 v7, 4, v2
    v_add_u32 v7, s26, v7
    buffer_load_dwordx4 v[208:211], v7, s[28:31], 0 offen
    s_lshl_b32 s27, s25, 1
    v_mov_b32 v8, s27
    buffer_load_ushort v212, v8, s[32:35], 0 offen
    v_lshlrev_b32 v9, 5, v4
    v_lshl_add_u32 v9, v3, 1, v9
    s_lshl_b32 s27, s22, 8
    s_add_u32 s27, s27, s26
    s_add_u32 s27, s27, 98
    v_add_u32 v9, s27, v9
    v_subrev_u32 v10, 128, v9""")
    AF = 64
    def af(q, tt, o): return AF + 4 * (q * 4 + tt * 2 + o)
    for tt in range(2):
        for o in range(2):
            for q in range(8):
                if tt == 1:
                    A(f"buffer_load_dwordx4 v[{af(q,tt,o)}:{af(q,tt,o)+3}], v9, s[28:31], 0 offen offset:{512*q+16*o}")
                elif q >= 1:
                    A(f"buffer_load_dwordx4 v[{af(q,tt,o)}:{af(q,tt,o)+3}], v9, s[28:31], 0 offen offset:{512*q-128+16*o}")
                else:
                    A(f"buffer_load_dwordx4 v[{af(q,tt,o)}:{af(q,tt,o)+3}], v10, s[28:31], 0 offen offset:{16*o}")
    A(f"""v_and_b32 v11, 1, v0
    v_mul_u32_u24 v11, {OSZ}, v11
    v_lshrrev_b32 v12, 1, v0
    v_lshl_add_u32 v11, v12, 4, v11       ; (t&1)*OSZ + (t>>1)*16
    v_mov_b32 v216, 0
    v_mov_b32 v217, 0
    v_mov_b32 v218, 0
    v_mov_b32 v219, 0
    v_mul_u32_u24 v13, {OSZ}, v4
    v_lshl_add_u32 v13, v3, 4, v13
    v_add_u32 v13, 2048, v13
    s_lshl_b32 s27, s21, 8
    s_add_u32 s27, s27, {L_HEAD}
    v_lshlrev_b32 v14, 4, v2
    v_add_u32 v14, s27, v14
    s_cmp_lg_u32 s20, 0
    s_cbranch_scc1 k2_nz
    ds_write_b128 v13, v[216:219]
    k2_nz:
    v_cmp_gt_u32 vcc, 2, v2
    s_and_saveexec_b64 s[44:45], vcc
    ds_write_b128 v14, v[216:219]
    s_mov_b64 exec, s[44:45]
    s_waitcnt vmcnt(35)
    ds_write_b128 v11, v[200:203]
    s_waitcnt vmcnt(34)
    ds_write_b128 v11, v[204:207] offset:{USZ}
    s_waitcnt vmcnt(33)
    v_cmp_gt_u32 vcc, 8, v2
    s_and_saveexec_b64 s[44:45], vcc
    ds_write_b128 v14, v[208:211] offset:32
    s_mov_b64 exec, s[44:45]
    v_sub_u32 v15, v4, v3
    v_lshlrev_b32 v15, 4, v15
    s_mul_i32 s27, s21, {USZ}
    s_lshl_b32 s26, s22, 7
    s_add_u32 s27, s27, s26
    s_add_u32 s27, s27, {L_U + 240}
    v_add_u32 v15, s27, v15
    v_lshlrev_b32 v16, 5, v4
    v_lshl_add_u32 v16, v3, 1, v16
    s_lshl_b32 s27, s21, 8
    s_add_u32 s27, s27, {L_HEAD + 2}
    v_add_u32 v16, s27, v16""")
    ACC = 20
    for i in range(32):
        A(f"v_mov_b32 v{ACC+i}, 0")
    A("""s_waitcnt lgkmcnt(0)
    s_barrier""")
    stamp()
    BF = [192, 224]
    def bload(tt, o, st):
        for dl in range(8):
            A(f"ds_read_b128 v[{BF[st]+4*dl}:{BF[st]+4*dl+3}], v15 offset:{o*OSZ + 16*(112-16*dl+4*tt)}")
    A("""s_waitcnt vmcnt(32)
    v_lshlrev_b32 v17, 16, v212""")
    bload(0, 0, 0)
    A(f"""s_waitcnt vmcnt(16)
    s_cmp_lg_u32 s22, 0
    s_cbranch_scc1 k2_nohead
    ds_read_b128 v[{af(0,0,0)}:{af(0,0,0)+3}], v16
    ds_read_b128 v[{af(0,0,1)}:{af(0,0,1)+3}], v16 offset:16
    k2_nohead:
    s_waitcnt lgkmcnt(0)""")
    stamp()
    taus = [(0, 0), (0, 1), (1, 0), (1, 1)]
    for i, (tt, o) in enumerate(taus):
        st = i & 1
        if i + 1 < 4:
            bload(taus[i + 1][0], taus[i + 1][1], st ^ 1)
        if i == 2: A("s_waitcnt vmcnt(8)")
        if i == 3: A("s_waitcnt vmcnt(0)")
        for dl in range(8):
            for q in range(8 - dl):
                n = q + dl
                A(f"v_mfma_f32_16x16x32_bf16 v[{ACC+4*n}:{ACC+4*n+3}], v[{af(q,tt,o)}:{af(q,tt,o)+3}], v[{BF[st]+4*dl}:{BF[st]+4*dl+3}], v[{ACC+4*n}:{ACC+4*n+3}]")
        if i + 1 < 4:
            A("s_waitcnt lgkmcnt(0)")
    stamp()
    A(f"""s_nop 7
    s_nop 1
    v_lshlrev_b32 v18, 4, v2
    s_lshl_b32 s27, s20, 12
    s_add_u32 s27, s27, {L_RED}
    v_add_u32 v19, s27, v18
    s_xor_b32 s27, s20, 1
    s_lshl_b32 s27, s27, 12
    s_add_u32 s27, s27, {L_RED}
    v_add_u32 v18, s27, v18
    s_cmp_lg_u32 s22, 0
    s_cbranch_scc1 k2_red1""")
    for j in range(4):
        A(f"ds_write_b128 v19, v[{ACC+16+4*j}:{ACC+16+4*j+3}] offset:{1024*j}")
    A("s_branch k2_red2\nk2_red1:")
    for j in range(4):
        A(f"ds_write_b128 v19, v[{ACC+4*j}:{ACC+4*j+3}] offset:{1024*j}")
    A("s_waitcnt lgkmcnt(0)")
    for j in range(16):
        A(f"v_mov_b32 v{ACC+j}, v{ACC+16+j}")
    A(f"""k2_red2:
    s_waitcnt lgkmcnt(0)
    s_barrier""")
    R = 64
    for j in range(4):
        A(f"ds_read_b128 v[{R+4*j}:{R+4*j+3}], v18 offset:{1024*j}")
    A(f"""v_lshrrev_b32 v5, 1, v4
    v_sub_u32 v5, 1, v5
    v_mul_u32_u24 v5, {OSZ}, v5
    v_lshlrev_b32 v6, 4, v3
    v_sub_u32 v5, v5, v6
    v_and_b32 v6, 1, v4
    v_lshlrev_b32 v6, 3, v6
    v_sub_u32 v5, v5, v6
    s_mul_i32 s27, s21, {USZ}
    s_lshl_b32 s26, s22, 10
    s_sub_u32 s27, s27, s26
    s_add_u32 s27, s27, {L_U + 16*(127-48) + 8}
    v_add_u32 v5, s27, v5""")
    U = 80
    for j in range(4):
        A(f"ds_read_b64 v[{U+2*j}:{U+2*j+1}], v5 offset:{256*(3-j)}")
    A(f"""v_lshlrev_b32 v6, 5, v3
    v_lshl_add_u32 v6, v4, 3, v6
    s_lshl_b32 s27, s25, 12
    s_lshl_b32 s26, s22, 11
    s_add_u32 s27, s27, s26
    v_add_u32 v6, s27, v6
    s_waitcnt lgkmcnt(0)""")
    T, X = 90, 92
    for j in range(4):
        y = ACC + 4 * j
        for r in range(4):
            A(f"v_add_f32 v{y+r}, v{y+r}, v{R+4*j+r}")
        rnd_pair(A, y, y + 1, T); rnd_pair(A, y + 2, y + 3, T)
        A(f"""v_and_b32 v{X}, 0xffff0000, v{U+2*j+1}
        v_lshlrev_b32 v{X+1}, 16, v{U+2*j+1}
        v_and_b32 v{X+2}, 0xffff0000, v{U+2*j}
        v_lshlrev_b32 v{X+3}, 16, v{U+2*j}""")
        for r in range(4):
            A(f"v_mul_f32 v{X+r}, v17, v{X+r}")
        rnd_pair(A, X, X + 1, T); rnd_pair(A, X + 2, X + 3, T)
        for r in range(4):
            A(f"v_add_f32 v{y+r}, v{y+r}, v{X+r}")
        A(f"""v_cvt_pk_bf16_f32 v{y}, v{y}, v{y+1}
        v_cvt_pk_bf16_f32 v{y+1}, v{y+2}, v{y+3}
        buffer_store_dwordx2 v[{y}:{y+1}], v6, s[40:43], 0 offen offset:{512*j}""")
    stamp_flush(1)
    A("""k2_done:
    s_endpgm""")
    kds.append(A.kd(name, 256, 100))
    return f"; @launch kernel={name} grid=(256,1,1) block=(256,1,1) lds={K2_LDS}"

def wave_reduce8(A, base, tmp):
    for ctrl in ("row_shr:1", "row_shr:2", "row_shr:4", "row_shr:8"):
        for j in range(8):
            A(f"v_add_f32_dpp v{base+j}, v{base+j}, v{base+j} {ctrl} row_mask:0xf bank_mask:0xf bound_ctrl:0")
    for j in range(8):
        A(f"v_add_f32_dpp v{base+j}, v{base+j}, v{base+j} row_bcast:15 row_mask:0xa bank_mask:0xf")
    for j in range(8):
        A(f"v_add_f32_dpp v{base+j}, v{base+j}, v{base+j} row_bcast:31 row_mask:0xc bank_mask:0xf")

def k3():
    name = "k3_kernel"
    A.kernel_begin(name)
    stamp()
    A(f"""s_cmp_ge_u32 s2, 256
    s_cbranch_scc1 k3_done
    s_load_dwordx2 s[4:5], s[0:1], 0      ; q
    s_load_dwordx2 s[10:11], s[0:1], 120  ; ws
    v_lshlrev_b32 v1, 2, v0
    s_lshl_b32 s20, s2, 13                ; row0*1024
    v_add_u32 v2, s20, v1
    v_add_u32 v3, 4096, v2
    v_lshlrev_b32 v4, 13, v0              ; (2t)*4096
    s_lshl_b32 s21, s2, 4                 ; row0*2
    v_add_u32 v4, s21, v4
    v_add_u32 v5, 4096, v4
    v_lshlrev_b32 v6, 3, v0
    v_and_b32 v7, 63, v0
    v_lshrrev_b32 v8, 6, v0
    s_waitcnt lgkmcnt(0)""")
    A.srd(24, 4, SZ_SD); A.srd_off(28, 10, YT, SZ_SD); A.srd_off(32, 10, MOD, 12288)
    A.srd_off(36, 10, X1, SZ_SD); A.srd_off(40, 10, H2, SZ_SD)
    XR = 10
    for r in range(8):
        A(f"buffer_load_dword v{XR+r}, v{2 if r<4 else 3}, s[24:27], 0 offen offset:{1024*(r%4)}")
    YR = 20
    A(f"""buffer_load_dwordx4 v[{YR}:{YR+3}], v4, s[28:31], 0 offen
    buffer_load_dwordx4 v[{YR+4}:{YR+7}], v5, s[28:31], 0 offen""")
    M = 28
    A("s_movk_i32 s44, 0x1000\ns_movk_i32 s45, 0x2000")
    for i in range(5):
        so, off = [("0", 0), ("0", 2048), ("s44", 0), ("s44", 2048), ("s45", 0)][i]
        A(f"buffer_load_dwordx2 v[{M+2*i}:{M+2*i+1}], v6, s[32:35], {so} offen offset:{off}")
    X = 40
    SUM = 56; SQ = 64
    ST = 72
    T = 140; P = 142
    A("s_waitcnt vmcnt(7)")
    stamp()
    for r in range(8):
        A(f"""v_lshlrev_b32 v{X+2*r}, 16, v{XR+r}
        v_and_b32 v{X+2*r+1}, 0xffff0000, v{XR+r}""")
    def stats(ldsoff, MEAN, RS):
        for r in range(8):
            A(f"""v_add_f32 v{SUM+r}, v{X+2*r}, v{X+2*r+1}
            v_mul_f32 v{SQ+r}, v{X+2*r}, v{X+2*r}
            v_fmac_f32 v{SQ+r}, v{X+2*r+1}, v{X+2*r+1}""")
        A("s_nop 1")
        wave_reduce8(A, SUM, T); wave_reduce8(A, SQ, T)
        A(f"""v_lshlrev_b32 v9, 6, v8
        v_cmp_eq_u32 vcc, 63, v7
        s_and_saveexec_b64 s[46:47], vcc
        ds_write_b128 v9, v[{SUM}:{SUM+3}] offset:{ldsoff}
        ds_write_b128 v9, v[{SUM+4}:{SUM+7}] offset:{ldsoff+16}
        ds_write_b128 v9, v[{SQ}:{SQ+3}] offset:{ldsoff+32}
        ds_write_b128 v9, v[{SQ+4}:{SQ+7}] offset:{ldsoff+48}
        s_mov_b64 exec, s[46:47]
        v_mov_b32 v9, 0
        s_waitcnt lgkmcnt(0)
        s_barrier""")
        for w in range(4):
            for c in range(4):
                A(f"ds_read_b128 v[{ST+16*w+4*c}:{ST+16*w+4*c+3}], v9 offset:{ldsoff+64*w+16*c}")
        A("s_waitcnt lgkmcnt(0)")
        for i in range(16):
            A(f"""v_add_f32 v{ST+i}, v{ST+i}, v{ST+16+i}
            v_add_f32 v{ST+32+i}, v{ST+32+i}, v{ST+48+i}""")
        for i in range(16):
            A(f"v_add_f32 v{ST+i}, v{ST+i}, v{ST+32+i}")
        for r in range(8):
            A(f"""v_mul_f32 v{MEAN+r}, 0x3b000000, v{ST+r}
            v_mul_f32 v{RS+r}, 0x3b000000, v{ST+8+r}
            v_fma_f32 v{RS+r}, -v{MEAN+r}, v{MEAN+r}, v{RS+r}
            v_max_f32 v{RS+r}, 0, v{RS+r}""")
        for r in range(0, 8, 2):
            rnd_pair(A, MEAN + r, MEAN + r + 1, T)
            rnd_pair(A, RS + r, RS + r + 1, T)
        for r in range(8):
            A(f"v_add_f32 v{RS+r}, 0x3727c5ac, v{RS+r}")
        for r in range(0, 8, 2):
            rnd_pair(A, RS + r, RS + r + 1, T)
        for r in range(8):
            A(f"v_sqrt_f32 v{RS+r}, v{RS+r}")
        A("s_nop 0")
        for r in range(0, 8, 2):
            rnd_pair(A, RS + r, RS + r + 1, T)
        for r in range(8):
            A(f"v_rcp_f32 v{RS+r}, v{RS+r}")
        A("s_nop 0")
    def modulate(r, MEAN, RS, mi, dst):
        A(f"""v_sub_f32 v{dst}, v{X+2*r}, v{MEAN+r}
        v_sub_f32 v{dst+1}, v{X+2*r+1}, v{MEAN+r}""")
        rnd_pair(A, dst, dst + 1, T)
        A(f"""v_mul_f32 v{dst}, v{dst}, v{RS+r}
        v_mul_f32 v{dst+1}, v{dst+1}, v{RS+r}""")
        rnd_pair(A, dst, dst + 1, T)
        A(f"v_pk_mul_f32 v[{dst}:{dst+1}], v[{dst}:{dst+1}], v[{M+2*(mi+1)}:{M+2*(mi+1)+1}]")
        rnd_pair(A, dst, dst + 1, T)
        A(f"v_pk_add_f32 v[{dst}:{dst+1}], v[{dst}:{dst+1}], v[{M+2*mi}:{M+2*mi+1}]")
    MEAN, RS = 144, 152
    stats(0, MEAN, RS)
    stamp()
    A("s_waitcnt vmcnt(0)")
    stamp()
    Y = 146 + 16
    for r in range(8):
        modulate(r, MEAN, RS, 0, P)
        rnd_pair(A, P, P + 1, T)
        if r % 2 == 0:
            A(f"v_lshlrev_b32 v{Y}, 16, v{YR+r//2}\nv_lshlrev_b32 v{Y+1}, 16, v{YR+4+r//2}")
        else:
            A(f"v_and_b32 v{Y}, 0xffff0000, v{YR+r//2}\nv_and_b32 v{Y+1}, 0xffff0000, v{YR+4+r//2}")
        A(f"v_pk_mul_f32 v[{P}:{P+1}], v[{P}:{P+1}], v[{Y}:{Y+1}]")
        rnd_pair(A, P, P + 1, T)
        A(f"v_pk_mul_f32 v[{P}:{P+1}], v[{P}:{P+1}], v[{M+4}:{M+5}]")
        rnd_pair(A, P, P + 1, T)
        A(f"""v_pk_add_f32 v[{P}:{P+1}], v[{P}:{P+1}], v[{X+2*r}:{X+2*r+1}]
        v_cvt_pk_bf16_f32 v{XR+r}, v{P}, v{P+1}
        v_lshlrev_b32 v{X+2*r}, 16, v{XR+r}
        v_and_b32 v{X+2*r+1}, 0xffff0000, v{XR+r}
        buffer_store_dword v{XR+r}, v{2 if r<4 else 3}, s[36:39], 0 offen offset:{1024*(r%4)}""")
    stats(256, MEAN, RS)
    for r in range(8):
        modulate(r, MEAN, RS, 3, P)
        A(f"""v_cvt_pk_bf16_f32 v{YR+r}, v{P}, v{P+1}
        buffer_store_dword v{YR+r}, v{2 if r<4 else 3}, s[40:43], 0 offen offset:{1024*(r%4)}""")
    stamp_flush(2)
    A("""k3_done:
    s_endpgm""")
    kds.append(A.kd(name, 168, 100))
    return f"; @launch kernel={name} grid=(256,1,1) block=(256,1,1) lds=512"

def k4():
    name = "k4_kernel"
    A.kernel_begin(name)
    stamp()
    A(f"""s_cmp_ge_u32 s2, 256
    s_cbranch_scc1 k4_done
    s_load_dwordx2 s[4:5], s[0:1], 64     ; b1
    s_load_dwordx2 s[10:11], s[0:1], 120  ; ws
    v_lshrrev_b32 v1, 6, v0
    v_and_b32 v2, 63, v0
    v_readfirstlane_b32 s20, v1           ; wave
    v_and_b32 v3, 15, v2                  ; s' / f'
    v_lshrrev_b32 v4, 4, v2               ; g
    s_and_b32 s21, s2, 7
    s_lshr_b32 s22, s2, 6
    s_lshl_b32 s22, s22, 3
    s_add_u32 s21, s21, s22               ; R
    s_lshr_b32 s22, s2, 3
    s_and_b32 s22, s22, 7                 ; fg
    s_mul_i32 s23, s22, 11
    s_add_u32 s23, s23, s20
    s_waitcnt lgkmcnt(0)""")
    A.srd(24, 4, F * 2); A.srd_off(28, 10, H2, SZ_SD); A.srd_off(32, 10, W1P, SZ_W); A.srd_off(36, 10, HID, SZ_HID)
    A(f"""s_lshl_b32 s40, s21, 16             ; R*64*1024
    s_lshl_b32 s41, s20, 14               ; wave*16*1024
    s_add_u32 s40, s40, s41""")
    for i in range(16):
        A(f"""v_xor_b32 v5, {i}, v2
        v_lshlrev_b32 v5, 4, v5
        s_add_u32 s42, s41, {1024*i}
        s_mov_b32 m0, s42
        s_add_u32 s43, s40, {1024*i}
        buffer_load_dwordx4 v5, s[28:31], s43 offen lds""")
    A(f"""v_lshlrev_b32 v6, 4, v2
    s_lshl_b32 s42, s23, 14
    v_add_u32 v6, s42, v6
    v_add_u32 v7, 0x10000, v6             ; tile1
    v_add_u32 v8, 0x20000, v6             ; tile2
    s_cmp_eq_u32 s20, 3
    s_cselect_b32 s44, 0x40000000, 0
    v_add_u32 v8, s44, v8
    s_movk_i32 s45, 0x1000
    s_movk_i32 s46, 0x2000
    s_movk_i32 s47, 0x3000""")
    so = ["0", "s45", "s46", "s47"]
    for t in range(16):
        for j in range(3):
            A(f"buffer_load_dwordx4 a[{(t*3+j)*4}:{(t*3+j)*4+3}], v{6+j}, s[32:35], {so[t//4]} offen offset:{1024*(t%4)}")
    A(f"""v_lshlrev_b32 v9, 3, v4
    s_lshl_b32 s42, s23, 5
    v_add_u32 v9, s42, v9
    buffer_load_dwordx2 v[10:11], v9, s[24:27], 0 offen
    buffer_load_dwordx2 v[12:13], v9, s[24:27], 0 offen offset:128
    buffer_load_dwordx2 v[14:15], v9, s[24:27], 0 offen offset:256""")
    A(f"""v_and_b32 v16, 3, v3
    v_xor_b32 v16, v16, v4
    v_and_b32 v17, 12, v3
    v_lshlrev_b32 v18, 10, v3""")
    for vv in range(4):
        A(f"""v_xor_b32 v19, {4*vv}, v17
        v_add_u32 v19, v19, v16
        v_lshl_add_u32 v{20+vv}, v19, 4, v18""")
    ACC = 32
    for i in range(48):
        A(f"v_mov_b32 v{ACC+i}, 0")
    A("""s_waitcnt vmcnt(51)
    s_barrier""")
    stamp()
    BF = [80, 96]
    def bl(t, st):
        for sg in range(4):
            A(f"ds_read_b128 v[{BF[st]+4*sg}:{BF[st]+4*sg+3}], v{20+t%4} offset:{16384*sg + 256*(t//4)}")
    bl(0, 0)
    for t in range(16):
        st = t & 1
        if t + 1 < 16:
            bl(t + 1, st ^ 1)
            A(f"s_waitcnt vmcnt({3+3*(15-t)}) lgkmcnt(4)")
        else:
            A(f"s_waitcnt vmcnt(3) lgkmcnt(0)")
        for j in range(3):
            for sg in range(4):
                c = ACC + (j * 4 + sg) * 4
                A(f"v_mfma_f32_16x16x32_bf16 v[{c}:{c+3}], a[{(t*3+j)*4}:{(t*3+j)*4+3}], v[{BF[st]+4*sg}:{BF[st]+4*sg+3}], v[{c}:{c+3}]")
    stamp()
    A(f"""v_lshrrev_b32 v5, 1, v4
    v_lshlrev_b32 v5, 9, v5
    v_lshl_add_u32 v5, v3, 4, v5
    v_and_b32 v6, 1, v4
    v_lshl_add_u32 v5, v6, 3, v5
    s_mul_i32 s42, s21, {2*86*1024}
    s_lshl_b32 s43, s23, 10
    s_add_u32 s42, s42, s43
    v_add_u32 v5, s42, v5
    v_add_u32 v6, 4096, v5
    v_add_u32 v7, 8192, v5
    v_add_u32 v7, s44, v7
    s_add_u32 s42, s23, 8
    s_cmp_ge_u32 s42, 86
    s_cselect_b32 s44, 0x40000000, 0
    v_add_u32 v7, s44, v7
    s_mov_b32 s45, {86*1024}
    s_waitcnt vmcnt(0)""")
    B, T = 112, 116
    for j in range(3):
        A(f"""v_lshlrev_b32 v{B}, 16, v{10+2*j}
        v_and_b32 v{B+1}, 0xffff0000, v{10+2*j}
        v_lshlrev_b32 v{B+2}, 16, v{11+2*j}
        v_and_b32 v{B+3}, 0xffff0000, v{11+2*j}""")
        for sg in range(4):
            c = ACC + (j * 4 + sg) * 4
            rnd_pair(A, c, c + 1, T); rnd_pair(A, c + 2, c + 3, T)
            A(f"""v_pk_add_f32 v[{c}:{c+1}], v[{c}:{c+1}], v[{B}:{B+1}]
            v_pk_add_f32 v[{c+2}:{c+3}], v[{c+2}:{c+3}], v[{B+2}:{B+3}]""")
            rnd_pair(A, c, c + 1, T); rnd_pair(A, c + 2, c + 3, T)
            for r in range(4):
                A(f"v_max_f32 v{c+r}, 0, v{c+r}")
            A(f"""v_pk_mul_f32 v[{c}:{c+1}], v[{c}:{c+1}], v[{c}:{c+1}]
            v_pk_mul_f32 v[{c+2}:{c+3}], v[{c+2}:{c+3}], v[{c+2}:{c+3}]
            v_cvt_pk_bf16_f32 v{c}, v{c}, v{c+1}
            v_cvt_pk_bf16_f32 v{c+1}, v{c+2}, v{c+3}
            buffer_store_dwordx2 v[{c}:{c+1}], v{5+j}, s[36:39], {'s45' if sg>>1 else '0'} offen offset:{256*(sg&1)}""")
    stamp_flush(3)
    A("""k4_done:
    s_endpgm""")
    kds.append(A.kd(name, 120, 100, accum=120, agpr=192))
    return f"; @launch kernel={name} grid=(256,1,1) block=(256,1,1) lds=65536"

def k5():
    name = "k5_kernel"
    A.kernel_begin(name)
    stamp()
    A(f"""s_cmp_ge_u32 s2, 256
    s_cbranch_scc1 k5_done
    s_load_dwordx2 s[4:5], s[0:1], 80     ; b2
    s_load_dwordx2 s[6:7], s[0:1], 104    ; out
    s_load_dwordx2 s[10:11], s[0:1], 120  ; ws
    v_lshrrev_b32 v1, 6, v0
    v_and_b32 v2, 63, v0
    v_readfirstlane_b32 s20, v1           ; wave
    v_and_b32 v3, 31, v2                  ; s'
    v_lshrrev_b32 v4, 5, v2               ; h
    s_and_b32 s21, s2, 7
    s_lshr_b32 s22, s2, 6
    s_lshl_b32 s22, s22, 3
    s_add_u32 s21, s21, s22               ; R
    s_lshr_b32 s22, s2, 3
    s_and_b32 s22, s22, 7
    s_waitcnt lgkmcnt(0)""")
    A.srd(24, 4, 1024); A.srd(28, 6, SZ_SD); A.srd_off(32, 10, HID, SZ_HID); A.srd_off(36, 10, W2P, SZ_W)
    A.srd_off(40, 10, X1, SZ_SD); A.srd_off(44, 10, MOD + 5 * 2048, 2048)
    A(f"""v_lshlrev_b32 v5, 4, v2
    s_lshl_b32 s23, s20, 10
    v_add_u32 v5, s23, v5
    s_mul_i32 s23, s21, {2*86*1024}
    v_add_u32 v6, s23, v5
    v_add_u32 v7, {86*1024}, v6
    s_mul_i32 s23, s22, {2*86*1024}
    v_add_u32 v8, s23, v5                 ; W2P cb0
    v_add_u32 v9, {86*1024}, v8           ; W2P cb1""")
    A(f"""s_lshr_b32 s48, s20, 1
    s_and_b32 s49, s20, 1
    s_lshl_b32 s50, s22, 7
    s_lshl_b32 s51, s49, 6
    s_add_u32 s50, s50, s51
    v_lshlrev_b32 v10, 3, v4
    v_add_u32 v10, s50, v10
    v_lshlrev_b32 v11, 1, v10
    s_lshl_b32 s51, s21, 16
    s_lshl_b32 s52, s48, 15
    s_add_u32 s51, s51, s52
    v_lshlrev_b32 v12, 10, v3
    v_add3_u32 v12, v12, v10, s51""")
    XR, BR, GR = 16, 24, 32
    NST = 12
    def fr(i, k):
        return ((i % NST) * 4 + k) * 4
    def issue(i):
        A(f"s_mov_b32 s53, {4096*i}")
        if i == 21:
            A(f"""s_cmp_ge_u32 s20, 2
            s_cselect_b32 s53, 0x40000000, s53""")
        for k in range(4):
            srd = "s[32:35]" if k < 2 else "s[36:39]"
            A(f"buffer_load_dwordx4 a[{fr(i,k)}:{fr(i,k)+3}], v{6+k}, {srd}, s53 offen")
    for i in range(NST):
        issue(i)
    for q in range(4):
        A(f"buffer_load_dwordx2 v[{XR+2*q}:{XR+2*q+1}], v12, s[40:43], 0 offen offset:{16*q}")
    for q in range(4):
        A(f"buffer_load_dwordx2 v[{BR+2*q}:{BR+2*q+1}], v10, s[24:27], 0 offen offset:{16*q}")
    for q in range(4):
        A(f"buffer_load_dwordx4 v[{GR+4*q}:{GR+4*q+3}], v11, s[44:47], 0 offen offset:{32*q}")
    ACC = 48
    for i in range(64):
        A(f"v_mov_b32 v{ACC+i}, 0")
    stamp()
    for i in range(22):
        last_issued = min(21, max(NST - 1, i + NST - 1))
        n_after = 4 * (last_issued - i) + (12 if i < NST else 0)
        A(f"s_waitcnt vmcnt({min(n_after,63)})")
        for sb in range(2):
            for cb in range(2):
                c = ACC + 16 * (2 * sb + cb)
                A(f"v_mfma_f32_32x32x16_bf16 v[{c}:{c+15}], a[{fr(i,2+cb)}:{fr(i,2+cb)+3}], a[{fr(i,sb)}:{fr(i,sb)+3}], v[{c}:{c+15}]")
        if i + NST < 22:
            issue(i + NST)
    stamp()
    A(f"""s_nop 7
    s_nop 3
    v_lshlrev_b32 v13, 4, v2""")
    for T in range(4):
        lab = A.label("skip")
        A(f"""s_cmp_eq_u32 s20, {T}
        s_cbranch_scc1 {lab}
        s_sub_u32 s53, s20, {T+1}
        s_and_b32 s53, s53, 3
        s_lshl_b32 s53, s53, 12
        s_add_u32 s53, s53, {T*12288}
        v_add_u32 v14, s53, v13""")
        for q in range(4):
            A(f"ds_write_b128 v14, v[{ACC+16*T+4*q}:{ACC+16*T+4*q+3}] offset:{1024*q}")
        A(f"{lab}:")
    OWN = 112
    for T in range(4):
        lab = A.label("mv")
        A(f"""s_cmp_lg_u32 s20, {T}
        s_cbranch_scc1 {lab}""")
        for i in range(16):
            A(f"v_mov_b32 v{OWN+i}, v{ACC+16*T+i}")
        A(f"{lab}:")
    A(f"""s_mul_i32 s53, s20, 12288
    v_add_u32 v14, s53, v13
    s_waitcnt lgkmcnt(0)
    s_barrier""")
    for sl in range(3):
        for q in range(4):
            A(f"ds_read_b128 v[{ACC+16*sl+4*q}:{ACC+16*sl+4*q+3}], v14 offset:{4096*sl+1024*q}")
    A("s_waitcnt lgkmcnt(0)")
    for sl in range(3):
        for i in range(0, 16, 2):
            A(f"v_pk_add_f32 v[{OWN+i}:{OWN+i+1}], v[{OWN+i}:{OWN+i+1}], v[{ACC+16*sl+i}:{ACC+16*sl+i+1}]")
    T, U = 128, 130
    for q in range(4):
        c = OWN + 4 * q
        rnd_pair(A, c, c + 1, T); rnd_pair(A, c + 2, c + 3, T)
        A(f"""v_lshlrev_b32 v{U}, 16, v{BR+2*q}
        v_and_b32 v{U+1}, 0xffff0000, v{BR+2*q}
        v_lshlrev_b32 v{U+2}, 16, v{BR+2*q+1}
        v_and_b32 v{U+3}, 0xffff0000, v{BR+2*q+1}
        v_pk_add_f32 v[{c}:{c+1}], v[{c}:{c+1}], v[{U}:{U+1}]
        v_pk_add_f32 v[{c+2}:{c+3}], v[{c+2}:{c+3}], v[{U+2}:{U+3}]""")
        rnd_pair(A, c, c + 1, T); rnd_pair(A, c + 2, c + 3, T)
        A(f"""v_pk_mul_f32 v[{c}:{c+1}], v[{c}:{c+1}], v[{GR+4*q}:{GR+4*q+1}]
        v_pk_mul_f32 v[{c+2}:{c+3}], v[{c+2}:{c+3}], v[{GR+4*q+2}:{GR+4*q+3}]""")
        rnd_pair(A, c, c + 1, T); rnd_pair(A, c + 2, c + 3, T)
        A(f"""v_lshlrev_b32 v{U}, 16, v{XR+2*q}
        v_and_b32 v{U+1}, 0xffff0000, v{XR+2*q}
        v_lshlrev_b32 v{U+2}, 16, v{XR+2*q+1}
        v_and_b32 v{U+3}, 0xffff0000, v{XR+2*q+1}
        v_pk_add_f32 v[{c}:{c+1}], v[{c}:{c+1}], v[{U}:{U+1}]
        v_pk_add_f32 v[{c+2}:{c+3}], v[{c+2}:{c+3}], v[{U+2}:{U+3}]
        v_cvt_pk_bf16_f32 v{c}, v{c}, v{c+1}
        v_cvt_pk_bf16_f32 v{c+1}, v{c+2}, v{c+3}
        buffer_store_dwordx2 v[{c}:{c+1}], v12, s[28:31], 0 offen offset:{16*q}""")
    stamp_flush(4)
    A("""k5_done:
    s_endpgm""")
    kds.append(A.kd(name, 136, 100, accum=136, agpr=192))
    return f"; @launch kernel={name} grid=(256,1,1) block=(256,1,1) lds=49152"

launches = [k1(), k2(), k3(), k4(), k5()]
hdr = "\n".join(launches) + "\n.amdgcn_target \"amdgcn-amd-amdhsa--gfx950\"\n.text\n"
out = hdr + A.text() + '.section .rodata,"a"\n' + "".join(kds)
open(sys.argv[1] if len(sys.argv) > 1 else "adaLN_cond__ssm_conv_h3__dense_activation_squared_relu__prompt.s", "w").write(out)
```

```python
import sys, os
from asmlib import *

STAMP = os.environ.get("STAMP") == "1"
def P(n, d): return int(os.environ.get(n, d))
S, D, F = 2048, 512, 1376
UR, QP, X1P, X1S, HID, W1P, W2P = 0x0, 0x200000, 0x400000, 0x600000, 0x800000, 0xE00000, 0x1000000
MODF, ST1 = 0x1200000, 0x1210000
F1A, F1B, F2, F3, EPOCH = 0x1300000, 0x1304000, 0x1308000, 0x130C000, 0x1310000
TS = 0x1400000
WS_SZ = 0x1500000
OOB = 0x40000000
SZ_SD = S * D * 2
SZ_W = D * F * 2
POLL_MAX = 200000

OSZ = 2368; USZ = 2 * OSZ
L_U = 0
L_KF = 9472; KFSZ = 8256
L_MODP = L_KF + 2 * KFSZ
L_TB = L_MODP + 4096
L_TC2 = L_TB + 2048 + 64
L_TGB = L_TC2 + 2048 + 64
L_BB = L_TGB + 2048
L_ST = L_BB + 4 * 6144
L_X = L_ST + 2048
L_RED = L_X
LDS_SZ = L_X + 65536
assert LDS_SZ <= 160 * 1024 and L_X % 128 == 0, (LDS_SZ, L_X)

WS, SK, SV, SQ, SM1, SKF, SM2, SC, SWM, SPK, SOUT = 4, 8, 12, 16, 20, 24, 28, 32, 36, 40, 48
sWAVE, sXG, sJ, sEP = 52, 53, 54, 55
sR, sFG, sD0, sONES, sM = 96, 97, 98, 99, 3
T0, T1, T2, T3, T4, T5 = 56, 57, 58, 59, 60, 61
SX = 62
ROT1 = [64 + i for i in range(16)]
ROT2 = [80 + i for i in range(16)] + [8 + i for i in range(6)]
sROT1 = 14

A = Asm()
name = "adaLN_cond__ssm_conv_h3__dense_activation_squared_relu__prompt_kernel"
W4 = f"s[{WS}:{WS+3}]"

class VM:
    def __init__(self): self.q = []
    def op(self, text, tag):
        A(text); self.q.append(tag)
    def wait(self, *tags, extra=""):
        last = max((i for i, t in enumerate(self.q) if t in tags), default=-1)
        n = len(self.q) - 1 - last
        if last >= 0:
            assert n <= 63, (tags, n)
            A(f"s_waitcnt vmcnt({n}) {extra}".rstrip())
            self.q = self.q[last + 1:]
        elif extra:
            A(f"s_waitcnt {extra}")
vm = VM()

nst = [0]
def stamp(label=""):
    if not STAMP: return
    i = nst[0]; nst[0] += 1
    print(f"stamp {i}: {label}", file=sys.stderr)
    A(f"""s_memrealtime s[100:101]
    s_waitcnt lgkmcnt(0)
    v_writelane_b32 v143, s100, {i}""")

def rnd1(r):
    A(f"v_cvt_pk_bf16_f32 v{r}, v{r}, v{r}\nv_lshlrev_b32 v{r}, 16, v{r}")
def capture(fn):
    save = A.lines; A.lines = []
    fn()
    tmp = [x.strip() for x in A.lines]; A.lines = save
    return tmp

def poll(addr_v, nloads, stride_imm, dst, lab, only_wave0=True):
    if only_wave0:
        A(f"s_cmp_lg_u32 s{sWAVE}, 0\ns_cbranch_scc1 {lab}_done")
    A(f"s_mov_b32 s{T0}, 0\n{lab}:")
    for k in range(nloads):
        A(f"s_mov_b32 s{T1}, {k*stride_imm}\nbuffer_load_dword v{dst+k}, v{addr_v}, {W4}, s{T1} offen sc1")
    A("s_waitcnt vmcnt(0)")
    for k in range(nloads):
        A(f"v_xor_b32 v{dst+k}, s{sEP}, v{dst+k}")
    for k in range(1, nloads):
        A(f"v_or_b32 v{dst}, v{dst}, v{dst+k}")
    A(f"""v_cmp_ne_u32 vcc, 0, v{dst}
    s_add_u32 s{T0}, s{T0}, 1
    s_cmp_ge_u32 s{T0}, {POLL_MAX}
    s_cbranch_scc1 {lab}_done
    s_cbranch_vccz {lab}_done
    s_sleep 1
    s_branch {lab}
    {lab}_done:""")

def set_flag(wave, base, idx_code, va, vd, pre=""):
    lab = A.label("fl")
    A(f"""s_cmp_lg_u32 s{sWAVE}, {wave}
    s_cbranch_scc1 {lab}
    {pre}
    {idx_code}
    s_lshl_b32 s{T0}, s{T0}, 6
    s_add_u32 s{T0}, s{T0}, {base}
    v_mov_b32 v{va}, s{T0}
    v_mov_b32 v{vd}, s{sEP}
    s_mov_b64 exec, 1
    buffer_store_dword v{vd}, v{va}, {W4}, 0 offen sc1
    s_mov_b64 exec, -1
    {lab}:""".replace("    \n", ""))

def ln_final(sm, sq, rs_out, m_out):
    A(f"""v_mul_f32 v{m_out}, 0x3b000000, v{sm}
    v_mul_f32 v{rs_out}, 0x3b000000, v{sq}
    v_fma_f32 v{rs_out}, -v{m_out}, v{m_out}, v{rs_out}
    v_max_f32 v{rs_out}, 0, v{rs_out}""")
    rnd1(rs_out); rnd1(m_out)
    A(f"v_add_f32 v{rs_out}, 0x3727c5ac, v{rs_out}")
    rnd1(rs_out)
    A(f"v_sqrt_f32 v{rs_out}, v{rs_out}\ns_nop 0")
    rnd1(rs_out)
    A(f"v_rcp_f32 v{rs_out}, v{rs_out}\ns_nop 0")

A.kernel_begin(name)
NCP = P("NCP", 6)
A(f"""s_cmp_ge_u32 s2, 256
s_cbranch_scc1 k_done
s_load_dwordx16 s[64:79], s[0:1], 0
s_load_dwordx16 s[80:95], s[0:1], 64
s_getpc_b64 s[100:101]
k_pc:
v_lshlrev_b32 v1, 4, v0""")
for i in range(NCP):
    A(f"v_min_u32 v{5+i}, k_end-k_pc-16, v1")
    vm.op(f"global_load_dwordx4 a[0:3], v{5+i}, s[100:101]", "code")
    if i + 1 < NCP: A("v_add_u32 v1, 4096, v1")
A(f"""
v_lshrrev_b32 v1, 6, v0
v_and_b32 v2, 63, v0
v_readfirstlane_b32 s{sWAVE}, v1
s_and_b32 s{sXG}, s2, 7
s_lshr_b32 s{sJ}, s2, 3
v_and_b32 v3, 15, v2
v_lshrrev_b32 v4, 4, v2
s_lshr_b32 s{T0}, s{sJ}, 3
s_lshl_b32 s{T0}, s{T0}, 3
s_add_u32 s{sR}, s{sXG}, s{T0}
s_and_b32 s{sFG}, s{sJ}, 7
s_lshl_b32 s{sD0}, s{sXG}, 6
s_lshl_b32 s{T0}, s{sJ}, 1
s_add_u32 s{sD0}, s{sD0}, s{T0}
s_mov_b32 s{sONES}, 0x3f803f80""")
stamp("start")
KT, VT, QT, US, QS, PKT = L_X, L_X + 9216, L_X + 17408, L_X + 25600, L_X + 33792, L_X + 41984
A(f"""v_lshrrev_b32 v5, 3, v2
v_lshlrev_b32 v5, 10, v5
v_and_b32 v6, 7, v2
v_lshl_add_u32 v5, v6, 4, v5          ; (l>>3)*1024 + (l&7)*16
s_lshl_b32 s{T0}, s{sJ}, 16
s_lshl_b32 s{T1}, s{sXG}, 7
s_add_u32 s{T0}, s{T0}, s{T1}
v_add_u32 v7, s{T0}, v5
v_subrev_u32 v7, 8192, v7
s_lshl_b32 s{T1}, s{sWAVE}, 14
s_add_u32 s{T0}, s{T0}, s{T1}
v_add_u32 v5, s{T0}, v5
v_and_b32 v12, 31, v0                 ; cp
v_lshrrev_b32 v13, 5, v0              ; rg
v_lshlrev_b32 v8, 4, v12
s_lshl_b32 s{T0}, s{sXG}, 9
v_add_u32 v8, s{T0}, v8
s_lshl_b32 s{T4}, s{sWAVE}, 11         ; 2048*w
s_movk_i32 s{T5}, 8192
s_waitcnt lgkmcnt(0)""")
A.srd(SK, 66, SZ_SD); A.srd(SV, 68, SZ_SD); A.srd(SM1, 70, 4096); A.srd(SQ, 64, SZ_SD)
A(f"""s_cmp_lg_u32 s{sWAVE}, 3
s_cbranch_scc1 nohalo
s_mov_b32 m0, {KT}
s_nop 0
buffer_load_dwordx4 v7, s[{SK}:{SK+3}], 0 offen lds
nohalo:""")
W = 44
for (base, srd, tag) in ((KT + 1024, SK, "k"), (VT, SV, "k"), (QT, SQ, "k")):
    for i in range(2):
        A(f"s_add_u32 s{T0}, s{T4}, {base + 1024*i}\ns_mov_b32 m0, s{T0}\ns_nop 0")
        vm.op(f"buffer_load_dwordx4 v5, s[{srd}:{srd+3}], {'s%d'%T5 if i else '0'} offen lds", tag)
vm.op(f"buffer_load_dwordx4 v[{W}:{W+3}], v8, s[{SM1}:{SM1+3}], 0 offen", "k")
A.srd(WS, 94, WS_SZ); A.srd(SKF, 72, SZ_SD); A.srd(SM2, 74, 1024); A.srd(SC, 86, 1024); A.srd(SWM, 88, 512 * 3072 * 2)
A.srd(SOUT, 90, SZ_SD)
A(f"""s_add_u32 s{T2}, s94, {EPOCH}
s_addc_u32 s{T3}, s95, 0
s_load_dword s{sEP}, s[{T2}:{T3}], 0""")
KF0, DD, SR, CC, WM = 48, 58, 60, 68, 72
A(f"""v_lshlrev_b32 v9, 4, v0
s_lshl_b32 s{T0}, s{sD0}, 12
v_add_u32 v9, s{T0}, v9
s_movk_i32 s{T1}, 4096""")
vm.op(f"buffer_load_dwordx4 v[{KF0}:{KF0+3}], v9, s[{SKF}:{SKF+3}], 0 offen", "kf")
vm.op(f"buffer_load_dwordx4 v[{KF0+4}:{KF0+7}], v9, s[{SKF}:{SKF+3}], s{T1} offen", "kf")
A(f"s_lshl_b32 s{T0}, s{sD0}, 1\nv_mov_b32 v9, s{T0}")
vm.op(f"buffer_load_dword v{DD}, v9, s[{SM2}:{SM2+3}], 0 offen", "D")
A(f"""s_mul_i32 s{T0}, s2, 1366
s_lshr_b32 s{T0}, s{T0}, 16
s_mul_i32 s{T1}, s{T0}, 48
s_sub_u32 s{T1}, s2, s{T1}
s_mul_i32 s{sM}, s{T0}, 12288
s_lshl_b32 s{T2}, s{T1}, 8
s_add_u32 s{sM}, s{sM}, s{T2}
s_add_u32 s{sM}, s{sM}, {MODF}
s_cmp_ge_u32 s2, 192
s_cselect_b32 s{sM}, {OOB}, s{sM}
s_mul_i32 s{T2}, s{T0}, {128*6144}
s_lshl_b32 s{T3}, s{T1}, 7
s_add_u32 s{T2}, s{T2}, s{T3}
s_cmp_ge_u32 s2, 192
s_cselect_b32 s{T2}, {OOB}, s{T2}
v_and_b32 v9, 7, v0
v_lshrrev_b32 v10, 3, v0
v_mul_u32_u24 v11, {4*6144}, v10
v_lshl_add_u32 v11, v9, 4, v11
v_add_u32 v11, s{T2}, v11
v_lshlrev_b32 v10, 3, v10
s_lshl_b32 s{T0}, s{T0}, 8
v_add_u32 v10, s{T0}, v10""")
vm.op(f"buffer_load_dwordx2 v[{CC}:{CC+1}], v10, s[{SC}:{SC+3}], 0 offen", "c")
for i in range(4):
    A(f"s_mov_b32 s{T0}, {6144*i}")
    vm.op(f"buffer_load_dwordx4 v[{WM+4*i}:{WM+4*i+3}], v11, s[{SWM}:{SWM+3}], s{T0} offen", "wm")
A(f"""v_lshlrev_b32 v9, 4, v2
s_lshl_b32 s{T0}, s2, 13
s_lshl_b32 s{T1}, s{sWAVE}, 11
s_add_u32 s{T0}, s{T0}, s{T1}
v_add_u32 v9, s{T0}, v9""")
vm.op(f"buffer_load_dwordx4 v[{SR}:{SR+3}], v9, s[{SQ}:{SQ+3}], 0 offen", "sr")
vm.op(f"buffer_load_dwordx4 v[{SR+4}:{SR+7}], v9, s[{SQ}:{SQ+3}], 0 offen offset:1024", "sr")
PS, PA, PD = 88, 92, 90
A(f"""s_sub_u32 s{T0}, s2, 74
v_lshlrev_b32 v{PD}, 4, v2
v_bfe_u32 v9, v2, 2, 2                ; r
v_and_b32 v10, 3, v2                  ; c
s_cmp_lt_u32 s{T0}, 96
s_cbranch_scc0 pk_w2""")
A.srd(SPK, 78, SZ_W)
A(f"""s_and_b32 s{T1}, s{T0}, 15              ; t
s_lshr_b32 s{T2}, s{T0}, 4              ; Fgb
v_lshrrev_b32 v11, 5, v2
v_bfe_u32 v14, v2, 1, 4
s_and_b32 s{T3}, s{sWAVE}, 1
s_lshl_b32 s{T3}, s{T3}, 2
v_or_b32 v15, s{T3}, v11
v_xor_b32 v14, v14, v15               ; i' even
v_xor_b32 v15, 2, v14                 ; i' odd
v_mul_u32_u24 v11, 2752, v11
v_and_b32 v16, 1, v2
v_lshl_add_u32 v11, v16, 4, v11
s_mul_i32 s{T3}, s{T1}, {32*2752}
s_mul_i32 s{T4}, s{sWAVE}, {8*2752}
s_add_u32 s{T3}, s{T3}, s{T4}
s_lshl_b32 s{T4}, s{T2}, 9
s_add_u32 s{T3}, s{T3}, s{T4}
v_add_u32 v11, s{T3}, v11
v_lshl_add_u32 v{PS}, v14, 5, v11
v_lshl_add_u32 v{PS+1}, v15, 5, v11
s_movk_i32 s44, 5504
v_and_b32 v14, 1, v4
v_lshl_or_b32 v14, v14, 2, v9
v_lshl_add_u32 v15, v4, 3, v9
v_lshlrev_b32 v15, 9, v15
v_lshl_add_u32 v15, v10, 3, v15
v_add_u32 v15, {PKT}, v15
s_lshl_b32 s{T3}, s{sWAVE}, 2
v_xor_b32 v14, s{T3}, v14""")
for u in range(4):
    A(f"""v_xor_b32 v16, {u}, v14
    v_lshl_add_u32 v{PA+u}, v16, 5, v15
    v_add_u32 v{PA+4+u}, 2048, v{PA+u}""")
A(f"""s_lshl_b32 s{T2}, s{T2}, 2
s_add_u32 s{T2}, s{T2}, s{sWAVE}        ; Fg
s_lshl_b32 s{T3}, s{T2}, 16
s_lshl_b32 s{T4}, s{T1}, 10
s_add_u32 s{T3}, s{T3}, s{T4}
s_add_u32 s{T3}, s{T3}, {W1P}
s_cmp_ge_u32 s{T2}, 22
s_cselect_b32 s{T3}, {OOB}, s{T3}
v_add_u32 v{PD}, s{T3}, v{PD}
s_movk_i32 s45, 16384
s_cmp_eq_u32 s{T2}, 21
s_cselect_b32 s46, {OOB}, 0
s_branch pk_go
pk_w2:""")
A.srd(SPK, 82, SZ_W)
A(f"""s_sub_u32 s{T1}, s2, 170                ; F
v_bfe_u32 v14, v2, 2, 2
v_xor_b32 v14, v14, v4
v_lshlrev_b32 v11, 10, v4
v_lshl_add_u32 v11, v14, 6, v11
v_lshl_add_u32 v11, v10, 4, v11
s_lshl_b32 s{T3}, s{T1}, 14
s_lshl_b32 s{T4}, s{sWAVE}, 8
s_add_u32 s{T3}, s{T3}, s{T4}
s_cmp_ge_u32 s{T1}, 86
s_cselect_b32 s{T3}, {OOB}, s{T3}
v_add_u32 v{PS}, s{T3}, v11
v_mov_b32 v{PS+1}, v{PS}
s_movk_i32 s44, 4096
v_lshrrev_b32 v14, 1, v4
v_lshl_add_u32 v14, v14, 3, v9
v_lshlrev_b32 v14, 8, v14
v_and_b32 v15, 1, v4
v_lshl_add_u32 v14, v15, 5, v14
v_lshl_add_u32 v14, v10, 3, v14
s_lshl_b32 s{T3}, s{sWAVE}, 12
s_add_u32 s{T3}, s{T3}, {PKT}
v_add_u32 v14, s{T3}, v14""")
for u in range(4):
    A(f"""v_xor_b32 v16, {u}, v9
    v_lshl_add_u32 v{PA+u}, v16, 6, v14
    v_add_u32 v{PA+4+u}, 1024, v{PA+u}""")
A(f"""s_mul_i32 s{T3}, s{sWAVE}, {4*86*1024}
s_lshl_b32 s{T4}, s{T1}, 10
s_add_u32 s{T3}, s{T3}, s{T4}
s_add_u32 s{T3}, s{T3}, {W2P}
s_cmp_ge_u32 s{T1}, 86
s_cselect_b32 s{T3}, {OOB}, s{T3}
v_add_u32 v{PD}, s{T3}, v{PD}
s_mov_b32 s45, {86*1024}
s_mov_b32 s46, 0
pk_go:
s_lshl_b32 s{T4}, s{sWAVE}, 12
s_mov_b32 s47, 0""")
for i in range(4):
    A(f"s_add_u32 s{T0}, s{T4}, {PKT + 1024*i}\ns_mov_b32 m0, s{T0}\ns_nop 0")
    vm.op(f"buffer_load_dwordx4 v{PS+(i&1)}, s[{SPK}:{SPK+3}], s47 offen lds", "pk")
    if i < 3: A(f"s_add_u32 s47, s47, s44")
A(f"""v_lshlrev_b32 v5, 10, v13
v_lshl_add_u32 v5, v12, 2, v5
v_add_u32 v6, {KT + 5*128 + 1024}, v5
v_add_u32 v5, {KT + 5*128}, v5
v_subrev_u32 v7, {KT + 5*128 - VT}, v5
v_add_u32 v8, {QT - VT}, v7
v_and_b32 v9, 7, v12
v_sub_u32 v10, 7, v13
v_xor_b32 v10, v10, v9
v_lshlrev_b32 v14, 8, v12
v_lshl_add_u32 v15, v10, 4, v14
v_add_u32 v15, {US}, v15
v_lshlrev_b32 v10, 1, v13
v_xor_b32 v10, v10, v9
v_lshl_add_u32 v16, v10, 4, v14
v_add_u32 v16, {QS}, v16
v_xor_b32 v17, 16, v16
v_lshrrev_b32 v9, 3, v0               ; ch
v_and_b32 v10, 7, v0
v_bfe_u32 v11, v0, 4, 3
v_xor_b32 v11, v11, v10
v_lshlrev_b32 v18, 7, v9
v_lshl_add_u32 v18, v11, 4, v18
v_add_u32 v18, {US}, v18
v_lshlrev_b32 v19, 12, v9
v_lshl_add_u32 v19, v10, 4, v19
s_lshl_b32 s{T0}, s{sXG}, 18
s_lshl_b32 s{T1}, s{sJ}, 7
s_sub_u32 s{T0}, s{T0}, s{T1}
s_add_u32 s{T0}, s{T0}, 3968
v_add_u32 v19, s{T0}, v19
v_lshrrev_b32 v9, 4, v0
v_and_b32 v11, 7, v9
v_xor_b32 v11, v11, v3
v_lshlrev_b32 v20, 8, v9
v_lshl_add_u32 v20, v11, 4, v20
v_add_u32 v20, {QS}, v20
v_lshlrev_b32 v21, 13, v9
v_lshl_add_u32 v21, v3, 4, v21
s_lshl_b32 s{T0}, s{sXG}, 18
s_lshl_b32 s{T1}, s{sJ}, 8
s_add_u32 s{T0}, s{T0}, s{T1}
s_add_u32 s{T0}, s{T0}, {QP}
v_add_u32 v21, s{T0}, v21""")
stamp("issued")
vm.wait("k")
A("s_barrier")
stamp("kvq in lds")
KR, VR, QR = 144, 156, 164
for j in range(0, 8, 2):
    A(f"ds_read2_b32 v[{KR+j}:{KR+j+1}], v5 offset0:{32*j} offset1:{32*j+32}")
A(f"ds_read2_b32 v[{KR+8}:{KR+9}], v6 offset0:0 offset1:32\nds_read_b32 v{KR+10}, v6 offset:256")
for j in range(0, 8, 2):
    A(f"ds_read2_b32 v[{VR+j}:{VR+j+1}], v7 offset0:{32*j} offset1:{32*j+32}")
for j in range(0, 8, 2):
    A(f"ds_read2_b32 v[{QR+j}:{QR+j+1}], v8 offset0:{32*j} offset1:{32*j+32}")
WF, KFF, O = 100, 108, 172
KV = [180 + 2 * r for r in range(8)]
A(f"""v_lshlrev_b32 v{WF+0}, 16, v{W+0}
v_lshlrev_b32 v{WF+1}, 16, v{W+2}
v_and_b32 v{WF+2}, 0xffff0000, v{W+0}
v_and_b32 v{WF+3}, 0xffff0000, v{W+2}
v_lshlrev_b32 v{WF+4}, 16, v{W+1}
v_lshlrev_b32 v{WF+5}, 16, v{W+3}
v_and_b32 v{WF+6}, 0xffff0000, v{W+1}
v_and_b32 v{WF+7}, 0xffff0000, v{W+3}
s_waitcnt lgkmcnt(8)""")
for j in range(11):
    A(f"v_lshlrev_b32 v{KFF+2*j}, 16, v{KR+j}\nv_and_b32 v{KFF+2*j+1}, 0xffff0000, v{KR+j}")
A(f"""s_waitcnt lgkmcnt(0)
ds_write_b128 v16, v[{QR}:{QR+3}]
ds_write_b128 v17, v[{QR+4}:{QR+7}]""")
for r in range(8):
    A(f"v_pk_mul_f32 v[{KV[r]}:{KV[r]+1}], v[{KFF+2*r}:{KFF+2*r+1}], v[{WF+6}:{WF+7}]")
for t in range(1, 4):
    for r in range(8):
        A(f"v_pk_fma_f32 v[{KV[r]}:{KV[r]+1}], v[{KFF+2*(r+t)}:{KFF+2*(r+t)+1}], v[{WF+2*(3-t)}:{WF+2*(3-t)+1}], v[{KV[r]}:{KV[r]+1}]")
for r in range(8):
    A(f"v_lshlrev_b32 v{KFF+2*r}, 16, v{VR+r}\nv_and_b32 v{KFF+2*r+1}, 0xffff0000, v{VR+r}")
for r in range(8):
    A(f"v_pk_mul_f32 v[{KV[r]}:{KV[r]+1}], v[{KV[r]}:{KV[r]+1}], v[{KFF+2*r}:{KFF+2*r+1}]")
for e in range(2):
    for j in range(4):
        A(f"v_cvt_pk_bf16_f32 v{O+4*e+j}, v{KV[7-2*j]+e}, v{KV[6-2*j]+e}")
    A(f"ds_write_b128 v15, v[{O+4*e}:{O+4*e+3}] offset:{128*e}")
A(f"""s_mov_b32 s{T1}, 131072
s_waitcnt lgkmcnt(0)
s_barrier
ds_read_b128 v[144:147], v18
ds_read_b128 v[148:151], v18 offset:4096
ds_read_b128 v[152:155], v20
ds_read_b128 v[156:159], v20 offset:4096
s_waitcnt lgkmcnt(3)""")
vm.op(f"buffer_store_dwordx4 v[144:147], v19, {W4}, 0 offen sc1", "st1")
A("s_waitcnt lgkmcnt(2)")
vm.op(f"buffer_store_dwordx4 v[148:151], v19, {W4}, s{T1} offen sc1", "st1")
A("s_waitcnt lgkmcnt(1)")
vm.op(f"buffer_store_dwordx4 v[152:155], v21, {W4}, 0 offen sc1", "st1")
A("s_waitcnt lgkmcnt(0)")
vm.op(f"buffer_store_dwordx4 v[156:159], v21, {W4}, s{T1} offen sc1", "st1")
stamp("st1 issued")
vm.wait("kf", "D")
A(f"""v_lshlrev_b32 v9, 4, v0
v_mov_b32 v120, 0
v_mov_b32 v121, 0
v_mov_b32 v122, 0
v_mov_b32 v123, 0
ds_write_b128 v9, v[{KF0}:{KF0+3}] offset:{L_KF + 32}
ds_write_b128 v9, v[{KF0+4}:{KF0+7}] offset:{L_KF + KFSZ + 32}
v_mul_u32_u24 v22, {OSZ}, v4
v_lshl_add_u32 v22, v3, 4, v22
v_lshrrev_b32 v10, 1, v2
v_and_b32 v10, 3, v10
v_mul_u32_u24 v10, 4128, v10
v_and_b32 v11, 1, v2
v_lshl_add_u32 v10, v11, 4, v10
ds_write_b128 v22, v[120:123] offset:{L_U + 2048}
ds_write_b128 v10, v[120:123] offset:{L_KF}""")
vm.wait("c")
A(f"""v_lshlrev_b32 v{CC+2}, 16, v{CC+1}
v_and_b32 v{CC+3}, 0xffff0000, v{CC+1}
v_and_b32 v{CC+1}, 0xffff0000, v{CC}
v_lshlrev_b32 v{CC}, 16, v{CC}""")
for i in range(4): A(f"v_mul_f32 v{100+i}, 0xbfb8aa3b, v{CC+i}")
for i in range(4): A(f"v_exp_f32 v{100+i}, v{100+i}")
for i in range(4): A(f"v_add_f32 v{100+i}, 1.0, v{100+i}")
for i in range(4): A(f"v_rcp_f32 v{100+i}, v{100+i}")
for i in range(4): A(f"v_mul_f32 v{CC+i}, v{CC+i}, v{100+i}")
for i in range(0, 4, 2):
    A(f"""v_cvt_pk_bf16_f32 v100, v{CC+i}, v{CC+i+1}
    v_lshlrev_b32 v{CC+i}, 16, v100
    v_and_b32 v{CC+i+1}, 0xffff0000, v100""")
MA = 104
vm.wait("wm")
for i in range(4):
    for j in range(4):
        t = 112 + 2 * (j % 2)
        A(f"v_lshlrev_b32 v{t}, 16, v{WM+4*i+j}\nv_and_b32 v{t+1}, 0xffff0000, v{WM+4*i+j}")
        if i == 0:
            A(f"v_pk_mul_f32 v[{MA+2*j}:{MA+2*j+1}], v[{t}:{t+1}], v[{CC}:{CC+1}] op_sel_hi:[1,0]")
        else:
            sel = "op_sel_hi:[1,0,1]" if i % 2 == 0 else "op_sel:[0,1,0] op_sel_hi:[1,1,1]"
            A(f"v_pk_fma_f32 v[{MA+2*j}:{MA+2*j+1}], v[{t}:{t+1}], v[{CC+(i//2)*2}:{CC+(i//2)*2+1}], v[{MA+2*j}:{MA+2*j+1}] {sel}")
A(f"""v_lshrrev_b32 v11, 4, v0
v_lshlrev_b32 v11, 8, v11
v_and_b32 v10, 7, v0
v_lshl_add_u32 v11, v10, 5, v11""")
for j in range(8):
    A(f"v_add_f32_dpp v{MA+j}, v{MA+j}, v{MA+j} row_shr:8 row_mask:0xf bank_mask:0xf bound_ctrl:0")
A(f"""v_cmp_le_u32 vcc, 8, v3
s_and_saveexec_b64 s[{SX}:{SX+1}], vcc
ds_write_b128 v11, v[{MA}:{MA+3}] offset:{L_MODP}
ds_write_b128 v11, v[{MA+4}:{MA+7}] offset:{L_MODP+16}
s_mov_b64 exec, s[{SX}:{SX+1}]""")
vm.wait("st1", extra="lgkmcnt(0)")
A(f"s_add_u32 s{sEP}, s{sEP}, 0x9e3779b9\ns_barrier")
set_flag(0, F1A, f"s_lshl_b32 s{T0}, s{sXG}, 5\ns_add_u32 s{T0}, s{T0}, s{sJ}", 10, 11)
stamp("flag1a")
PKR = 144
for u in range(4):
    A(f"ds_read_b64_tr_b16 v[{PKR+4*u}:{PKR+4*u+1}], v{PA+u}\nds_read_b64_tr_b16 v[{PKR+4*u+2}:{PKR+4*u+3}], v{PA+4+u}")
KFM = 56
A(f"""ds_read_b32 v{KFM}, v9 offset:{L_KF + 28}
ds_read_b32 v{KFM+1}, v9 offset:{L_KF + KFSZ + 28}
s_mov_b32 s47, 0""")
for u in range(4):
    A(f"s_waitcnt lgkmcnt({8-2*u})")
    vm.op(f"buffer_store_dwordx4 v[{PKR+4*u}:{PKR+4*u+3}], v{PD}, {W4}, s47 offen sc1", "st1b")
    if u < 3:
        A(f"s_add_u32 s47, s47, s45")
        if u == 1: A(f"s_add_u32 s47, s47, s46")
A(f"""s_cmp_lg_u32 s{sWAVE}, 1
s_cbranch_scc1 modf_done
v_lshlrev_b32 v11, 2, v2""")
for p in range(16):
    A(f"ds_read_b32 v{160+p}, v11 offset:{L_MODP+256*p}")
A("s_waitcnt lgkmcnt(0)")
for st in (8, 4, 2, 1):
    for p in range(st):
        A(f"v_add_f32 v{160+p}, v{160+p}, v{160+p+st}")
A(f"""v_add_u32 v10, s{sM}, v11
buffer_store_dword v160, v10, {W4}, 0 offen sc1
modf_done:""")
SA = 100
for i in range(4): A(f"v_mov_b32 v{SA+i}, 0")
for j in range(4):
    for rr in range(2):
        A(f"""v_dot2_f32_bf16 v{SA+2*rr}, v{SR+4*rr+j}, s{sONES}, v{SA+2*rr}
        v_dot2_f32_bf16 v{SA+2*rr+1}, v{SR+4*rr+j}, v{SR+4*rr+j}, v{SA+2*rr+1}""")
A("s_waitcnt lgkmcnt(0)")
for c in range(2):
    o = 124 + 4 * c
    A(f"v_alignbit_b32 v{o}, v{KF0+4*c}, v{KFM+c}, 16")
    for j in range(1, 4):
        A(f"v_alignbit_b32 v{o+j}, v{KF0+4*c+j}, v{KF0+4*c+j-1}, 16")
    A(f"ds_write_b128 v9, v[{o}:{o+3}] offset:{L_KF + c*KFSZ + 4128 + 32}")
for ctrl in ("row_shr:1", "row_shr:2", "row_shr:4", "row_shr:8"):
    for j in range(4):
        A(f"v_add_f32_dpp v{SA+j}, v{SA+j}, v{SA+j} {ctrl} row_mask:0xf bank_mask:0xf bound_ctrl:0")
for j in range(4):
    A(f"v_add_f32_dpp v{SA+j}, v{SA+j}, v{SA+j} row_bcast:15 row_mask:0xa bank_mask:0xf")
for j in range(4):
    A(f"v_add_f32_dpp v{SA+j}, v{SA+j}, v{SA+j} row_bcast:31 row_mask:0xc bank_mask:0xf")
a_ = capture(lambda: ln_final(SA, SA + 1, 104, 105)); b_ = capture(lambda: ln_final(SA + 2, SA + 3, 106, 107))
for x, y in zip(a_, b_):
    A(x)
    if y != "s_nop 0": A(y)
A(f"""s_lshl_b32 s{T0}, s2, 6
s_lshl_b32 s{T1}, s{sWAVE}, 4
s_add_u32 s{T0}, s{T0}, s{T1}
s_add_u32 s{T0}, s{T0}, {ST1}
v_mov_b32 v9, s{T0}
s_mov_b32 s{SX}, 0
s_mov_b32 s{SX+1}, 0x80000000
s_mov_b64 exec, s[{SX}:{SX+1}]""")
vm.op(f"buffer_store_dwordx4 v[104:107], v9, {W4}, 0 offen sc1", "st1b")
A("s_mov_b64 exec, -1")
stamp("p1b stores issued")
sCH, sHF = 44, 45
A.srd(SM1, 80, F * 2); A.srd(SM2, 84, 1024)
A(f"""s_lshr_b32 s{sCH}, s{sWAVE}, 1
s_and_b32 s{sHF}, s{sWAVE}, 1
v_min_u32 v12, 31, v2
v_lshlrev_b32 v12, 6, v12
s_lshl_b32 s{T0}, s{sXG}, 11
s_add_u32 s{T0}, s{T0}, {F1A}
v_add_u32 v12, s{T0}, v12
v_lshlrev_b32 v13, 6, v2
v_lshlrev_b32 v5, 4, v0
s_lshl_b32 s{T0}, s{sD0}, 12
v_add_u32 v5, s{T0}, v5
v_add_u32 v6, 4096, v5
v_and_b32 v7, 1, v0
v_mul_u32_u24 v7, {OSZ}, v7
v_lshrrev_b32 v8, 1, v0
v_lshl_add_u32 v7, v8, 4, v7
v_lshlrev_b32 v15, 1, v4
v_sub_u32 v15, v15, v3
v_lshlrev_b32 v15, 4, v15
s_mul_i32 s{T0}, s{sCH}, {USZ}
s_lshl_b32 s{T1}, s{sHF}, 7
s_add_u32 s{T0}, s{T0}, s{T1}
s_add_u32 s{T0}, s{T0}, {L_U + 240}
v_add_u32 v15, s{T0}, v15
v_and_b32 v8, 1, v3
v_mul_u32_u24 v8, 4130, v8
v_lshlrev_b32 v16, 6, v4
v_lshl_add_u32 v16, v3, 1, v16
v_sub_u32 v16, v16, v8
s_mul_i32 s{T0}, s{sCH}, {KFSZ}
s_lshl_b32 s{T1}, s{sHF}, 8
s_add_u32 s{T0}, s{T0}, s{T1}
s_add_u32 s{T0}, s{T0}, {L_KF + 4132}
v_add_u32 v16, s{T0}, v16
v_add_u32 v17, 1024, v16
v_add_u32 v18, 2048, v16
v_add_u32 v19, 3072, v16
v_lshlrev_b32 v20, 16, v{DD}
v_and_b32 v21, 0xffff0000, v{DD}
v_lshlrev_b32 v8, 6, v3
v_lshl_add_u32 v8, v4, 4, v8          ; 64a' + 16g
s_lshl_b32 s{T0}, s{sD0}, 12
s_lshl_b32 s{T1}, s{sWAVE}, 11
s_add_u32 s{T0}, s{T0}, s{T1}
v_add_u32 v14, s{T0}, v8
v_lshlrev_b32 v63, 1, v8
s_lshl_b32 s{T0}, s{sWAVE}, 12
s_add_u32 s{T0}, s{T0}, {ST1}
v_add_u32 v63, s{T0}, v63
v_lshrrev_b32 v9, 2, v3
v_cmp_eq_u32 vcc, 3, v9
v_lshlrev_b32 v23, 11, v9
v_and_b32 v10, 3, v3
v_cndmask_b32 v11, 0, 1, vcc
v_lshl_add_u32 v23, v11, 11, v23
v_mul_u32_u24 v10, 12288, v10
s_lshl_b32 s{T0}, s{sD0}, 2
s_add_u32 s{T0}, s{T0}, {MODF}
v_add3_u32 v23, v23, v10, s{T0}
v_and_b32 v9, 1, v9
v_cvt_f32_u32 v62, v9
v_lshlrev_b32 v10, 4, v2
s_mul_i32 s{T0}, s{sFG}, 11
s_add_u32 s46, s{T0}, s{sWAVE}         ; F0
s_lshl_b32 s{T0}, s46, 14
s_add_u32 s{T0}, s{T0}, {W1P}
v_add_u32 v248, s{T0}, v10
v_add_u32 v249, 0x10000, v248
v_add_u32 v250, 0x20000, v248
s_add_u32 s{T0}, s46, 8
s_cmp_ge_u32 s{T0}, 86
s_cselect_b32 s47, {OOB}, 0
s_cmp_eq_u32 s{sWAVE}, 3
s_cselect_b32 s47, {OOB}, s47
v_add_u32 v250, s47, v250
""")
vm.wait("st1b", extra="lgkmcnt(0)")
A("s_barrier")
set_flag(1, F1B, f"s_mov_b32 s{T0}, s2", 10, 11, pre="s_waitcnt vmcnt(0)")
stamp("flag1b")
ACC = 24
AB = [64, 96]; BB_ = [144, 176]
UL, QE, SE, ME = 208, 216, 224, 240
def aload(o, st):
    for q in range(8):
        r = AB[st] + 4 * q; base = 128 * (q & 1) + 4 * o
        A(f"ds_read2_b32 v[{r}:{r+1}], v{16+(q>>1)} offset0:{base} offset1:{base+1}")
        A(f"ds_read2_b32 v[{r+2}:{r+3}], v{16+(q>>1)} offset0:{base+2} offset1:{base+3}")
def bload(o, st):
    for dl in range(8):
        r = BB_[st] + 4 * dl
        A(f"ds_read_b128 v[{r}:{r+3}], v15 offset:{(o&1)*OSZ + 16*(112-16*dl+(o>>1))}")
aload(0, 0)
for i in range(32): A(f"v_mov_b32 v{ACC+i}, 0")
poll(12, 1, 0, 22, "p1a")
A("s_barrier")
stamp("poll1a done")
vm.op(f"buffer_load_dwordx4 v[{UL}:{UL+3}], v5, {W4}, 0 offen sc1", "u")
vm.op(f"buffer_load_dwordx4 v[{UL+4}:{UL+7}], v6, {W4}, 0 offen sc1", "u")
A(f"s_mov_b32 s{T2}, {QP}")
for jn in range(2):
    vm.op(f"buffer_load_dwordx4 v[{QE+4*jn}:{QE+4*jn+3}], v14, {W4}, s{T2} offen offset:{1024*jn} sc1", "qe")
for k in range(4):
    A(f"s_mov_b32 s{T1}, {F1B + 4096*k}")
    vm.op(f"buffer_load_dword v{56+k}, v13, {W4}, s{T1} offen sc1", "f1b")
sal = []
sal += [f"s_lshr_b32 s{T4}, s{sJ}, 3", f"s_lshl_b32 s{sROT1}, s{T4}, 1", f"s_add_u32 s{sROT1}, s{sROT1}, s{sFG}",
        f"s_lshl_b32 s{sROT1}, s{sROT1}, 1", f"s_and_b32 s{sROT1}, s{sROT1}, 15"]
for t in range(16):
    sal += [f"s_add_u32 s{ROT1[t]}, s{sROT1}, {t}", f"s_and_b32 s{ROT1[t]}, s{ROT1[t]}, 15", f"s_lshl_b32 s{ROT1[t]}, s{ROT1[t]}, 10"]
sal += [f"s_mul_i32 s{T4}, s{T4}, 11", f"s_lshr_b32 s{T4}, s{T4}, 1", f"s_mul_i32 s{T5}, s{sFG}, 3", f"s_add_u32 s{T4}, s{T4}, s{T5}",
        f"s_cmp_ge_u32 s{sWAVE}, 2", f"s_cselect_b32 s{T5}, 21, 99",
        f"s_cmp_ge_u32 s{T4}, 22", f"s_cselect_b32 s15, 22, 0", f"s_sub_u32 s{T4}, s{T4}, s15"]
for i in range(22):
    r = ROT2[i]
    sal += [(f"s_lshl_b32 s{r}, s{T4}, 12", f"s_cmp_eq_u32 s{T4}, s{T5}", f"s_cselect_b32 s{r}, {OOB}, s{r}"),
            (f"s_add_u32 s{T4}, s{T4}, 1", f"s_cmp_eq_u32 s{T4}, 22", f"s_cselect_b32 s{T4}, 0, s{T4}")]
vm.wait("u")
A(f"""ds_write_b128 v7, v[{UL}:{UL+3}] offset:{L_U}
ds_write_b128 v7, v[{UL+4}:{UL+7}] offset:{L_U+USZ}
s_waitcnt lgkmcnt(0)
s_barrier""")
bload(0, 0)
stamp("u in lds")
w1q = [(t, j) for t in range(16) for j in range(3)]
def w1_issue(n):
    for _ in range(n):
        if not w1q: return
        t, j = w1q.pop(0)
        vm.op(f"buffer_load_dwordx4 a[{(t*3+j)*4}:{(t*3+j)*4+3}], v{248+j}, {W4}, s{ROT1[t]} offen sc1", f"w1_{t}")
def me_final():
    vm.wait("me")
    for sh in (1, 2):
        A("s_nop 1")
        for k in range(2):
            A(f"v_add_f32_dpp v{UL+k}, v{UL+k}, v{UL+k} row_shr:{sh} row_mask:0xf bank_mask:0xf bound_ctrl:0")
    A(f"""v_cvt_pk_bf16_f32 v{UL+2}, v{UL}, v{UL+1}
    v_lshlrev_b32 v{UL}, 16, v{UL+2}
    v_and_b32 v{UL+1}, 0xffff0000, v{UL+2}
    v_add_f32 v{UL}, v{UL}, v62
    v_add_f32 v{UL+1}, v{UL+1}, v62
    v_cvt_pk_bf16_f32 v{UL+2}, v{UL}, v{UL+1}
    v_lshlrev_b32 v{UL}, 16, v{UL+2}
    v_and_b32 v{UL+1}, 0xffff0000, v{UL+2}
    s_nop 1""")
    for i in range(4):
        for k in range(2):
            A(f"v_mov_b32_dpp v{ME+2*i+k}, v{UL+k} row_newbcast:{4*i+3} row_mask:0xf bank_mask:0xf")
for o in range(4):
    st = o & 1
    A("s_waitcnt lgkmcnt(0)")
    if o + 1 < 4:
        aload(o + 1, st ^ 1); bload(o + 1, st ^ 1)
    side = []; cnt = 0
    if o == 3: side = capture(me_final)
    for dl in range(8):
        for q in range(8 - dl):
            n = q + dl
            A(f"v_mfma_f32_16x16x32_bf16 v[{ACC+4*n}:{ACC+4*n+3}], v[{AB[st]+4*q}:{AB[st]+4*q+3}], v[{BB_[st]+4*dl}:{BB_[st]+4*dl+3}], v[{ACC+4*n}:{ACC+4*n+3}]")
            cnt += 1
            if o >= 1 and cnt % P("W1_EVERY", 4) == 0: w1_issue(1)
            if o in (0, 1, 2):
                for _ in range(2):
                    if sal:
                        x = sal.pop(0)
                        A(x if isinstance(x, str) else "\n".join(x))
            if side: A(side.pop(0))
    for x in side: A(x)
    if o == 0:
        vm.wait("f1b")
        A(f"""v_xor_b32 v56, s{sEP}, v56
        v_xor_b32 v57, s{sEP}, v57
        v_xor_b32 v58, s{sEP}, v58
        v_xor_b32 v59, s{sEP}, v59
        v_or3_b32 v56, v56, v57, v58
        v_or_b32 v56, v56, v59
        v_cmp_ne_u32 vcc, 0, v56
        s_nop 1
        s_cbranch_vccz p1b_done
        v_add_u32 v22, {F1B}, v13""")
        poll(22, 4, 4096, 56, "p1b", only_wave0=False)
        vm.op(f"buffer_load_dwordx2 v[{UL}:{UL+1}], v23, {W4}, 0 offen sc1", "me")
        for jn in range(2):
            for hh in range(2):
                vm.op(f"buffer_load_dwordx4 v[{SE+8*jn+4*hh}:{SE+8*jn+4*hh+3}], v63, {W4}, 0 offen offset:{2048*jn+16*hh} sc1", "se")
        stamp("flag1b all seen")
assert not sal
stamp("conv mfma done")
A(f"""v_lshlrev_b32 v9, 4, v2
s_lshl_b32 s{T0}, s{sWAVE}, 13
s_add_u32 s{T0}, s{T0}, {L_RED}
v_add_u32 v10, s{T0}, v9
s_lshl_b32 s{T0}, s{sWAVE}, 11
s_add_u32 s{T0}, s{T0}, {L_RED}
v_add_u32 v11, s{T0}, v9
v_lshrrev_b32 v5, 1, v4
v_sub_u32 v5, 1, v5
v_mul_u32_u24 v5, {OSZ}, v5
v_lshlrev_b32 v6, 4, v3
v_sub_u32 v5, v5, v6
v_and_b32 v6, 1, v4
v_lshlrev_b32 v6, 3, v6
v_sub_u32 v5, v5, v6
s_lshl_b32 s{T0}, s{sWAVE}, 9
s_sub_u32 s{T0}, {L_U + 16*(127-16) + 8}, s{T0}
v_add_u32 v5, s{T0}, v5""")
for n in range(8):
    A(f"ds_write_b128 v10, v[{ACC+4*n}:{ACC+4*n+3}] offset:{1024*n}")
UE = 128
for jn in range(2):
    for c in range(2):
        A(f"ds_read_b64 v[{UE+4*jn+2*c}:{UE+4*jn+2*c+1}], v5 offset:{256*(1-jn) + c*USZ}")
A("s_waitcnt lgkmcnt(0)\ns_barrier")
RR = 64
for jn in range(2):
    for src in range(4):
        r = RR + 16 * jn + 4 * src
        A(f"ds_read_b128 v[{r}:{r+3}], v11 offset:{8192*src + 1024*jn}")
vm.wait("qe", "se", "me")
XO, XS = 112, 120
SAp, C1p, GAp, C2p = ME, ME + 2, ME + 4, ME + 6
A(f"s_mov_b32 s{T2}, {X1S}\ns_mov_b32 s{T3}, {X1P}")
for jn in range(2):
    A(f"s_waitcnt lgkmcnt({4*(1-jn)})")
    seqs = []
    for r in range(4):
        Y, QF, QC, H, X = [24 + 10 * r + 2 * k for k in range(5)]
        b = RR + 16 * jn
        dw = 1 if r < 2 else 0
        sq = []
        for c in range(2):
            src = UE + 4 * jn + 2 * c + dw
            sq.append(f"v_and_b32 v{X+c}, 0xffff0000, v{src}" if r % 2 == 0 else f"v_lshlrev_b32 v{X+c}, 16, v{src}")
        st = SE + 8 * jn + 2 * r
        sq += f"""v_add_f32 v{Y}, v{b+r}, v{b+4+r}
        v_add_f32 v{Y+1}, v{b+8+r}, v{b+12+r}
        v_lshlrev_b32 v{QF}, 16, v{QE+4*jn+r}
        v_and_b32 v{QF+1}, 0xffff0000, v{QE+4*jn+r}
        v_pk_fma_f32 v[{Y}:{Y+1}], v[{X}:{X+1}], v[20:21], v[{Y}:{Y+1}]
        v_pk_add_f32 v[{QC}:{QC+1}], v[{QF}:{QF+1}], v[{st}:{st+1}] op_sel:[0,1] op_sel_hi:[1,1] neg_lo:[0,1] neg_hi:[0,1]
        v_pk_mul_f32 v[{H}:{H+1}], v[{QC}:{QC+1}], v[{st}:{st+1}] op_sel_hi:[1,0]
        v_pk_fma_f32 v[{H}:{H+1}], v[{H}:{H+1}], v[{C1p}:{C1p+1}], v[{SAp}:{SAp+1}]
        v_pk_mul_f32 v[{H}:{H+1}], v[{H}:{H+1}], v[{Y}:{Y+1}]
        v_pk_fma_f32 v[{QC}:{QC+1}], v[{H}:{H+1}], v[{GAp}:{GAp+1}], v[{QC}:{QC+1}]
        v_pk_fma_f32 v[{QF}:{QF+1}], v[{H}:{H+1}], v[{GAp}:{GAp+1}], v[{QF}:{QF+1}]
        v_pk_mul_f32 v[{QC}:{QC+1}], v[{QC}:{QC+1}], v[{C2p}:{C2p+1}]
        v_cvt_pk_bf16_f32 v{XO+4*jn+r}, v{QF}, v{QF+1}
        v_cvt_pk_bf16_f32 v{XS+4*jn+r}, v{QC}, v{QC+1}""".split("\n")
        seqs.append(sq)
    for grp in zip(*seqs):
        for x in grp: A(x)
    vm.op(f"buffer_store_dwordx4 v[{XS+4*jn}:{XS+4*jn+3}], v14, {W4}, s{T2} offen offset:{1024*jn} sc1", "st2")
    vm.op(f"buffer_store_dwordx4 v[{XO+4*jn}:{XO+4*jn+3}], v14, {W4}, s{T3} offen offset:{1024*jn} sc1", "st2")
stamp("st2 issued")
vm.wait("st2")
A("s_barrier")
set_flag(0, F2, f"s_mov_b32 s{T0}, s2", 10, 11)
stamp("flag2")
TP = 144
A(f"""v_lshlrev_b32 v9, 3, v0
v_add_u32 v9, {MODF + 3*2048}, v9
v_lshlrev_b32 v11, 3, v4
s_lshl_b32 s{T0}, s46, 5
v_add_u32 v11, s{T0}, v11
v_lshlrev_b32 v15, 3, v2
s_lshl_b32 s{T0}, s{sR}, 9
s_add_u32 s{T0}, s{T0}, {ST1 + 4}
v_add_u32 v15, s{T0}, v15""")
for ks in range(4):
    A(f"s_mov_b32 s{T1}, {12288*ks}\ns_mov_b32 s{T0}, {12288*ks+4096}")
    for sec in range(3):
        so, off = (T1, 2048 * sec) if sec < 2 else (T0, 0)
        vm.op(f"buffer_load_dwordx2 v[{TP+8*sec+2*ks}:{TP+8*sec+2*ks+1}], v9, {W4}, s{so} offen offset:{off} sc1", "tp")
B1R, M1R = 208, 140
for j in range(3):
    vm.op(f"buffer_load_dwordx2 v[{B1R+2*j}:{B1R+2*j+1}], v11, s[{SM1}:{SM1+3}], 0 offen offset:{128*j}", "b1")
vm.op(f"buffer_load_dword v{M1R}, v15, {W4}, 0 offen sc1", "m1")
w1_issue(99)
vm.wait("tp")
for sec in range(3):
    b = TP + 8 * sec
    A(f"""v_pk_add_f32 v[{b}:{b+1}], v[{b}:{b+1}], v[{b+2}:{b+3}]
    v_pk_add_f32 v[{b+4}:{b+5}], v[{b+4}:{b+5}], v[{b+6}:{b+7}]""")
for sec in range(3):
    b = TP + 8 * sec
    A(f"""v_pk_add_f32 v[{b}:{b+1}], v[{b}:{b+1}], v[{b+4}:{b+5}]
    v_cvt_pk_bf16_f32 v{b+2}, v{b}, v{b+1}""")
A(f"""v_lshlrev_b32 v{TP+8}, 16, v{TP+10}
v_and_b32 v{TP+9}, 0xffff0000, v{TP+10}
v_lshlrev_b32 v{TP+16}, 16, v{TP+18}
v_and_b32 v{TP+17}, 0xffff0000, v{TP+18}
v_add_f32 v{TP+8}, 1.0, v{TP+8}
v_add_f32 v{TP+9}, 1.0, v{TP+9}
v_cvt_pk_bf16_f32 v{TP+10}, v{TP+8}, v{TP+9}
v_lshlrev_b32 v9, 2, v0
v_lshlrev_b32 v10, 3, v0
ds_write_b32 v9, v{TP+2} offset:{L_TB}
ds_write_b32 v9, v{TP+2} offset:{L_TB+1024}
ds_write_b32 v9, v{TP+10} offset:{L_TC2}
ds_write_b32 v9, v{TP+10} offset:{L_TC2+1024}
ds_write_b64 v10, v[{TP+16}:{TP+17}] offset:{L_TGB}
v_and_b32 v9, 1, v3
v_mul_u32_u24 v9, {L_TC2-L_TB}, v9
v_lshl_add_u32 v9, v4, 4, v9
s_lshl_b32 s{T0}, s{sROT1}, 6
s_add_u32 s{T0}, s{T0}, {L_TB}
v_add_u32 v9, s{T0}, v9""")
A(f"""v_lshlrev_b32 v5, 13, v4
s_lshl_b32 s{T0}, s{sWAVE}, 15
s_lshl_b32 s{T1}, s{sR}, 8
s_add_u32 s{T0}, s{T0}, s{T1}
v_add_u32 v5, s{T0}, v5
v_lshl_add_u32 v6, v3, 4, v5
v_add_u32 v6, {X1P}, v6
s_and_b32 s{T1}, s{sWAVE}, 1
s_lshl_b32 s{T1}, s{T1}, 2
v_xor_b32 v7, s{T1}, v3
v_lshl_add_u32 v5, v7, 4, v5
v_add_u32 v5, {X1S}, v5
v_and_b32 v7, 1, v4
v_lshlrev_b32 v8, 10, v4
v_lshl_add_u32 v8, v3, 2, v8
v_add_u32 v8, {L_X}, v8""")
for sg in range(4):
    A(f"v_xor_b32 v10, {sg}, v7\nv_lshl_add_u32 v{16+sg}, v10, 6, v8")
A(f"""v_lshlrev_b32 v10, 4, v2
s_lshl_b32 s{T0}, s{sWAVE}, 10
v_add_u32 v11, s{T0}, v10
s_mul_i32 s{T0}, s{sFG}, {2*86*1024}
s_add_u32 s{T0}, s{T0}, {W2P}
v_add_u32 v20, s{T0}, v11
v_add_u32 v21, {86*1024}, v20
s_mul_i32 s{T0}, s{sR}, {2*86*1024}
s_add_u32 s{T0}, s{T0}, {HID}
v_add_u32 v22, s{T0}, v11
v_add_u32 v23, {86*1024}, v22
v_add_u32 v12, {F2}, v13
s_mul_i32 s{T0}, s{sWAVE}, 6144
s_add_u32 s{T0}, s{T0}, {L_BB}
v_add_u32 v14, s{T0}, v10
s_waitcnt lgkmcnt(0)
s_barrier""")
MBF = 64
for t in range(16):
    A(f"ds_read_b128 v[{MBF+4*t}:{MBF+4*t+3}], v9 offset:{64*t}")
MD = 24
for i in range(12): A(f"v_mov_b32 v{MD+i}, 0")
A("s_waitcnt lgkmcnt(0)")
for t in range(16):
    vm.wait(f"w1_{t}")
    for j in range(3):
        A(f"v_mfma_f32_16x16x32_bf16 v[{MD+4*j}:{MD+4*j+3}], a[{(t*3+j)*4}:{(t*3+j)*4+3}], v[{MBF+4*t}:{MBF+4*t+3}], v[{MD+4*j}:{MD+4*j+3}]")
stamp("MB pass done")
def w2reg(i, cb):
    k = 2 * i + cb
    return f"a[{192+4*k}:{195+4*k}]" if k < 16 else f"v[{144+4*(k-16)}:{147+4*(k-16)}]"
w2q = [(i, cb) for i in range(22) for cb in range(2)]
def w2_issue(n):
    for _ in range(n):
        if not w2q: return
        i, cb = w2q.pop(0)
        vm.op(f"buffer_load_dwordx4 {w2reg(i,cb)}, v{20+cb}, {W4}, s{ROT2[i]} offen sc1", "w2")
lab = "w2e"
A(f"s_cmp_eq_u32 s{sWAVE}, 0\ns_cbranch_scc1 {lab}") if P("W2_SKIP0", 0) else None
w2_issue(P("W2_EARLY", 8))
A("s_nop 4")
Bq = 36
for j in range(3):
    for r in range(4):
        A(f"v_mov_b32_dpp v{Bq+4*j+r}, v{MD+4*j+r} row_newbcast:0 row_mask:0xf bank_mask:0xf")
        A(f"v_mov_b32_dpp v{Bq+12+4*j+r}, v{MD+4*j+r} row_newbcast:1 row_mask:0xf bank_mask:0xf")
for j in range(3):
    A(f"""v_lshlrev_b32 v60, 16, v{B1R+2*j}
    v_and_b32 v61, 0xffff0000, v{B1R+2*j}
    v_lshlrev_b32 v62, 16, v{B1R+2*j+1}
    v_and_b32 v63, 0xffff0000, v{B1R+2*j+1}
    v_pk_add_f32 v[{Bq+4*j}:{Bq+4*j+1}], v[{Bq+4*j}:{Bq+4*j+1}], v[60:61]
    v_pk_add_f32 v[{Bq+4*j+2}:{Bq+4*j+3}], v[{Bq+4*j+2}:{Bq+4*j+3}], v[62:63]""")
for i in range(6):
    A(f"ds_write_b128 v14, v[{Bq+4*i}:{Bq+4*i+3}] offset:{1024*i}")
G1 = 24; SAC = 128
A("s_waitcnt lgkmcnt(0)")
for i in range(48): A(f"v_mov_b32 v{G1+i}, 0")
for i in range(8): A(f"v_mov_b32 v{SAC+i}, 0")
stamp("pre poll2")
poll(12, 4, 4096, 136, "p2")
A(f"""s_cmp_lg_u32 s2, 0
s_cbranch_scc1 noep
s_cmp_lg_u32 s{sWAVE}, 0
s_cbranch_scc1 noep
v_mov_b32 v10, {EPOCH}
v_mov_b32 v11, s{sEP}
s_mov_b64 exec, 1
buffer_store_dword v11, v10, {W4}, 0 offen sc1
s_mov_b64 exec, -1
noep:
s_barrier""")
stamp("poll2 done")
A(f"s_lshl_b32 s{T5}, s{sWAVE}, 10\ns_add_u32 s{T5}, s{T5}, {L_X}")
for c in range(16):
    A(f"""s_add_u32 s{T0}, s{T5}, {4096*c}
    s_mov_b32 m0, s{T0}
    s_lshl_b32 s{T1}, s{ROT1[c]}, 7""")
    vm.op(f"buffer_load_dwordx4 v5, {W4}, s{T1} offen sc1 lds", f"x{c//4}")
SRG = 104; NSR = 6
def st_issue(i):
    r = SRG + 4 * (i % NSR)
    A(f"s_lshl_b32 s{T1}, s{ROT1[i]}, 7")
    vm.op(f"buffer_load_dwordx4 v[{r}:{r+3}], v6, {W4}, s{T1} offen sc1", f"s{i}")
for i in range(NSR): st_issue(i)
BF = [72, 88]
def bl(t, st):
    for sg in range(4):
        r = BF[st] + 4 * sg
        A(f"ds_read2st64_b32 v[{r}:{r+1}], v{16+sg} offset0:{16*t} offset1:{16*t+1}")
        A(f"ds_read2st64_b32 v[{r+2}:{r+3}], v{16+sg} offset0:{16*t+2} offset1:{16*t+3}")
def st_consume(i):
    out = []
    r = SRG + 4 * (i % NSR)
    for k in range(4):
        out.append(f"v_dot2_f32_bf16 v{SAC+k}, v{r+k}, s{sONES}, v{SAC+k}")
        out.append(f"v_dot2_f32_bf16 v{SAC+4+k}, v{r+k}, v{r+k}, v{SAC+4+k}")
    return out
vm.wait("x0"); A("s_barrier")
stamp("x chunk0")
bl(0, 0)
st_next = 0
W2_T0, W2_EVERY = P("W2_T0", 4), P("W2_EVERY", 4)
for t in range(16):
    st = t & 1
    if t + 1 < 16:
        if (t + 1) % 4 == 0:
            vm.wait(f"x{(t+1)//4}", extra="lgkmcnt(0)" if t == 11 else ""); A("s_barrier")
        bl(t + 1, st ^ 1)
        A("s_waitcnt lgkmcnt(8)")
    else:
        A("s_waitcnt lgkmcnt(0)")
    side = []
    if 2 <= t < 10:
        for _ in range(2):
            side.append(("wait", st_next)); side += [("i", x) for x in st_consume(st_next)]
            if st_next + NSR < 16: side.append(("issue", st_next + NSR))
            st_next += 1
    if t == 10:
        side.append(("i", "s_nop 2"))
        for k in range(4): side.append(("i", f"v_permlane32_swap_b32 v{SAC+k}, v{SAC+4+k}"))
        for k in range(4): side.append(("i", f"v_add_f32 v{SAC+k}, v{SAC+k}, v{SAC+4+k}"))
        side += [("i", x) for x in f"""s_nop 1
        v_permlane16_swap_b32 v{SAC}, v{SAC+1}
        v_permlane16_swap_b32 v{SAC+2}, v{SAC+3}
        v_add_f32 v{SAC}, v{SAC}, v{SAC+1}
        v_add_f32 v{SAC+2}, v{SAC+2}, v{SAC+3}
        v_and_b32 v136, 1, v4
        v_lshlrev_b32 v136, 3, v136
        v_lshl_add_u32 v136, v3, 5, v136
        v_lshrrev_b32 v137, 1, v4
        v_lshl_add_u32 v136, v137, 2, v136
        s_lshl_b32 s{T0}, s{sWAVE}, 9
        v_add_u32 v136, s{T0}, v136
        ds_write_b32 v136, v{SAC} offset:{L_ST}
        ds_write_b32 v136, v{SAC+2} offset:{L_ST+16}""".split("\n")]
    if t == 12:
        side.append(("i", f"v_lshlrev_b32 v136, 3, v2"))
        for w in range(4):
            side.append(("i", f"ds_read_b64 v[{SRG+2*w}:{SRG+2*w+1}], v136 offset:{L_ST+512*w}"))
    if t == 13:
        def f13():
            A(f"""v_pk_add_f32 v[{SRG}:{SRG+1}], v[{SRG}:{SRG+1}], v[{SRG+2}:{SRG+3}]
            v_pk_add_f32 v[{SRG+4}:{SRG+5}], v[{SRG+4}:{SRG+5}], v[{SRG+6}:{SRG+7}]
            v_pk_add_f32 v[{SRG}:{SRG+1}], v[{SRG}:{SRG+1}], v[{SRG+4}:{SRG+5}]""")
            ln_final(SRG, SRG + 1, SRG + 8, SRG + 9)
            A(f"v_sub_f32 v{SRG+9}, v{SRG+9}, v{M1R}\nv_mul_f32 v{SRG+9}, v{SRG+9}, v{SRG+8}")
        side += [("i", x) for x in capture(f13)]
    if t == 14:
        for sg in range(4):
            side.append(("i", f"v_lshl_add_u32 v{136+sg}, v3, 2, {64*sg}" if sg <= 1 else f"v_add_u32 v{136+sg}, 64, v{135+sg}"))
        for sg in range(4):
            side.append(("i", f"ds_bpermute_b32 v{SAC+2*sg}, v{136+sg}, v{SRG+8}"))
            side.append(("i", f"ds_bpermute_b32 v{SAC+2*sg+1}, v{136+sg}, v{SRG+9}"))
    mf = 0
    for j in range(3):
        for sg in range(4):
            c = G1 + (j * 4 + sg) * 4
            A(f"v_mfma_f32_16x16x32_bf16 v[{c}:{c+3}], a[{(t*3+j)*4}:{(t*3+j)*4+3}], v[{BF[st]+4*sg}:{BF[st]+4*sg+3}], v[{c}:{c+3}]")
            mf += 1
            k = 2 if len(side) > (12 - mf) else 1
            if mf == 12: k = len(side)
            for _ in range(k):
                while side and side[0][0] != "i":
                    kind, x = side.pop(0)
                    if kind == "wait": vm.wait(f"s{x}")
                    else: st_issue(x)
                if side: A(side.pop(0)[1])
            while side and side[0][0] == "issue":
                st_issue(side.pop(0)[1])
            if t >= W2_T0 and mf % W2_EVERY == 0: w2_issue(1)
stamp("gemm1 mfma done")
for i in range(6):
    A(f"ds_read_b128 v[{72+4*i}:{75+4*i}], v14 offset:{1024*i}")
A(f"""v_lshrrev_b32 v5, 1, v4
v_lshlrev_b32 v5, 9, v5
v_lshl_add_u32 v5, v3, 4, v5
v_and_b32 v6, 1, v4
v_lshl_add_u32 v5, v6, 3, v5
s_mul_i32 s{T0}, s{sR}, {2*86*1024}
s_lshl_b32 s{T1}, s46, 10
s_add_u32 s{T0}, s{T0}, s{T1}
s_add_u32 s{T0}, s{T0}, {HID}
v_add_u32 v5, s{T0}, v5
v_add_u32 v6, 4096, v5
v_add_u32 v7, 8192, v5
v_add_u32 v7, s47, v7
s_mov_b32 s{T3}, {86*1024}
s_waitcnt lgkmcnt(0)""")
for j in range(3):
    for sp2 in range(2):
        seqs = []
        for sg in (2 * sp2, 2 * sp2 + 1):
            c = G1 + (j * 4 + sg) * 4
            sp = SAC + 2 * sg
            TT = 96 + 4 * (sg & 1)
            sq = []
            for hh in range(2):
                sq.append(f"v_pk_fma_f32 v[{TT+2*hh}:{TT+2*hh+1}], v[{84+4*j+2*hh}:{85+4*j+2*hh}], v[{sp}:{sp+1}], v[{72+4*j+2*hh}:{73+4*j+2*hh}] op_sel:[0,1,0] op_sel_hi:[1,1,1] neg_lo:[0,1,0] neg_hi:[0,1,0]")
            for hh in range(2):
                sq.append(f"v_pk_fma_f32 v[{c+2*hh}:{c+2*hh+1}], v[{c+2*hh}:{c+2*hh+1}], v[{sp}:{sp+1}], v[{TT+2*hh}:{TT+2*hh+1}] op_sel_hi:[1,0,1]")
            for r in range(4): sq.append(f"v_max_f32 v{c+r}, 0, v{c+r}")
            sq += [f"v_pk_mul_f32 v[{c}:{c+1}], v[{c}:{c+1}], v[{c}:{c+1}]",
                   f"v_pk_mul_f32 v[{c+2}:{c+3}], v[{c+2}:{c+3}], v[{c+2}:{c+3}]",
                   f"v_cvt_pk_bf16_f32 v{c}, v{c}, v{c+1}",
                   f"v_cvt_pk_bf16_f32 v{c+1}, v{c+2}, v{c+3}"]
            seqs.append(sq)
        for grp in zip(*seqs):
            for x in grp: A(x)
        for sg in (2 * sp2, 2 * sp2 + 1):
            c = G1 + (j * 4 + sg) * 4
            vm.op(f"buffer_store_dwordx2 v[{c}:{c+1}], v{5+j}, {W4}, {'s%d'%T3 if sg>>1 else '0'} offen offset:{256*(sg&1)} sc1", "st3")
stamp("st3 issued")
XR, BR, GR = 96, 104, 112
A(f"""v_and_b32 v8, 31, v2
v_lshrrev_b32 v9, 5, v2
s_lshr_b32 s{T0}, s{sWAVE}, 1
s_and_b32 s{T1}, s{sWAVE}, 1
s_lshl_b32 s{T2}, s{sFG}, 7
s_lshl_b32 s{T4}, s{T1}, 6
s_add_u32 s{T2}, s{T2}, s{T4}
v_lshlrev_b32 v10, 3, v9
v_add_u32 v10, s{T2}, v10
v_lshlrev_b32 v11, 1, v10
s_lshl_b32 s{T4}, s{sR}, 6
s_lshl_b32 s{T5}, s{T0}, 5
s_add_u32 s{T4}, s{T4}, s{T5}
v_add_u32 v12, s{T4}, v8
v_lshlrev_b32 v15, 11, v10
v_lshl_add_u32 v15, v12, 2, v15
v_add_u32 v15, {X1P}, v15
v_lshl_add_u32 v12, v12, 10, v10
v_min_u32 v16, 7, v2
v_lshlrev_b32 v16, 6, v16
s_lshl_b32 s{T0}, s{sR}, 9
s_add_u32 s{T0}, s{T0}, {F3}
v_add_u32 v16, s{T0}, v16""")
for q in range(4):
    A(f"ds_read_b128 v[{GR+4*q}:{GR+4*q+3}], v11 offset:{L_TGB + 32*q}")
for q in range(4):
    for pp in range(2):
        A(f"s_mov_b32 s{T1}, {8192*(4*q+pp)}")
        vm.op(f"buffer_load_dword v{XR+2*q+pp}, v15, {W4}, s{T1} offen sc1", "xr")
for q in range(4):
    vm.op(f"buffer_load_dwordx2 v[{BR+2*q}:{BR+2*q+1}], v10, s[{SM2}:{SM2+3}], 0 offen offset:{16*q}", "xr")
w2_issue(99)
vm.wait("st3")
A("s_barrier")
set_flag(0, F3, f"s_lshl_b32 s{T0}, s{sR}, 3\ns_add_u32 s{T0}, s{T0}, s{sFG}", 17, 18)
G2 = 24
for i in range(64): A(f"v_mov_b32 v{G2+i}, 0")
stamp("flag3")
poll(16, 1, 0, 17, "p3")
A("s_barrier")
stamp("poll3 done")
for i in range(22):
    for sb in range(2):
        vm.op(f"buffer_load_dwordx4 a[{(2*i+sb)*4}:{(2*i+sb)*4+3}], v{22+sb}, {W4}, s{ROT2[i]} offen sc1", f"h{i}")
for i in range(22):
    vm.wait(f"h{i}")
    for sb in range(2):
        for cb in range(2):
            c = G2 + 16 * (2 * sb + cb)
            A(f"v_mfma_f32_32x32x16_bf16 v[{c}:{c+15}], {w2reg(i,cb)}, a[{(2*i+sb)*4}:{(2*i+sb)*4+3}], v[{c}:{c+15}]")
stamp("gemm2 mfma done")
A(f"""s_nop 7
s_nop 3
v_lshlrev_b32 v13, 4, v2""")
for T in range(4):
    lab = A.label("skip")
    A(f"""s_cmp_eq_u32 s{sWAVE}, {T}
    s_cbranch_scc1 {lab}
    s_sub_u32 s{T0}, s{sWAVE}, {T+1}
    s_and_b32 s{T0}, s{T0}, 3
    s_lshl_b32 s{T0}, s{T0}, 12
    s_add_u32 s{T0}, s{T0}, {L_RED + T*12288}
    v_add_u32 v14, s{T0}, v13""")
    for q in range(4):
        A(f"ds_write_b128 v14, v[{G2+16*T+4*q}:{G2+16*T+4*q+3}] offset:{1024*q}")
    A(f"{lab}:")
OWN = 144
for T in range(4):
    lab = A.label("mv")
    A(f"s_cmp_lg_u32 s{sWAVE}, {T}\ns_cbranch_scc1 {lab}")
    for i in range(16): A(f"v_mov_b32 v{OWN+i}, v{G2+16*T+i}")
    A(f"{lab}:")
A(f"""s_mul_i32 s{T0}, s{sWAVE}, 12288
s_add_u32 s{T0}, s{T0}, {L_RED}
v_add_u32 v14, s{T0}, v13
s_waitcnt lgkmcnt(0)
s_barrier""")
for q in range(4):
    for sl in range(3):
        A(f"ds_read_b128 v[{G2+16*sl+4*q}:{G2+16*sl+4*q+3}], v14 offset:{4096*sl+1024*q}")
U = 160
for q in range(4):
    c = OWN + 4 * q
    A(f"""v_lshlrev_b32 v{U}, 16, v{BR+2*q}
    v_and_b32 v{U+1}, 0xffff0000, v{BR+2*q}
    v_lshlrev_b32 v{U+2}, 16, v{BR+2*q+1}
    v_and_b32 v{U+3}, 0xffff0000, v{BR+2*q+1}
    v_pk_add_f32 v[{c}:{c+1}], v[{c}:{c+1}], v[{U}:{U+1}]
    v_pk_add_f32 v[{c+2}:{c+3}], v[{c+2}:{c+3}], v[{U+2}:{U+3}]
    v_lshlrev_b32 v{U}, 16, v{XR+2*q}
    v_and_b32 v{U+1}, 0xffff0000, v{XR+2*q}
    v_lshlrev_b32 v{U+2}, 16, v{XR+2*q+1}
    v_and_b32 v{U+3}, 0xffff0000, v{XR+2*q+1}
    s_waitcnt lgkmcnt({3*(3-q)})""")
    for sl in range(3):
        for hh in range(2):
            A(f"v_pk_add_f32 v[{c+2*hh}:{c+2*hh+1}], v[{c+2*hh}:{c+2*hh+1}], v[{G2+16*sl+4*q+2*hh}:{G2+16*sl+4*q+2*hh+1}]")
    A(f"""v_pk_fma_f32 v[{c}:{c+1}], v[{c}:{c+1}], v[{GR+4*q}:{GR+4*q+1}], v[{U}:{U+1}]
    v_pk_fma_f32 v[{c+2}:{c+3}], v[{c+2}:{c+3}], v[{GR+4*q+2}:{GR+4*q+3}], v[{U+2}:{U+3}]
    v_cvt_pk_bf16_f32 v{c}, v{c}, v{c+1}
    v_cvt_pk_bf16_f32 v{c+1}, v{c+2}, v{c+3}
    buffer_store_dwordx2 v[{c}:{c+1}], v12, s[{SOUT}:{SOUT+3}], 0 offen offset:{16*q}""")
if STAMP:
    stamp("out issued")
    A("s_waitcnt vmcnt(0)")
    stamp("end")
    A(f"""v_lshlrev_b32 v1, 2, v2
    s_lshl_b32 s{T0}, s2, 10
    s_lshl_b32 s{T1}, s{sWAVE}, 8
    s_add_u32 s{T0}, s{T0}, s{T1}
    s_add_u32 s{T0}, s{T0}, {TS}
    v_add_u32 v1, s{T0}, v1
    buffer_store_dword v143, v1, {W4}, 0 offen""")
A("k_done:\ns_endpgm\nk_end:")

hdr = f"; @launch grid=(256,1,1) block=(256,1,1) lds={LDS_SZ}\n.amdgcn_target \"amdgcn-amd-amdhsa--gfx950\"\n.text\n"
out = hdr + A.text() + '.section .rodata,"a"\n' + A.kd(name, 256, 102, accum=256, agpr=256)
open(sys.argv[1], "w").write(out)
print("stamps", nst[0], "lds", LDS_SZ, file=sys.stderr)
```

```python
import sys, os
from asmlib import *

STAMP = os.environ.get("STAMP") == "1"
def P(n, d): return int(os.environ.get(n, d))
S, D, F = 2048, 512, 1376
UR, QP, X1P, X1S, HID, W1P, W2P = 0x0, 0x200000, 0x400000, 0x600000, 0x800000, 0xE00000, 0x1000000
MODF, ST1 = 0x1200000, 0x1210000
F1A, F1B, F2, F3, EPOCH = 0x1300000, 0x1304000, 0x1308000, 0x130C000, 0x1310000
TS = 0x1400000
WS_SZ = 0x1500000
OOB = 0x40000000
SZ_SD = S * D * 2
SZ_W = D * F * 2
POLL_MAX = 200000

OSZ = 2368; USZ = 2 * OSZ
L_U = 0
L_KF = 9472; KFSZ = 8256
L_MODP = L_KF + 2 * KFSZ
L_XP = 0
L_X = 65536
L_RED = L_X
L_TB = 131072
L_TC2 = L_TB + 2048 + 64
L_TGB = L_TC2 + 2048 + 64
L_BB = L_TGB + 2048
L_ST = L_BB + 4 * 384
LDS_SZ = L_ST + 512
assert LDS_SZ <= 160 * 1024 and L_MODP + 4096 <= 65536

WS, SK, SV, SQ, SM1, SKF, SM2, SC, SWM, SPK, SOUT = 4, 8, 12, 16, 20, 24, 28, 32, 36, 40, 48
sWAVE, sXG, sJ, sEP = 52, 53, 54, 55
sR, sFG, sD0, sONES, sM = 96, 97, 98, 99, 3
T0, T1, T2, T3, T4, T5 = 56, 57, 58, 59, 60, 61
SX = 62
ROT1 = [64 + i for i in range(16)]
ROT2 = [80 + i for i in range(16)] + [8 + i for i in range(6)]
sROT1 = 14

A = Asm()
name = "adaLN_cond__ssm_conv_h3__dense_activation_squared_relu__prompt_kernel"
W4 = f"s[{WS}:{WS+3}]"

class VM:
    def __init__(self): self.q = []
    def op(self, text, tag):
        A(text); self.q.append(tag)
    def wait(self, *tags, extra=""):
        last = max((i for i, t in enumerate(self.q) if t in tags), default=-1)
        n = len(self.q) - 1 - last
        if last >= 0:
            assert n <= 63, (tags, n)
            A(f"s_waitcnt vmcnt({n}) {extra}".rstrip())
            self.q = self.q[last + 1:]
        elif extra:
            A(f"s_waitcnt {extra}")
vm = VM()

nst = [0]
def stamp(label=""):
    if not STAMP: return
    i = nst[0]; nst[0] += 1
    print(f"stamp {i}: {label}", file=sys.stderr)
    A(f"""s_memrealtime s[100:101]
    s_waitcnt lgkmcnt(0)
    v_writelane_b32 v143, s100, {i}""")

def rnd1(r):
    A(f"v_cvt_pk_bf16_f32 v{r}, v{r}, v{r}\nv_lshlrev_b32 v{r}, 16, v{r}")
def capture(fn):
    save = A.lines; A.lines = []
    fn()
    tmp = [x.strip() for x in A.lines]; A.lines = save
    return tmp

def poll(addr_v, nloads, stride_imm, dst, lab, only_wave0=True):
    if only_wave0:
        A(f"s_cmp_lg_u32 s{sWAVE}, 0\ns_cbranch_scc1 {lab}_done")
    A(f"s_mov_b32 s{T0}, 0\n{lab}:")
    for k in range(nloads):
        A(f"s_mov_b32 s{T1}, {k*stride_imm}\nbuffer_load_dword v{dst+k}, v{addr_v}, {W4}, s{T1} offen sc1")
    A("s_waitcnt vmcnt(0)")
    for k in range(nloads):
        A(f"v_xor_b32 v{dst+k}, s{sEP}, v{dst+k}")
    for k in range(1, nloads):
        A(f"v_or_b32 v{dst}, v{dst}, v{dst+k}")
    A(f"""v_cmp_ne_u32 vcc, 0, v{dst}
    s_add_u32 s{T0}, s{T0}, 1
    s_cmp_ge_u32 s{T0}, {POLL_MAX}
    s_cbranch_scc1 {lab}_done
    s_cbranch_vccz {lab}_done
    s_sleep 1
    s_branch {lab}
    {lab}_done:""")

def set_flag(wave, base, idx_code, va, vd, pre=""):
    lab = A.label("fl")
    A(f"""s_cmp_lg_u32 s{sWAVE}, {wave}
    s_cbranch_scc1 {lab}
    {pre}
    {idx_code}
    s_lshl_b32 s{T0}, s{T0}, 6
    s_add_u32 s{T0}, s{T0}, {base}
    v_mov_b32 v{va}, s{T0}
    v_mov_b32 v{vd}, s{sEP}
    s_mov_b64 exec, 1
    buffer_store_dword v{vd}, v{va}, {W4}, 0 offen sc1
    s_mov_b64 exec, -1
    {lab}:""".replace("    \n", ""))

def ln_final(sm, sq, rs_out, m_out):
    A(f"""v_mul_f32 v{m_out}, 0x3b000000, v{sm}
    v_mul_f32 v{rs_out}, 0x3b000000, v{sq}
    v_fma_f32 v{rs_out}, -v{m_out}, v{m_out}, v{rs_out}
    v_max_f32 v{rs_out}, 0, v{rs_out}""")
    rnd1(rs_out); rnd1(m_out)
    A(f"v_add_f32 v{rs_out}, 0x3727c5ac, v{rs_out}")
    rnd1(rs_out)
    A(f"v_sqrt_f32 v{rs_out}, v{rs_out}\ns_nop 0")
    rnd1(rs_out)
    A(f"v_rcp_f32 v{rs_out}, v{rs_out}\ns_nop 0")

A.kernel_begin(name)
NCP = P("NCP", 6)
A(f"""s_cmp_ge_u32 s2, 256
s_cbranch_scc1 k_done
s_load_dwordx16 s[64:79], s[0:1], 0
s_load_dwordx16 s[80:95], s[0:1], 64
s_getpc_b64 s[48:49]
k_pc:""")
A(f"""
v_lshrrev_b32 v1, 6, v0
v_and_b32 v2, 63, v0
v_readfirstlane_b32 s{sWAVE}, v1
s_and_b32 s{sXG}, s2, 7
s_lshr_b32 s{sJ}, s2, 3
v_and_b32 v3, 15, v2
v_lshrrev_b32 v4, 4, v2
s_lshr_b32 s{T0}, s{sJ}, 3
s_lshl_b32 s{T0}, s{T0}, 3
s_add_u32 s{sR}, s{sXG}, s{T0}
s_and_b32 s{sFG}, s{sJ}, 7
s_lshl_b32 s{sD0}, s{sXG}, 6
s_lshl_b32 s{T0}, s{sJ}, 1
s_add_u32 s{sD0}, s{sD0}, s{T0}
s_mov_b32 s{sONES}, 0x3f803f80""")
stamp("start")
KT, VT, QT, US, QS, PKT = L_X, L_X + 9216, L_X + 17408, L_X + 25600, L_X + 33792, L_X + 41984
A(f"""v_lshrrev_b32 v5, 3, v2
v_lshlrev_b32 v5, 10, v5
v_and_b32 v6, 7, v2
v_lshl_add_u32 v5, v6, 4, v5          ; (l>>3)*1024 + (l&7)*16
s_lshl_b32 s{T0}, s{sJ}, 16
s_lshl_b32 s{T1}, s{sXG}, 7
s_add_u32 s{T0}, s{T0}, s{T1}
v_add_u32 v7, s{T0}, v5
v_subrev_u32 v7, 8192, v7
s_lshl_b32 s{T1}, s{sWAVE}, 14
s_add_u32 s{T0}, s{T0}, s{T1}
v_add_u32 v5, s{T0}, v5
v_and_b32 v12, 31, v0                 ; cp
v_lshrrev_b32 v13, 5, v0              ; rg
v_lshlrev_b32 v8, 4, v12
s_lshl_b32 s{T0}, s{sXG}, 9
v_add_u32 v8, s{T0}, v8
s_lshl_b32 s{T4}, s{sWAVE}, 11         ; 2048*w
s_movk_i32 s{T5}, 8192
s_waitcnt lgkmcnt(0)""")
if P("TLBT", 0):
    for p in (66, 68, 64, 70, 72, 74, 86, 88, 78, 82, 80, 84, 90):
        A(f"s_load_dword s0, s[{p}:{p+1}], 0")
    A(f"s_add_u32 s76, s88, 0x200000\ns_addc_u32 s77, s89, 0\ns_load_dword s0, s[76:77], 0")
    A(f"s_mov_b32 s76, s94\ns_mov_b32 s77, s95")
    for pg in range(10):
        A(f"s_load_dword s0, s[76:77], 0")
        if pg < 9: A(f"s_add_u32 s76, s76, 0x200000\ns_addc_u32 s77, s77, 0")
A.srd(SK, 66, SZ_SD); A.srd(SV, 68, SZ_SD); A.srd(SM1, 70, 4096); A.srd(SQ, 64, SZ_SD)
A(f"""s_cmp_lg_u32 s{sWAVE}, 3
s_cbranch_scc1 nohalo
s_mov_b32 m0, {KT}
s_nop 0
buffer_load_dwordx4 v7, s[{SK}:{SK+3}], 0 offen lds
nohalo:""")
W = 44
for (base, srd, tag) in ((KT + 1024, SK, "k"), (VT, SV, "k"), (QT, SQ, "k")):
    for i in range(2):
        A(f"s_add_u32 s{T0}, s{T4}, {base + 1024*i}\ns_mov_b32 m0, s{T0}\ns_nop 0")
        vm.op(f"buffer_load_dwordx4 v5, s[{srd}:{srd+3}], {'s%d'%T5 if i else '0'} offen lds", tag)
vm.op(f"buffer_load_dwordx4 v[{W}:{W+3}], v8, s[{SM1}:{SM1+3}], 0 offen", "k")
A(f"""s_mul_i32 s{T0}, s{sJ}, 43
s_lshr_b32 s{T0}, s{T0}, 8              ; j/6
s_mul_i32 s{T0}, s{T0}, 6
s_sub_u32 s{T0}, s{sJ}, s{T0}           ; j%6
s_lshl_b32 s{T0}, s{T0}, 12
v_lshl_add_u32 v9, v0, 4, s{T0}
v_min_u32 v9, k_end-k_pc-16, v9""")
vm.op(f"global_load_dwordx4 a[0:3], v9, s[48:49]", "code")
A.srd(WS, 94, WS_SZ); A.srd(SKF, 72, SZ_SD); A.srd(SM2, 74, 1024); A.srd(SC, 86, 1024); A.srd(SWM, 88, 512 * 3072 * 2)
A.srd(SOUT, 90, SZ_SD)
A(f"""s_add_u32 s{T2}, s94, {EPOCH}
s_addc_u32 s{T3}, s95, 0
s_load_dword s{sEP}, s[{T2}:{T3}], 0""")
KF0, DD, SR, CC, WM = 48, 58, 60, 68, 72
A(f"""v_lshlrev_b32 v9, 4, v0
s_lshl_b32 s{T0}, s{sD0}, 12
v_add_u32 v9, s{T0}, v9
s_movk_i32 s{T1}, 4096""")
vm.op(f"buffer_load_dwordx4 v[{KF0}:{KF0+3}], v9, s[{SKF}:{SKF+3}], 0 offen", "kf")
vm.op(f"buffer_load_dwordx4 v[{KF0+4}:{KF0+7}], v9, s[{SKF}:{SKF+3}], s{T1} offen", "kf")
A(f"s_lshl_b32 s{T0}, s{sD0}, 1\nv_mov_b32 v9, s{T0}")
vm.op(f"buffer_load_dword v{DD}, v9, s[{SM2}:{SM2+3}], 0 offen", "D")
PS, PA, PD = 88, 92, 90
A(f"""s_sub_u32 s{T0}, s2, 74
v_lshlrev_b32 v{PD}, 4, v2
v_bfe_u32 v9, v2, 2, 2                ; r
v_and_b32 v10, 3, v2                  ; c
s_cmp_lt_u32 s{T0}, 96
s_cbranch_scc0 pk_w2""")
A.srd(SPK, 78, SZ_W)
A(f"""s_and_b32 s{T1}, s{T0}, 15              ; t
s_lshr_b32 s{T2}, s{T0}, 4              ; Fgb
v_lshrrev_b32 v11, 5, v2
v_bfe_u32 v14, v2, 1, 4
s_and_b32 s{T3}, s{sWAVE}, 1
s_lshl_b32 s{T3}, s{T3}, 2
v_or_b32 v15, s{T3}, v11
v_xor_b32 v14, v14, v15               ; i' even
v_xor_b32 v15, 2, v14                 ; i' odd
v_mul_u32_u24 v11, 2752, v11
v_and_b32 v16, 1, v2
v_lshl_add_u32 v11, v16, 4, v11
s_mul_i32 s{T3}, s{T1}, {32*2752}
s_mul_i32 s{T4}, s{sWAVE}, {8*2752}
s_add_u32 s{T3}, s{T3}, s{T4}
s_lshl_b32 s{T4}, s{T2}, 9
s_add_u32 s{T3}, s{T3}, s{T4}
v_add_u32 v11, s{T3}, v11
v_lshl_add_u32 v{PS}, v14, 5, v11
v_lshl_add_u32 v{PS+1}, v15, 5, v11
s_movk_i32 s44, 5504
v_and_b32 v14, 1, v4
v_lshl_or_b32 v14, v14, 2, v9
v_lshl_add_u32 v15, v4, 3, v9
v_lshlrev_b32 v15, 9, v15
v_lshl_add_u32 v15, v10, 3, v15
v_add_u32 v15, {PKT}, v15
s_lshl_b32 s{T3}, s{sWAVE}, 2
v_xor_b32 v14, s{T3}, v14""")
for u in range(4):
    A(f"""v_xor_b32 v16, {u}, v14
    v_lshl_add_u32 v{PA+u}, v16, 5, v15
    v_add_u32 v{PA+4+u}, 2048, v{PA+u}""")
A(f"""s_lshl_b32 s{T2}, s{T2}, 2
s_add_u32 s{T2}, s{T2}, s{sWAVE}        ; Fg
s_lshl_b32 s{T3}, s{T2}, 16
s_lshl_b32 s{T4}, s{T1}, 10
s_add_u32 s{T3}, s{T3}, s{T4}
s_add_u32 s{T3}, s{T3}, {W1P}
s_cmp_ge_u32 s{T2}, 22
s_cselect_b32 s{T3}, {OOB}, s{T3}
v_add_u32 v{PD}, s{T3}, v{PD}
s_movk_i32 s45, 16384
s_cmp_eq_u32 s{T2}, 21
s_cselect_b32 s46, {OOB}, 0
s_branch pk_go
pk_w2:""")
A.srd(SPK, 82, SZ_W)
A(f"""s_sub_u32 s{T1}, s2, 170                ; F
v_bfe_u32 v14, v2, 2, 2
v_xor_b32 v14, v14, v4
v_lshlrev_b32 v11, 10, v4
v_lshl_add_u32 v11, v14, 6, v11
v_lshl_add_u32 v11, v10, 4, v11
s_lshl_b32 s{T3}, s{T1}, 14
s_lshl_b32 s{T4}, s{sWAVE}, 8
s_add_u32 s{T3}, s{T3}, s{T4}
s_cmp_ge_u32 s{T1}, 86
s_cselect_b32 s{T3}, {OOB}, s{T3}
v_add_u32 v{PS}, s{T3}, v11
v_mov_b32 v{PS+1}, v{PS}
s_movk_i32 s44, 4096
v_lshrrev_b32 v14, 1, v4
v_lshl_add_u32 v14, v14, 3, v9
v_lshlrev_b32 v14, 8, v14
v_and_b32 v15, 1, v4
v_lshl_add_u32 v14, v15, 5, v14
v_lshl_add_u32 v14, v10, 3, v14
s_lshl_b32 s{T3}, s{sWAVE}, 12
s_add_u32 s{T3}, s{T3}, {PKT}
v_add_u32 v14, s{T3}, v14""")
for u in range(4):
    A(f"""v_xor_b32 v16, {u}, v9
    v_lshl_add_u32 v{PA+u}, v16, 6, v14
    v_add_u32 v{PA+4+u}, 1024, v{PA+u}""")
A(f"""s_mul_i32 s{T3}, s{sWAVE}, {4*86*1024}
s_lshl_b32 s{T4}, s{T1}, 10
s_add_u32 s{T3}, s{T3}, s{T4}
s_add_u32 s{T3}, s{T3}, {W2P}
s_cmp_ge_u32 s{T1}, 86
s_cselect_b32 s{T3}, {OOB}, s{T3}
v_add_u32 v{PD}, s{T3}, v{PD}
s_mov_b32 s45, {86*1024}
s_mov_b32 s46, 0
pk_go:
s_lshl_b32 s{T4}, s{sWAVE}, 12
s_mov_b32 s47, 0""")
for i in range(4):
    A(f"s_add_u32 s{T0}, s{T4}, {PKT + 1024*i}\ns_mov_b32 m0, s{T0}\ns_nop 0")
    vm.op(f"buffer_load_dwordx4 v{PS+(i&1)}, s[{SPK}:{SPK+3}], s47 offen lds", "pk")
    if i < 3: A(f"s_add_u32 s47, s47, s44")
A(f"""v_lshlrev_b32 v5, 10, v13
v_lshl_add_u32 v5, v12, 2, v5
v_add_u32 v6, {KT + 5*128 + 1024}, v5
v_add_u32 v5, {KT + 5*128}, v5
v_subrev_u32 v7, {KT + 5*128 - VT}, v5
v_add_u32 v8, {QT - VT}, v7
v_and_b32 v9, 7, v12
v_sub_u32 v10, 7, v13
v_xor_b32 v10, v10, v9
v_lshlrev_b32 v14, 8, v12
v_lshl_add_u32 v15, v10, 4, v14
v_add_u32 v15, {US}, v15
v_lshlrev_b32 v10, 1, v13
v_xor_b32 v10, v10, v9
v_lshl_add_u32 v16, v10, 4, v14
v_add_u32 v16, {QS}, v16
v_xor_b32 v17, 16, v16
v_lshrrev_b32 v9, 3, v0               ; ch
v_and_b32 v10, 7, v0
v_bfe_u32 v11, v0, 4, 3
v_xor_b32 v11, v11, v10
v_lshlrev_b32 v18, 7, v9
v_lshl_add_u32 v18, v11, 4, v18
v_add_u32 v18, {US}, v18
v_lshlrev_b32 v19, 12, v9
v_lshl_add_u32 v19, v10, 4, v19
s_lshl_b32 s{T0}, s{sXG}, 18
s_lshl_b32 s{T1}, s{sJ}, 7
s_sub_u32 s{T0}, s{T0}, s{T1}
s_add_u32 s{T0}, s{T0}, 3968
v_add_u32 v19, s{T0}, v19
v_lshrrev_b32 v9, 4, v0
v_and_b32 v11, 7, v9
v_xor_b32 v11, v11, v3
v_lshlrev_b32 v20, 8, v9
v_lshl_add_u32 v20, v11, 4, v20
v_add_u32 v20, {QS}, v20
v_lshlrev_b32 v21, 13, v9
v_lshl_add_u32 v21, v3, 4, v21
s_lshl_b32 s{T0}, s{sXG}, 18
s_lshl_b32 s{T1}, s{sJ}, 8
s_add_u32 s{T0}, s{T0}, s{T1}
s_add_u32 s{T0}, s{T0}, {QP}
v_add_u32 v21, s{T0}, v21""")
stamp("issued")
vm.wait("k")
A("s_barrier")
stamp("kvq in lds")
KR, VR, QR = 144, 156, 164
for j in range(0, 8, 2):
    A(f"ds_read2_b32 v[{KR+j}:{KR+j+1}], v5 offset0:{32*j} offset1:{32*j+32}")
A(f"ds_read2_b32 v[{KR+8}:{KR+9}], v6 offset0:0 offset1:32\nds_read_b32 v{KR+10}, v6 offset:256")
for j in range(0, 8, 2):
    A(f"ds_read2_b32 v[{VR+j}:{VR+j+1}], v7 offset0:{32*j} offset1:{32*j+32}")
for j in range(0, 8, 2):
    A(f"ds_read2_b32 v[{QR+j}:{QR+j+1}], v8 offset0:{32*j} offset1:{32*j+32}")
A(f"""s_mul_i32 s{T0}, s2, 1366
s_lshr_b32 s{T0}, s{T0}, 16
s_mul_i32 s{T1}, s{T0}, 48
s_sub_u32 s{T1}, s2, s{T1}
s_mul_i32 s{sM}, s{T0}, 12288
s_lshl_b32 s{T2}, s{T1}, 8
s_add_u32 s{sM}, s{sM}, s{T2}
s_add_u32 s{sM}, s{sM}, {MODF}
s_cmp_ge_u32 s2, 192
s_cselect_b32 s{sM}, {OOB}, s{sM}
s_mul_i32 s{T2}, s{T0}, {128*6144}
s_lshl_b32 s{T3}, s{T1}, 7
s_add_u32 s{T2}, s{T2}, s{T3}
s_cmp_ge_u32 s2, 192
s_cselect_b32 s{T2}, {OOB}, s{T2}
v_and_b32 v22, 7, v0
v_lshrrev_b32 v23, 3, v0
v_mul_u32_u24 v24, {4*6144}, v23
v_lshl_add_u32 v24, v22, 4, v24
v_add_u32 v24, s{T2}, v24
v_lshlrev_b32 v23, 3, v23
s_lshl_b32 s{T0}, s{T0}, 8
v_add_u32 v23, s{T0}, v23""")
vm.op(f"buffer_load_dwordx2 v[{CC}:{CC+1}], v23, s[{SC}:{SC+3}], 0 offen", "c")
for i in range(4):
    A(f"s_mov_b32 s{T0}, {6144*i}")
    vm.op(f"buffer_load_dwordx4 v[{WM+4*i}:{WM+4*i+3}], v24, s[{SWM}:{SWM+3}], s{T0} offen", "wm")
A(f"""v_lshlrev_b32 v22, 4, v2
s_lshl_b32 s{T0}, s2, 13
s_lshl_b32 s{T1}, s{sWAVE}, 11
s_add_u32 s{T0}, s{T0}, s{T1}
v_add_u32 v22, s{T0}, v22""")
vm.op(f"buffer_load_dwordx4 v[{SR}:{SR+3}], v22, s[{SQ}:{SQ+3}], 0 offen", "sr")
vm.op(f"buffer_load_dwordx4 v[{SR+4}:{SR+7}], v22, s[{SQ}:{SQ+3}], 0 offen offset:1024", "sr")
WF, KFF, O = 100, 108, 172
KV = [180 + 2 * r for r in range(8)]
A(f"""v_lshlrev_b32 v{WF+0}, 16, v{W+0}
v_lshlrev_b32 v{WF+1}, 16, v{W+2}
v_and_b32 v{WF+2}, 0xffff0000, v{W+0}
v_and_b32 v{WF+3}, 0xffff0000, v{W+2}
v_lshlrev_b32 v{WF+4}, 16, v{W+1}
v_lshlrev_b32 v{WF+5}, 16, v{W+3}
v_and_b32 v{WF+6}, 0xffff0000, v{W+1}
v_and_b32 v{WF+7}, 0xffff0000, v{W+3}
s_waitcnt lgkmcnt(8)""")
for j in range(11):
    A(f"v_lshlrev_b32 v{KFF+2*j}, 16, v{KR+j}\nv_and_b32 v{KFF+2*j+1}, 0xffff0000, v{KR+j}")
A(f"""s_waitcnt lgkmcnt(0)
ds_write_b128 v16, v[{QR}:{QR+3}]
ds_write_b128 v17, v[{QR+4}:{QR+7}]""")
for r in range(8):
    A(f"v_pk_mul_f32 v[{KV[r]}:{KV[r]+1}], v[{KFF+2*r}:{KFF+2*r+1}], v[{WF+6}:{WF+7}]")
for t in range(1, 4):
    for r in range(8):
        A(f"v_pk_fma_f32 v[{KV[r]}:{KV[r]+1}], v[{KFF+2*(r+t)}:{KFF+2*(r+t)+1}], v[{WF+2*(3-t)}:{WF+2*(3-t)+1}], v[{KV[r]}:{KV[r]+1}]")
for r in range(8):
    A(f"v_lshlrev_b32 v{KFF+2*r}, 16, v{VR+r}\nv_and_b32 v{KFF+2*r+1}, 0xffff0000, v{VR+r}")
for r in range(8):
    A(f"v_pk_mul_f32 v[{KV[r]}:{KV[r]+1}], v[{KV[r]}:{KV[r]+1}], v[{KFF+2*r}:{KFF+2*r+1}]")
for e in range(2):
    for j in range(4):
        A(f"v_cvt_pk_bf16_f32 v{O+4*e+j}, v{KV[7-2*j]+e}, v{KV[6-2*j]+e}")
    A(f"ds_write_b128 v15, v[{O+4*e}:{O+4*e+3}] offset:{128*e}")
A(f"""s_mov_b32 s{T1}, 131072
s_waitcnt lgkmcnt(0)
s_barrier
ds_read_b128 v[144:147], v18
ds_read_b128 v[148:151], v18 offset:4096
ds_read_b128 v[152:155], v20
ds_read_b128 v[156:159], v20 offset:4096
s_waitcnt lgkmcnt(3)""")
vm.op(f"buffer_store_dwordx4 v[144:147], v19, {W4}, 0 offen sc1", "st1")
A("s_waitcnt lgkmcnt(2)")
vm.op(f"buffer_store_dwordx4 v[148:151], v19, {W4}, s{T1} offen sc1", "st1")
A("s_waitcnt lgkmcnt(1)")
vm.op(f"buffer_store_dwordx4 v[152:155], v21, {W4}, 0 offen sc1", "st1")
A("s_waitcnt lgkmcnt(0)")
vm.op(f"buffer_store_dwordx4 v[156:159], v21, {W4}, s{T1} offen sc1", "st1")
stamp("st1 issued")
vm.wait("kf", "D")
A(f"""v_lshlrev_b32 v9, 4, v0
v_mov_b32 v120, 0
v_mov_b32 v121, 0
v_mov_b32 v122, 0
v_mov_b32 v123, 0
ds_write_b128 v9, v[{KF0}:{KF0+3}] offset:{L_KF + 32}
ds_write_b128 v9, v[{KF0+4}:{KF0+7}] offset:{L_KF + KFSZ + 32}
v_mul_u32_u24 v22, {OSZ}, v4
v_lshl_add_u32 v22, v3, 4, v22
v_lshrrev_b32 v10, 1, v2
v_and_b32 v10, 3, v10
v_mul_u32_u24 v10, 4128, v10
v_and_b32 v11, 1, v2
v_lshl_add_u32 v10, v11, 4, v10
ds_write_b128 v22, v[120:123] offset:{L_U + 2048}
ds_write_b128 v10, v[120:123] offset:{L_KF}""")
vm.wait("c")
A(f"""v_lshlrev_b32 v{CC+2}, 16, v{CC+1}
v_and_b32 v{CC+3}, 0xffff0000, v{CC+1}
v_and_b32 v{CC+1}, 0xffff0000, v{CC}
v_lshlrev_b32 v{CC}, 16, v{CC}""")
for i in range(4): A(f"v_mul_f32 v{100+i}, 0xbfb8aa3b, v{CC+i}")
for i in range(4): A(f"v_exp_f32 v{100+i}, v{100+i}")
for i in range(4): A(f"v_add_f32 v{100+i}, 1.0, v{100+i}")
for i in range(4): A(f"v_rcp_f32 v{100+i}, v{100+i}")
for i in range(4): A(f"v_mul_f32 v{CC+i}, v{CC+i}, v{100+i}")
for i in range(0, 4, 2):
    A(f"""v_cvt_pk_bf16_f32 v100, v{CC+i}, v{CC+i+1}
    v_lshlrev_b32 v{CC+i}, 16, v100
    v_and_b32 v{CC+i+1}, 0xffff0000, v100""")
MA = 104
vm.wait("wm")
for i in range(4):
    for j in range(4):
        t = 112 + 2 * (j % 2)
        A(f"v_lshlrev_b32 v{t}, 16, v{WM+4*i+j}\nv_and_b32 v{t+1}, 0xffff0000, v{WM+4*i+j}")
        if i == 0:
            A(f"v_pk_mul_f32 v[{MA+2*j}:{MA+2*j+1}], v[{t}:{t+1}], v[{CC}:{CC+1}] op_sel_hi:[1,0]")
        else:
            sel = "op_sel_hi:[1,0,1]" if i % 2 == 0 else "op_sel:[0,1,0] op_sel_hi:[1,1,1]"
            A(f"v_pk_fma_f32 v[{MA+2*j}:{MA+2*j+1}], v[{t}:{t+1}], v[{CC+(i//2)*2}:{CC+(i//2)*2+1}], v[{MA+2*j}:{MA+2*j+1}] {sel}")
A(f"""v_lshrrev_b32 v11, 4, v0
v_lshlrev_b32 v11, 8, v11
v_and_b32 v10, 7, v0
v_lshl_add_u32 v11, v10, 5, v11""")
for j in range(8):
    A(f"v_add_f32_dpp v{MA+j}, v{MA+j}, v{MA+j} row_shr:8 row_mask:0xf bank_mask:0xf bound_ctrl:0")
A(f"""v_cmp_le_u32 vcc, 8, v3
s_and_saveexec_b64 s[{SX}:{SX+1}], vcc
ds_write_b128 v11, v[{MA}:{MA+3}] offset:{L_MODP}
ds_write_b128 v11, v[{MA+4}:{MA+7}] offset:{L_MODP+16}
s_mov_b64 exec, s[{SX}:{SX+1}]""")
vm.wait("st1", extra="lgkmcnt(0)")
A(f"s_add_u32 s{sEP}, s{sEP}, 0x9e3779b9\ns_barrier")
set_flag(0, F1A, f"s_lshl_b32 s{T0}, s{sXG}, 5\ns_add_u32 s{T0}, s{T0}, s{sJ}", 10, 11)
stamp("flag1a")
PKR = 144
for u in range(4):
    A(f"ds_read_b64_tr_b16 v[{PKR+4*u}:{PKR+4*u+1}], v{PA+u}\nds_read_b64_tr_b16 v[{PKR+4*u+2}:{PKR+4*u+3}], v{PA+4+u}")
KFM = 56
A(f"""ds_read_b32 v{KFM}, v9 offset:{L_KF + 28}
ds_read_b32 v{KFM+1}, v9 offset:{L_KF + KFSZ + 28}
s_mov_b32 s47, 0""")
for u in range(4):
    A(f"s_waitcnt lgkmcnt({8-2*u})")
    vm.op(f"buffer_store_dwordx4 v[{PKR+4*u}:{PKR+4*u+3}], v{PD}, {W4}, s47 offen sc1", "st1b")
    if u < 3:
        A(f"s_add_u32 s47, s47, s45")
        if u == 1: A(f"s_add_u32 s47, s47, s46")
A(f"""s_cmp_lg_u32 s{sWAVE}, 1
s_cbranch_scc1 modf_done
v_lshlrev_b32 v11, 2, v2""")
for p in range(16):
    A(f"ds_read_b32 v{160+p}, v11 offset:{L_MODP+256*p}")
A("s_waitcnt lgkmcnt(0)")
for st in (8, 4, 2, 1):
    for p in range(st):
        A(f"v_add_f32 v{160+p}, v{160+p}, v{160+p+st}")
A(f"""v_add_u32 v10, s{sM}, v11
buffer_store_dword v160, v10, {W4}, 0 offen sc1
modf_done:""")
SA = 100
for i in range(4): A(f"v_mov_b32 v{SA+i}, 0")
for j in range(4):
    for rr in range(2):
        A(f"""v_dot2_f32_bf16 v{SA+2*rr}, v{SR+4*rr+j}, s{sONES}, v{SA+2*rr}
        v_dot2_f32_bf16 v{SA+2*rr+1}, v{SR+4*rr+j}, v{SR+4*rr+j}, v{SA+2*rr+1}""")
A("s_waitcnt lgkmcnt(0)")
for c in range(2):
    o = 124 + 4 * c
    A(f"v_alignbit_b32 v{o}, v{KF0+4*c}, v{KFM+c}, 16")
    for j in range(1, 4):
        A(f"v_alignbit_b32 v{o+j}, v{KF0+4*c+j}, v{KF0+4*c+j-1}, 16")
    A(f"ds_write_b128 v9, v[{o}:{o+3}] offset:{L_KF + c*KFSZ + 4128 + 32}")
for ctrl in ("row_shr:1", "row_shr:2", "row_shr:4", "row_shr:8"):
    for j in range(4):
        A(f"v_add_f32_dpp v{SA+j}, v{SA+j}, v{SA+j} {ctrl} row_mask:0xf bank_mask:0xf bound_ctrl:0")
for j in range(4):
    A(f"v_add_f32_dpp v{SA+j}, v{SA+j}, v{SA+j} row_bcast:15 row_mask:0xa bank_mask:0xf")
for j in range(4):
    A(f"v_add_f32_dpp v{SA+j}, v{SA+j}, v{SA+j} row_bcast:31 row_mask:0xc bank_mask:0xf")
a_ = capture(lambda: ln_final(SA, SA + 1, 104, 105)); b_ = capture(lambda: ln_final(SA + 2, SA + 3, 106, 107))
for x, y in zip(a_, b_):
    A(x)
    if y != "s_nop 0": A(y)
A(f"""s_lshl_b32 s{T0}, s2, 6
s_lshl_b32 s{T1}, s{sWAVE}, 4
s_add_u32 s{T0}, s{T0}, s{T1}
s_add_u32 s{T0}, s{T0}, {ST1}
v_mov_b32 v9, s{T0}
s_mov_b32 s{SX}, 0
s_mov_b32 s{SX+1}, 0x80000000
s_mov_b64 exec, s[{SX}:{SX+1}]""")
vm.op(f"buffer_store_dwordx4 v[104:107], v9, {W4}, 0 offen sc1", "st1b")
A("s_mov_b64 exec, -1")
stamp("p1b stores issued")
sCH, sHF = 44, 45
A.srd(SM1, 80, F * 2); A.srd(SM2, 84, 1024)
A(f"""s_lshr_b32 s{sCH}, s{sWAVE}, 1
s_and_b32 s{sHF}, s{sWAVE}, 1
v_min_u32 v12, 31, v2
v_lshlrev_b32 v12, 6, v12
s_lshl_b32 s{T0}, s{sXG}, 11
s_add_u32 s{T0}, s{T0}, {F1A}
v_add_u32 v12, s{T0}, v12
v_lshlrev_b32 v13, 6, v2
v_lshlrev_b32 v5, 4, v0
s_lshl_b32 s{T0}, s{sD0}, 12
v_add_u32 v5, s{T0}, v5
v_add_u32 v6, 4096, v5
v_and_b32 v7, 1, v0
v_mul_u32_u24 v7, {OSZ}, v7
v_lshrrev_b32 v8, 1, v0
v_lshl_add_u32 v7, v8, 4, v7
v_lshlrev_b32 v15, 1, v4
v_sub_u32 v15, v15, v3
v_lshlrev_b32 v15, 4, v15
s_mul_i32 s{T0}, s{sCH}, {USZ}
s_lshl_b32 s{T1}, s{sHF}, 7
s_add_u32 s{T0}, s{T0}, s{T1}
s_add_u32 s{T0}, s{T0}, {L_U + 240}
v_add_u32 v15, s{T0}, v15
v_and_b32 v8, 1, v3
v_mul_u32_u24 v8, 4130, v8
v_lshlrev_b32 v16, 6, v4
v_lshl_add_u32 v16, v3, 1, v16
v_sub_u32 v16, v16, v8
s_mul_i32 s{T0}, s{sCH}, {KFSZ}
s_lshl_b32 s{T1}, s{sHF}, 8
s_add_u32 s{T0}, s{T0}, s{T1}
s_add_u32 s{T0}, s{T0}, {L_KF + 4132}
v_add_u32 v16, s{T0}, v16
v_add_u32 v17, 1024, v16
v_add_u32 v18, 2048, v16
v_add_u32 v19, 3072, v16
v_lshlrev_b32 v20, 16, v{DD}
v_and_b32 v21, 0xffff0000, v{DD}
v_lshlrev_b32 v8, 6, v3
v_lshl_add_u32 v8, v4, 4, v8          ; 64a' + 16g
s_lshl_b32 s{T0}, s{sD0}, 12
s_lshl_b32 s{T1}, s{sWAVE}, 11
s_add_u32 s{T0}, s{T0}, s{T1}
v_add_u32 v14, s{T0}, v8
v_lshlrev_b32 v63, 1, v8
s_lshl_b32 s{T0}, s{sWAVE}, 12
s_add_u32 s{T0}, s{T0}, {ST1}
v_add_u32 v63, s{T0}, v63
v_lshrrev_b32 v9, 2, v3
v_cmp_eq_u32 vcc, 3, v9
v_lshlrev_b32 v23, 11, v9
v_and_b32 v10, 3, v3
v_cndmask_b32 v11, 0, 1, vcc
v_lshl_add_u32 v23, v11, 11, v23
v_mul_u32_u24 v10, 12288, v10
s_lshl_b32 s{T0}, s{sD0}, 2
s_add_u32 s{T0}, s{T0}, {MODF}
v_add3_u32 v23, v23, v10, s{T0}
v_and_b32 v9, 1, v9
v_cvt_f32_u32 v62, v9
v_lshlrev_b32 v10, 4, v2
s_mul_i32 s{T0}, s{sFG}, 11
s_add_u32 s46, s{T0}, s{sWAVE}         ; F0
s_lshl_b32 s{T0}, s46, 14
s_add_u32 s{T0}, s{T0}, {W1P}
v_add_u32 v248, s{T0}, v10
v_add_u32 v249, 0x10000, v248
v_add_u32 v250, 0x20000, v248
s_add_u32 s{T0}, s46, 8
s_cmp_ge_u32 s{T0}, 86
s_cselect_b32 s47, {OOB}, 0
s_cmp_eq_u32 s{sWAVE}, 3
s_cselect_b32 s47, {OOB}, s47
v_add_u32 v250, s47, v250
""")
vm.wait("st1b", extra="lgkmcnt(0)")
A("s_barrier")
set_flag(1, F1B, f"s_mov_b32 s{T0}, s2", 10, 11, pre="s_waitcnt vmcnt(0)")
stamp("flag1b")
ACC = 24
AB = [64, 96]; BB_ = [144, 176]
UL, QE, SE, ME = 208, 216, 224, 240
def aload(o, st):
    for q in range(8):
        r = AB[st] + 4 * q; base = 128 * (q & 1) + 4 * o
        A(f"ds_read2_b32 v[{r}:{r+1}], v{16+(q>>1)} offset0:{base} offset1:{base+1}")
        A(f"ds_read2_b32 v[{r+2}:{r+3}], v{16+(q>>1)} offset0:{base+2} offset1:{base+3}")
def bload(o, st):
    for dl in range(8):
        r = BB_[st] + 4 * dl
        A(f"ds_read_b128 v[{r}:{r+3}], v15 offset:{(o&1)*OSZ + 16*(112-16*dl+(o>>1))}")
aload(0, 0)
for i in range(32): A(f"v_mov_b32 v{ACC+i}, 0")
sal = []
sal += [f"s_lshr_b32 s{T4}, s{sJ}, 3", f"s_lshl_b32 s{sROT1}, s{T4}, 1", f"s_add_u32 s{sROT1}, s{sROT1}, s{sFG}",
        f"s_lshl_b32 s{sROT1}, s{sROT1}, 1", f"s_and_b32 s{sROT1}, s{sROT1}, 15"]
for t in range(16):
    sal += [f"s_add_u32 s{ROT1[t]}, s{sROT1}, {t}", f"s_and_b32 s{ROT1[t]}, s{ROT1[t]}, 15", f"s_lshl_b32 s{ROT1[t]}, s{ROT1[t]}, 10"]
sal += [f"s_mul_i32 s{T4}, s{T4}, 11", f"s_lshr_b32 s{T4}, s{T4}, 1", f"s_mul_i32 s{T5}, s{sFG}, 3", f"s_add_u32 s{T4}, s{T4}, s{T5}",
        f"s_cmp_ge_u32 s{sWAVE}, 2", f"s_cselect_b32 s{T5}, 21, 99",
        f"s_cmp_ge_u32 s{T4}, 22", f"s_cselect_b32 s15, 22, 0", f"s_sub_u32 s{T4}, s{T4}, s15"]
for i in range(22):
    r = ROT2[i]
    sal += [(f"s_lshl_b32 s{r}, s{T4}, 12", f"s_cmp_eq_u32 s{T4}, s{T5}", f"s_cselect_b32 s{r}, {OOB}, s{r}"),
            (f"s_add_u32 s{T4}, s{T4}, 1", f"s_cmp_eq_u32 s{T4}, 22", f"s_cselect_b32 s{T4}, 0, s{T4}")]
for x in sal: A(x if isinstance(x, str) else "\n".join(x))
sal = []
poll(12, 1, 0, 22, "p1a")
A("s_barrier")
stamp("poll1a done")
vm.op(f"buffer_load_dwordx4 v[{UL}:{UL+3}], v5, {W4}, 0 offen sc1", "u")
vm.op(f"buffer_load_dwordx4 v[{UL+4}:{UL+7}], v6, {W4}, 0 offen sc1", "u")
A(f"s_mov_b32 s{T2}, {QP}")
for jn in range(2):
    vm.op(f"buffer_load_dwordx4 v[{QE+4*jn}:{QE+4*jn+3}], v14, {W4}, s{T2} offen offset:{1024*jn} sc1", "qe")
for k in range(4):
    A(f"s_mov_b32 s{T1}, {F1B + 4096*k}")
    vm.op(f"buffer_load_dword v{56+k}, v13, {W4}, s{T1} offen sc1", "f1b")
vm.wait("u")
A(f"""ds_write_b128 v7, v[{UL}:{UL+3}] offset:{L_U}
ds_write_b128 v7, v[{UL+4}:{UL+7}] offset:{L_U+USZ}
s_waitcnt lgkmcnt(0)
s_barrier""")
bload(0, 0)
stamp("u in lds")
w1q = [(t, j) for t in range(16) for j in range(3)]
def w1_issue(n):
    for _ in range(n):
        if not w1q: return
        t, j = w1q.pop(0)
        vm.op(f"buffer_load_dwordx4 a[{(t*3+j)*4}:{(t*3+j)*4+3}], v{248+j}, {W4}, s{ROT1[t]} offen sc1", f"w1_{t}")
def me_final():
    vm.wait("me")
    for sh in (1, 2):
        A("s_nop 1")
        for k in range(2):
            A(f"v_add_f32_dpp v{UL+k}, v{UL+k}, v{UL+k} row_shr:{sh} row_mask:0xf bank_mask:0xf bound_ctrl:0")
    A(f"""v_cvt_pk_bf16_f32 v{UL+2}, v{UL}, v{UL+1}
    v_lshlrev_b32 v{UL}, 16, v{UL+2}
    v_and_b32 v{UL+1}, 0xffff0000, v{UL+2}
    v_add_f32 v{UL}, v{UL}, v62
    v_add_f32 v{UL+1}, v{UL+1}, v62
    v_cvt_pk_bf16_f32 v{UL+2}, v{UL}, v{UL+1}
    v_lshlrev_b32 v{UL}, 16, v{UL+2}
    v_and_b32 v{UL+1}, 0xffff0000, v{UL+2}
    s_nop 1""")
    for i in range(4):
        for k in range(2):
            A(f"v_mov_b32_dpp v{ME+2*i+k}, v{UL+k} row_newbcast:{4*i+3} row_mask:0xf bank_mask:0xf")
for o in range(4):
    st = o & 1
    A("s_waitcnt lgkmcnt(0)")
    lds = []
    if o + 1 < 4:
        lds = capture(lambda: (bload(o + 1, st ^ 1), aload(o + 1, st ^ 1)))
    side = []; cnt = 0
    if o == 3: side = capture(me_final)
    for dl in range(8):
        for q in range(8 - dl):
            n = q + dl
            A(f"v_mfma_f32_16x16x32_bf16 v[{ACC+4*n}:{ACC+4*n+3}], v[{AB[st]+4*q}:{AB[st]+4*q+3}], v[{BB_[st]+4*dl}:{BB_[st]+4*dl+3}], v[{ACC+4*n}:{ACC+4*n+3}]")
            cnt += 1
            if lds: A(lds.pop(0))
            if o > P("F1B_O", 0) and o >= P("W1_O0", 1) and cnt % P("W1_EVERY", 4) == 0: w1_issue(1)
            for _ in range(2 if o == 0 else 1):
                if sal:
                    x = sal.pop(0)
                    A(x if isinstance(x, str) else "\n".join(x))
            if side: A(side.pop(0))
    for x in side: A(x)
    if o == P("F1B_O", 0):
        vm.wait("f1b")
        A(f"""v_xor_b32 v56, s{sEP}, v56
        v_xor_b32 v57, s{sEP}, v57
        v_xor_b32 v58, s{sEP}, v58
        v_xor_b32 v59, s{sEP}, v59
        v_or3_b32 v56, v56, v57, v58
        v_or_b32 v56, v56, v59
        v_cmp_ne_u32 vcc, 0, v56
        s_nop 1
        s_cbranch_vccz p1b_done
        v_add_u32 v22, {F1B}, v13""")
        poll(22, 4, 4096, 56, "p1b", only_wave0=False)
        vm.op(f"buffer_load_dwordx2 v[{UL}:{UL+1}], v23, {W4}, 0 offen sc1", "me")
        for jn in range(2):
            for hh in range(2):
                vm.op(f"buffer_load_dwordx4 v[{SE+8*jn+4*hh}:{SE+8*jn+4*hh+3}], v63, {W4}, 0 offen offset:{2048*jn+16*hh} sc1", "se")
        if P("WTOUCH", 0):
            A(f"""s_mul_i32 s{T0}, s{sJ}, 44032
            v_lshlrev_b32 v22, 7, v0
            v_add_u32 v22, s{T0}, v22
            v_add_u32 v60, 32768, v22
            v_cmp_gt_u32 vcc, 88, v0
            v_mov_b32 v61, {OOB}
            s_mov_b32 s{T0}, {W1P}
            s_mov_b32 s{T1}, {W2P}
            v_cndmask_b32 v60, v61, v60, vcc""")
            for (ad, so) in ((22, T0), (60, T0), (22, T1), (60, T1)):
                vm.op(f"buffer_load_dword v61, v{ad}, {W4}, s{so} offen sc1", "touch")
        stamp("flag1b all seen")
assert not sal
stamp("conv mfma done")
A(f"""v_lshlrev_b32 v9, 4, v2
s_lshl_b32 s{T0}, s{sWAVE}, 13
s_add_u32 s{T0}, s{T0}, {L_RED}
v_add_u32 v10, s{T0}, v9
s_lshl_b32 s{T0}, s{sWAVE}, 11
s_add_u32 s{T0}, s{T0}, {L_RED}
v_add_u32 v11, s{T0}, v9
v_lshrrev_b32 v5, 1, v4
v_sub_u32 v5, 1, v5
v_mul_u32_u24 v5, {OSZ}, v5
v_lshlrev_b32 v6, 4, v3
v_sub_u32 v5, v5, v6
v_and_b32 v6, 1, v4
v_lshlrev_b32 v6, 3, v6
v_sub_u32 v5, v5, v6
s_lshl_b32 s{T0}, s{sWAVE}, 9
s_sub_u32 s{T0}, {L_U + 16*(127-16) + 8}, s{T0}
v_add_u32 v5, s{T0}, v5""")
for n in range(8):
    A(f"ds_write_b128 v10, v[{ACC+4*n}:{ACC+4*n+3}] offset:{1024*n}")
UE = 128
for jn in range(2):
    for c in range(2):
        A(f"ds_read_b64 v[{UE+4*jn+2*c}:{UE+4*jn+2*c+1}], v5 offset:{256*(1-jn) + c*USZ}")
A("s_waitcnt lgkmcnt(0)\ns_barrier")
RR = 64
for jn in range(2):
    for src in range(4):
        r = RR + 16 * jn + 4 * src
        A(f"ds_read_b128 v[{r}:{r+3}], v11 offset:{8192*src + 1024*jn}")
vm.wait("qe", "se", "me")
XO, XS = 112, 120
SAp, C1p, GAp, C2p = ME, ME + 2, ME + 4, ME + 6
A(f"s_mov_b32 s{T2}, {X1S}\ns_mov_b32 s{T3}, {X1P}")
for jn in range(2):
    A(f"s_waitcnt lgkmcnt({4*(1-jn)})")
    seqs = []
    for r in range(4):
        Y, QF, QC, H, X = [24 + 10 * r + 2 * k for k in range(5)]
        b = RR + 16 * jn
        dw = 1 if r < 2 else 0
        sq = []
        for c in range(2):
            src = UE + 4 * jn + 2 * c + dw
            sq.append(f"v_and_b32 v{X+c}, 0xffff0000, v{src}" if r % 2 == 0 else f"v_lshlrev_b32 v{X+c}, 16, v{src}")
        st = SE + 8 * jn + 2 * r
        sq += f"""v_add_f32 v{Y}, v{b+r}, v{b+4+r}
        v_add_f32 v{Y+1}, v{b+8+r}, v{b+12+r}
        v_lshlrev_b32 v{QF}, 16, v{QE+4*jn+r}
        v_and_b32 v{QF+1}, 0xffff0000, v{QE+4*jn+r}
        v_pk_fma_f32 v[{Y}:{Y+1}], v[{X}:{X+1}], v[20:21], v[{Y}:{Y+1}]
        v_pk_add_f32 v[{QC}:{QC+1}], v[{QF}:{QF+1}], v[{st}:{st+1}] op_sel:[0,1] op_sel_hi:[1,1] neg_lo:[0,1] neg_hi:[0,1]
        v_pk_mul_f32 v[{H}:{H+1}], v[{QC}:{QC+1}], v[{st}:{st+1}] op_sel_hi:[1,0]
        v_pk_fma_f32 v[{H}:{H+1}], v[{H}:{H+1}], v[{C1p}:{C1p+1}], v[{SAp}:{SAp+1}]
        v_pk_mul_f32 v[{H}:{H+1}], v[{H}:{H+1}], v[{Y}:{Y+1}]
        v_pk_fma_f32 v[{QC}:{QC+1}], v[{H}:{H+1}], v[{GAp}:{GAp+1}], v[{QC}:{QC+1}]
        v_pk_fma_f32 v[{QF}:{QF+1}], v[{H}:{H+1}], v[{GAp}:{GAp+1}], v[{QF}:{QF+1}]
        v_pk_mul_f32 v[{QC}:{QC+1}], v[{QC}:{QC+1}], v[{C2p}:{C2p+1}]
        v_cvt_pk_bf16_f32 v{XO+4*jn+r}, v{QF}, v{QF+1}
        v_cvt_pk_bf16_f32 v{XS+4*jn+r}, v{QC}, v{QC+1}""".split("\n")
        seqs.append(sq)
    for grp in zip(*seqs):
        for x in grp: A(x)
    vm.op(f"buffer_store_dwordx4 v[{XS+4*jn}:{XS+4*jn+3}], v14, {W4}, s{T2} offen offset:{1024*jn} sc1", "st2")
    vm.op(f"buffer_store_dwordx4 v[{XO+4*jn}:{XO+4*jn+3}], v14, {W4}, s{T3} offen offset:{1024*jn} sc1", "st2")
stamp("st2 issued")
vm.wait("st2")
A("s_barrier")
set_flag(0, F2, f"s_mov_b32 s{T0}, s2", 10, 11)
stamp("flag2")
TP = 144
A(f"""v_lshlrev_b32 v9, 3, v0
v_add_u32 v9, {MODF + 3*2048}, v9
v_lshlrev_b32 v11, 3, v4
s_lshl_b32 s{T0}, s46, 5
v_add_u32 v11, s{T0}, v11
v_lshlrev_b32 v15, 3, v3
s_lshl_b32 s{T0}, s{sR}, 9
s_lshl_b32 s{T1}, s{sWAVE}, 7
s_add_u32 s{T0}, s{T0}, s{T1}
s_add_u32 s{T0}, s{T0}, {ST1 + 4}
v_add_u32 v15, s{T0}, v15""")
for ks in range(4):
    A(f"s_mov_b32 s{T1}, {12288*ks}\ns_mov_b32 s{T0}, {12288*ks+4096}")
    for sec in range(3):
        so, off = (T1, 2048 * sec) if sec < 2 else (T0, 0)
        vm.op(f"buffer_load_dwordx2 v[{TP+8*sec+2*ks}:{TP+8*sec+2*ks+1}], v9, {W4}, s{so} offen offset:{off} sc1", "tp")
B1R, M1R = 208, 140
for j in range(3):
    vm.op(f"buffer_load_dwordx2 v[{B1R+2*j}:{B1R+2*j+1}], v11, s[{SM1}:{SM1+3}], 0 offen offset:{128*j}", "b1")
vm.op(f"buffer_load_dword v{M1R}, v15, {W4}, 0 offen sc1", "m1")
w1_issue(99)
vm.wait("tp")
for sec in range(3):
    b = TP + 8 * sec
    A(f"""v_pk_add_f32 v[{b}:{b+1}], v[{b}:{b+1}], v[{b+2}:{b+3}]
    v_pk_add_f32 v[{b+4}:{b+5}], v[{b+4}:{b+5}], v[{b+6}:{b+7}]""")
for sec in range(3):
    b = TP + 8 * sec
    A(f"""v_pk_add_f32 v[{b}:{b+1}], v[{b}:{b+1}], v[{b+4}:{b+5}]
    v_cvt_pk_bf16_f32 v{b+2}, v{b}, v{b+1}""")
A(f"""v_lshlrev_b32 v{TP+8}, 16, v{TP+10}
v_and_b32 v{TP+9}, 0xffff0000, v{TP+10}
v_lshlrev_b32 v{TP+16}, 16, v{TP+18}
v_and_b32 v{TP+17}, 0xffff0000, v{TP+18}
v_add_f32 v{TP+8}, 1.0, v{TP+8}
v_add_f32 v{TP+9}, 1.0, v{TP+9}
v_cvt_pk_bf16_f32 v{TP+10}, v{TP+8}, v{TP+9}
v_lshlrev_b32 v9, 2, v0
v_add_u32 v9, {L_TB}, v9
v_lshlrev_b32 v10, 3, v0
v_add_u32 v10, {L_TGB}, v10
ds_write_b32 v9, v{TP+2}
ds_write_b32 v9, v{TP+2} offset:1024
ds_write_b32 v9, v{TP+10} offset:{L_TC2-L_TB}
ds_write_b32 v9, v{TP+10} offset:{L_TC2-L_TB+1024}
ds_write_b64 v10, v[{TP+16}:{TP+17}]
v_and_b32 v9, 1, v3
v_mul_u32_u24 v9, {L_TC2-L_TB}, v9
v_lshl_add_u32 v9, v4, 4, v9
s_lshl_b32 s{T0}, s{sROT1}, 6
s_add_u32 s{T0}, s{T0}, {L_TB}
v_add_u32 v9, s{T0}, v9""")
A(f"""v_lshlrev_b32 v5, 13, v4
s_lshl_b32 s{T0}, s{sWAVE}, 15
s_lshl_b32 s{T1}, s{sR}, 8
s_add_u32 s{T0}, s{T0}, s{T1}
v_add_u32 v5, s{T0}, v5
s_and_b32 s{T1}, s{sWAVE}, 1
s_lshl_b32 s{T1}, s{T1}, 2
v_xor_b32 v7, s{T1}, v3
v_lshl_add_u32 v5, v7, 4, v5
v_add_u32 v6, {X1P}, v5
v_add_u32 v5, {X1S}, v5
v_and_b32 v7, 1, v4
v_lshlrev_b32 v8, 10, v4
v_lshl_add_u32 v8, v3, 2, v8
v_add_u32 v8, {L_X}, v8""")
for sg in range(4):
    A(f"v_xor_b32 v10, {sg}, v7\nv_lshl_add_u32 v{16+sg}, v10, 6, v8")
A(f"v_xor_b32 v10, s{sWAVE}, v7\nv_lshl_add_u32 v141, v10, 6, v8\nv_subrev_u32 v141, {L_X-L_XP}, v141")
A(f"""v_lshlrev_b32 v10, 4, v2
s_lshl_b32 s{T0}, s{sWAVE}, 10
v_add_u32 v11, s{T0}, v10
s_mul_i32 s{T0}, s{sFG}, {2*86*1024}
s_add_u32 s{T0}, s{T0}, {W2P}
v_add_u32 v20, s{T0}, v11
v_add_u32 v21, {86*1024}, v20
s_mul_i32 s{T0}, s{sR}, {2*86*1024}
s_add_u32 s{T0}, s{T0}, {HID}
v_add_u32 v22, s{T0}, v11
v_add_u32 v23, {86*1024}, v22
v_add_u32 v12, {F2}, v13
s_mul_i32 s{T0}, s{sWAVE}, 384
s_add_u32 s{T0}, s{T0}, {L_BB}
v_lshl_add_u32 v14, v4, 4, s{T0}
s_waitcnt lgkmcnt(0)
s_barrier""")
MBF = 64
for t in range(16):
    A(f"ds_read_b128 v[{MBF+4*t}:{MBF+4*t+3}], v9 offset:{64*t}")
MD = 24
for i in range(12): A(f"v_mov_b32 v{MD+i}, 0")
A("s_waitcnt lgkmcnt(0)")
for t in range(16):
    vm.wait(f"w1_{t}")
    for j in range(3):
        A(f"v_mfma_f32_16x16x32_bf16 v[{MD+4*j}:{MD+4*j+3}], a[{(t*3+j)*4}:{(t*3+j)*4+3}], v[{MBF+4*t}:{MBF+4*t+3}], v[{MD+4*j}:{MD+4*j+3}]")
stamp("MB pass done")
def w2reg(i, cb):
    k = 2 * i + cb
    return f"a[{192+4*k}:{195+4*k}]" if k < 16 else f"v[{144+4*(k-16)}:{147+4*(k-16)}]"
w2q = [(i, cb) for i in range(22) for cb in range(2)]
def w2_issue(n):
    for _ in range(n):
        if not w2q: return
        i, cb = w2q.pop(0)
        vm.op(f"buffer_load_dwordx4 {w2reg(i,cb)}, v{20+cb}, {W4}, s{ROT2[i]} offen sc1", "w2")
A("s_nop 7\ns_nop 1")
Bq = 36
for j in range(3):
    for r in range(4):
        A(f"v_mov_b32_dpp v{Bq+4*j+r}, v{MD+4*j+r} row_newbcast:0 row_mask:0xf bank_mask:0xf")
        A(f"v_mov_b32_dpp v{Bq+12+4*j+r}, v{MD+4*j+r} row_newbcast:1 row_mask:0xf bank_mask:0xf")
for j in range(3):
    A(f"""v_lshlrev_b32 v60, 16, v{B1R+2*j}
    v_and_b32 v61, 0xffff0000, v{B1R+2*j}
    v_lshlrev_b32 v62, 16, v{B1R+2*j+1}
    v_and_b32 v63, 0xffff0000, v{B1R+2*j+1}
    v_pk_add_f32 v[{Bq+4*j}:{Bq+4*j+1}], v[{Bq+4*j}:{Bq+4*j+1}], v[60:61]
    v_pk_add_f32 v[{Bq+4*j+2}:{Bq+4*j+3}], v[{Bq+4*j+2}:{Bq+4*j+3}], v[62:63]""")
A(f"s_mov_b32 s{SX}, 0x00010001\ns_mov_b32 s{SX+1}, 0x00010001\ns_mov_b64 exec, s[{SX}:{SX+1}]")
for i in range(6):
    A(f"ds_write_b128 v14, v[{Bq+4*i}:{Bq+4*i+3}] offset:{64*i}")
A("s_mov_b64 exec, -1")
w2_issue(P("W2_EARLY", 8))
G1 = 24; SAC = 128
A("s_waitcnt lgkmcnt(0)")
for i in range(48): A(f"v_mov_b32 v{G1+i}, 0")
stamp("pre poll2")
poll(12, 4, 4096, 136, "p2")
A(f"""s_cmp_lg_u32 s2, 0
s_cbranch_scc1 noep
s_cmp_lg_u32 s{sWAVE}, 0
s_cbranch_scc1 noep
v_mov_b32 v10, {EPOCH}
v_mov_b32 v11, s{sEP}
s_mov_b64 exec, 1
buffer_store_dword v11, v10, {W4}, 0 offen sc1
s_mov_b64 exec, -1
noep:
s_barrier""")
stamp("poll2 done")
A(f"s_lshl_b32 s{T5}, s{sWAVE}, 10\ns_add_u32 s{T5}, s{T5}, {L_X}")
for c in range(16):
    A(f"""s_add_u32 s{T0}, s{T5}, {4096*c}
    s_mov_b32 m0, s{T0}
    s_lshl_b32 s{T1}, s{ROT1[c]}, 7""")
    vm.op(f"buffer_load_dwordx4 v5, {W4}, s{T1} offen sc1 lds", f"x{c//4}")
A(f"s_sub_u32 s{T5}, s{T5}, {L_X - L_XP}")
def xp_issue(c):
    A(f"""s_add_u32 s{T0}, s{T5}, {4096*c}
    s_mov_b32 m0, s{T0}
    s_lshl_b32 s{T1}, s{ROT1[c]}, 7""")
    vm.op(f"buffer_load_dwordx4 v6, {W4}, s{T1} offen sc1 lds", f"p{c//4}")
BF = [72, 88]; PF = [104, 112]; ONE = 120; D1 = 136; D2 = 128
def bl(t, st):
    for sg in range(4):
        r = BF[st] + 4 * sg
        A(f"ds_read2st64_b32 v[{r}:{r+1}], v{16+sg} offset0:{16*t} offset1:{16*t+1}")
        A(f"ds_read2st64_b32 v[{r+2}:{r+3}], v{16+sg} offset0:{16*t+2} offset1:{16*t+3}")
def pl(u, r):
    A(f"ds_read2st64_b32 v[{r}:{r+1}], v141 offset0:{16*u} offset1:{16*u+1}")
    A(f"ds_read2st64_b32 v[{r+2}:{r+3}], v141 offset0:{16*u+2} offset1:{16*u+3}")
for i in range(4): A(f"v_mov_b32 v{ONE+i}, s{sONES}\nv_mov_b32 v{D1+i}, 0\nv_mov_b32 v{D2+i}, 0")
vm.wait("x0"); A("s_barrier")
stamp("x chunk0")
bl(0, 0)
W2_T0, W2_EVERY = P("W2_T0", 4), P("W2_EVERY", 4)
xpq = list(range(16))
for t in range(16):
    st = t & 1
    lds = []
    if (t + 1) % 4 == 0 and t + 1 < 16:
        tags = [f"x{(t+1)//4}"] + {3: [], 7: ["p0", "p1"], 11: ["p2", "p3"]}[t]
        vm.wait(*tags); A("s_barrier")
    if t + 1 < 16: lds += capture(lambda: bl(t + 1, st ^ 1))
    if 8 <= t + 1 < 16:
        for k in range(2): lds += capture(lambda: pl(2 * (t + 1 - 8) + k, PF[st ^ 1] + 4 * k))
    A("s_waitcnt lgkmcnt(0)")
    if os.environ.get("G1ST"): stamp(f"g1 t{t}")
    mfs = []
    for j in range(3):
        for sg in range(4):
            c = G1 + (j * 4 + sg) * 4
            mfs.append(f"v_mfma_f32_16x16x32_bf16 v[{c}:{c+3}], a[{(t*3+j)*4}:{(t*3+j)*4+3}], v[{BF[st]+4*sg}:{BF[st]+4*sg+3}], v[{c}:{c+3}]")
    if t >= 8:
        for k in range(2):
            p = PF[st] + 4 * k
            mfs.insert(0, f"v_mfma_f32_16x16x32_bf16 v[{D1}:{D1+3}], v[{ONE}:{ONE+3}], v[{p}:{p+3}], v[{D1}:{D1+3}]")
            mfs.insert(0, f"v_mfma_f32_16x16x32_bf16 v[{D2}:{D2+3}], v[{p}:{p+3}], v[{p}:{p+3}], v[{D2}:{D2+3}]")
    for mf, x in enumerate(mfs, 1):
        A(x)
        if lds: A(lds.pop(0))
        if mf % 3 == 0 and xpq: xp_issue(xpq.pop(0))
        elif t >= W2_T0 and mf % W2_EVERY == 0: w2_issue(1)
    assert not lds
SAC = 128
A(f"""v_and_b32 v124, 3, v3
v_lshrrev_b32 v125, 2, v3
v_cmp_eq_u32 s[{SX}:{SX+1}], v125, v4
v_lshlrev_b32 v126, 3, v3
s_lshl_b32 s{T0}, s{sWAVE}, 7
s_add_u32 s{T0}, s{T0}, {L_ST}
v_add_u32 v127, s{T0}, v126
v_add_u32 v126, {L_ST}, v126
v_cmp_eq_u32 vcc, 1, v124
s_nop 1
v_cndmask_b32 v{D2}, v{D2}, v{D2+1}, vcc
v_cmp_eq_u32 vcc, 2, v124
s_nop 1
v_cndmask_b32 v{D2}, v{D2}, v{D2+2}, vcc
v_cmp_eq_u32 vcc, 3, v124
s_nop 1
v_cndmask_b32 v{D2}, v{D2}, v{D2+3}, vcc""")
ln_final(D1, D2, 104, 105)
A(f"""v_sub_f32 v105, v105, v{M1R}
v_mul_f32 v105, v105, v104
s_mov_b64 exec, s[{SX}:{SX+1}]
ds_write_b64 v127, v[104:105]
s_mov_b64 exec, -1
s_waitcnt lgkmcnt(0)
s_barrier""")
for sg in range(4):
    A(f"ds_read_b64 v[{SAC+2*sg}:{SAC+2*sg+1}], v126 offset:{128*sg}")
stamp("gemm1 mfma done")
for i in range(6):
    A(f"ds_read_b128 v[{72+4*i}:{75+4*i}], v14 offset:{64*i}")
A(f"""v_lshrrev_b32 v5, 1, v4
v_lshlrev_b32 v5, 9, v5
v_lshl_add_u32 v5, v3, 4, v5
v_and_b32 v6, 1, v4
v_lshl_add_u32 v5, v6, 3, v5
s_mul_i32 s{T0}, s{sR}, {2*86*1024}
s_lshl_b32 s{T1}, s46, 10
s_add_u32 s{T0}, s{T0}, s{T1}
s_add_u32 s{T0}, s{T0}, {HID}
v_add_u32 v5, s{T0}, v5
v_add_u32 v6, 4096, v5
v_add_u32 v7, 8192, v5
v_add_u32 v7, s47, v7
s_mov_b32 s{T3}, {86*1024}
s_waitcnt lgkmcnt(0)""")
for j in range(3):
    for sp2 in range(2):
        seqs = []
        for sg in (2 * sp2, 2 * sp2 + 1):
            c = G1 + (j * 4 + sg) * 4
            sp = SAC + 2 * sg
            TT = 96 + 4 * (sg & 1)
            sq = []
            for hh in range(2):
                sq.append(f"v_pk_fma_f32 v[{TT+2*hh}:{TT+2*hh+1}], v[{84+4*j+2*hh}:{85+4*j+2*hh}], v[{sp}:{sp+1}], v[{72+4*j+2*hh}:{73+4*j+2*hh}] op_sel:[0,1,0] op_sel_hi:[1,1,1] neg_lo:[0,1,0] neg_hi:[0,1,0]")
            for hh in range(2):
                sq.append(f"v_pk_fma_f32 v[{c+2*hh}:{c+2*hh+1}], v[{c+2*hh}:{c+2*hh+1}], v[{sp}:{sp+1}], v[{TT+2*hh}:{TT+2*hh+1}] op_sel_hi:[1,0,1]")
            for r in range(4): sq.append(f"v_max_f32 v{c+r}, 0, v{c+r}")
            sq += [f"v_pk_mul_f32 v[{c}:{c+1}], v[{c}:{c+1}], v[{c}:{c+1}]",
                   f"v_pk_mul_f32 v[{c+2}:{c+3}], v[{c+2}:{c+3}], v[{c+2}:{c+3}]",
                   f"v_cvt_pk_bf16_f32 v{c}, v{c}, v{c+1}",
                   f"v_cvt_pk_bf16_f32 v{c+1}, v{c+2}, v{c+3}"]
            seqs.append(sq)
        for grp in zip(*seqs):
            for x in grp: A(x)
        for sg in (2 * sp2, 2 * sp2 + 1):
            c = G1 + (j * 4 + sg) * 4
            vm.op(f"buffer_store_dwordx2 v[{c}:{c+1}], v{5+j}, {W4}, {'s%d'%T3 if sg>>1 else '0'} offen offset:{256*(sg&1)} sc1", "st3")
stamp("st3 issued")
XR, BR, GR = 96, 104, 112
A(f"""v_and_b32 v8, 31, v2
v_lshrrev_b32 v9, 5, v2
s_lshr_b32 s{T0}, s{sWAVE}, 1
s_and_b32 s{T1}, s{sWAVE}, 1
s_lshl_b32 s{T2}, s{sFG}, 7
s_lshl_b32 s{T4}, s{T1}, 6
s_add_u32 s{T2}, s{T2}, s{T4}
v_lshlrev_b32 v10, 3, v9
v_add_u32 v10, s{T2}, v10
v_lshlrev_b32 v11, 1, v10
v_add_u32 v11, {L_TGB}, v11
s_lshl_b32 s{T4}, s{sR}, 6
s_lshl_b32 s{T5}, s{T0}, 5
s_add_u32 s{T4}, s{T4}, s{T5}
v_add_u32 v12, s{T4}, v8
v_lshlrev_b32 v15, 11, v10
v_lshl_add_u32 v15, v12, 2, v15
v_add_u32 v15, {X1P}, v15
v_lshl_add_u32 v12, v12, 10, v10
v_min_u32 v16, 7, v2
v_lshlrev_b32 v16, 6, v16
s_lshl_b32 s{T0}, s{sR}, 9
s_add_u32 s{T0}, s{T0}, {F3}
v_add_u32 v16, s{T0}, v16""")
for q in range(4):
    A(f"ds_read_b128 v[{GR+4*q}:{GR+4*q+3}], v11 offset:{32*q}")
for q in range(4):
    for pp in range(2):
        A(f"s_mov_b32 s{T1}, {8192*(4*q+pp)}")
        vm.op(f"buffer_load_dword v{XR+2*q+pp}, v15, {W4}, s{T1} offen sc1", "xr")
for q in range(4):
    vm.op(f"buffer_load_dwordx2 v[{BR+2*q}:{BR+2*q+1}], v10, s[{SM2}:{SM2+3}], 0 offen offset:{16*q}", "xr")
w2_issue(99)
vm.wait("st3")
A("s_barrier")
set_flag(0, F3, f"s_lshl_b32 s{T0}, s{sR}, 3\ns_add_u32 s{T0}, s{T0}, s{sFG}", 17, 18)
if P("HTOUCH", 1):
    A(f"""v_lshlrev_b32 v19, 12, v4
    v_bfe_u32 v20, v2, 3, 1
    v_mul_u32_u24 v20, {86*1024}, v20
    v_and_b32 v21, 7, v2
    v_lshl_add_u32 v19, v21, 7, v19
    s_mul_i32 s{T0}, s{sR}, {2*86*1024}
    s_lshl_b32 s{T1}, s46, 10
    s_add_u32 s{T0}, s{T0}, s{T1}
    s_add_u32 s{T0}, s{T0}, {HID}
    v_add3_u32 v19, v19, v20, s{T0}
    s_cmp_eq_u32 s47, 0
    s_cselect_b32 s{T1}, 48, 32
    v_cmp_gt_u32 vcc, s{T1}, v2
    v_mov_b32 v20, {OOB}
    s_nop 0
    v_cndmask_b32 v19, v20, v19, vcc""")
    vm.op(f"buffer_load_dword v21, v19, {W4}, 0 offen sc1", "touch")
G2 = 24
for i in range(64): A(f"v_mov_b32 v{G2+i}, 0")
stamp("flag3")
poll(16, 1, 0, 17, "p3")
A("s_barrier")
stamp("poll3 done")
HD = P("HD", 6)
def h_issue(i):
    for sb in range(2):
        vm.op(f"buffer_load_dwordx4 a[{(2*i+sb)*4}:{(2*i+sb)*4+3}], v{22+sb}, {W4}, s{ROT2[i]} offen sc1", f"h{i}")
for i in range(HD): h_issue(i)
for i in range(22):
    vm.wait(f"h{i}")
    for sb in range(2):
        for cb in range(2):
            c = G2 + 16 * (2 * sb + cb)
            A(f"v_mfma_f32_32x32x16_bf16 v[{c}:{c+15}], {w2reg(i,cb)}, a[{(2*i+sb)*4}:{(2*i+sb)*4+3}], v[{c}:{c+15}]")
            if sb == 0 and cb == 0 and i + HD < 22: h_issue(i + HD)
stamp("gemm2 mfma done")
A(f"""s_nop 7
s_nop 3
v_lshlrev_b32 v13, 4, v2""")
for T in range(4):
    lab = A.label("skip")
    A(f"""s_cmp_eq_u32 s{sWAVE}, {T}
    s_cbranch_scc1 {lab}
    s_sub_u32 s{T0}, s{sWAVE}, {T+1}
    s_and_b32 s{T0}, s{T0}, 3
    s_lshl_b32 s{T0}, s{T0}, 12
    s_add_u32 s{T0}, s{T0}, {L_RED + T*12288}
    v_add_u32 v14, s{T0}, v13""")
    for q in range(4):
        A(f"ds_write_b128 v14, v[{G2+16*T+4*q}:{G2+16*T+4*q+3}] offset:{1024*q}")
    A(f"{lab}:")
OWN = 144
for T in range(4):
    lab = A.label("mv")
    A(f"s_cmp_lg_u32 s{sWAVE}, {T}\ns_cbranch_scc1 {lab}")
    for i in range(16): A(f"v_mov_b32 v{OWN+i}, v{G2+16*T+i}")
    A(f"{lab}:")
A(f"""s_mul_i32 s{T0}, s{sWAVE}, 12288
s_add_u32 s{T0}, s{T0}, {L_RED}
v_add_u32 v14, s{T0}, v13
s_waitcnt lgkmcnt(0)
s_barrier""")
for q in range(4):
    for sl in range(3):
        A(f"ds_read_b128 v[{G2+16*sl+4*q}:{G2+16*sl+4*q+3}], v14 offset:{4096*sl+1024*q}")
U = 160
for q in range(4):
    c = OWN + 4 * q
    A(f"""v_lshlrev_b32 v{U}, 16, v{BR+2*q}
    v_and_b32 v{U+1}, 0xffff0000, v{BR+2*q}
    v_lshlrev_b32 v{U+2}, 16, v{BR+2*q+1}
    v_and_b32 v{U+3}, 0xffff0000, v{BR+2*q+1}
    v_pk_add_f32 v[{c}:{c+1}], v[{c}:{c+1}], v[{U}:{U+1}]
    v_pk_add_f32 v[{c+2}:{c+3}], v[{c+2}:{c+3}], v[{U+2}:{U+3}]
    v_lshlrev_b32 v{U}, 16, v{XR+2*q}
    v_and_b32 v{U+1}, 0xffff0000, v{XR+2*q}
    v_lshlrev_b32 v{U+2}, 16, v{XR+2*q+1}
    v_and_b32 v{U+3}, 0xffff0000, v{XR+2*q+1}
    s_waitcnt lgkmcnt({3*(3-q)})""")
    for sl in range(3):
        for hh in range(2):
            A(f"v_pk_add_f32 v[{c+2*hh}:{c+2*hh+1}], v[{c+2*hh}:{c+2*hh+1}], v[{G2+16*sl+4*q+2*hh}:{G2+16*sl+4*q+2*hh+1}]")
    A(f"""v_pk_fma_f32 v[{c}:{c+1}], v[{c}:{c+1}], v[{GR+4*q}:{GR+4*q+1}], v[{U}:{U+1}]
    v_pk_fma_f32 v[{c+2}:{c+3}], v[{c+2}:{c+3}], v[{GR+4*q+2}:{GR+4*q+3}], v[{U+2}:{U+3}]
    v_cvt_pk_bf16_f32 v{c}, v{c}, v{c+1}
    v_cvt_pk_bf16_f32 v{c+1}, v{c+2}, v{c+3}
    buffer_store_dwordx2 v[{c}:{c+1}], v12, s[{SOUT}:{SOUT+3}], 0 offen offset:{16*q}""")
if STAMP:
    stamp("out issued")
    A("s_waitcnt vmcnt(0)")
    stamp("end")
    A(f"""v_lshlrev_b32 v1, 2, v2
    s_lshl_b32 s{T0}, s2, 10
    s_lshl_b32 s{T1}, s{sWAVE}, 8
    s_add_u32 s{T0}, s{T0}, s{T1}
    s_add_u32 s{T0}, s{T0}, {TS}
    v_add_u32 v1, s{T0}, v1
    buffer_store_dword v143, v1, {W4}, 0 offen""")
A("k_done:\ns_endpgm\nk_end:")

hdr = f"; @launch grid=(256,1,1) block=(256,1,1) lds={LDS_SZ}\n.amdgcn_target \"amdgcn-amd-amdhsa--gfx950\"\n.text\n"
out = hdr + A.text() + '.section .rodata,"a"\n' + A.kd(name, 256, 102, accum=256, agpr=256)
open(sys.argv[1], "w").write(out)
print("stamps", nst[0], "lds", LDS_SZ, file=sys.stderr)
```

```python
import sys, os
from asmlib import *

STAMP = os.environ.get("STAMP") == "1"
def P(n, d): return int(os.environ.get(n, d))
S, D, F = 2048, 512, 1376
UR, QP, X1P, X1S, HID, W1P, W2P = 0x0, 0x200000, 0x400000, 0x600000, 0x800000, 0xE00000, 0x1000000
MODF, ST1 = 0x1200000, 0x1210000
F1A, F1B, F2, F3, EPOCH = 0x1300000, 0x1304000, 0x1308000, 0x130C000, 0x1310000
TS = 0x1400000
WS_SZ = 0x1500000
OOB = 0x40000000
SZ_SD = S * D * 2
SZ_W = D * F * 2
POLL_MAX = 200000

OSZ = 2368; USZ = 2 * OSZ
L_U = 0
L_KF = 9472; KFSZ = 8256
L_MODP = L_KF + 2 * KFSZ
L_XP = 0
L_X = 65536
L_RED = L_X
L_TB = 131072
L_TC2 = L_TB + 2048 + 64
L_TGB = L_TC2 + 2048 + 64
L_BB = L_TGB + 2048
L_ST = L_BB + 4 * 384
LDS_SZ = L_ST + 512
assert LDS_SZ <= 160 * 1024 and L_MODP + 4096 <= 65536

WS, SK, SV, SQ, SM1, SKF, SM2, SC, SWM, SPK, SOUT = 4, 8, 12, 16, 20, 24, 28, 32, 36, 40, 48
sWAVE, sXG, sJ, sEP = 52, 53, 54, 55
sR, sFG, sD0, sONES, sM = 96, 97, 98, 99, 3
T0, T1, T2, T3, T4, T5 = 56, 57, 58, 59, 60, 61
SX = 62
ROT1 = [64 + i for i in range(16)]
ROT2 = [80 + i for i in range(16)] + [8 + i for i in range(6)]
sROT1 = 14

A = Asm()
name = "adaLN_cond__ssm_conv_h3__dense_activation_squared_relu__prompt_kernel"
W4 = f"s[{WS}:{WS+3}]"

class VM:
    def __init__(self): self.q = []
    def op(self, text, tag):
        A(text); self.q.append(tag)
    def wait(self, *tags, extra=""):
        last = max((i for i, t in enumerate(self.q) if t in tags), default=-1)
        n = len(self.q) - 1 - last
        if last >= 0:
            assert n <= 63, (tags, n)
            A(f"s_waitcnt vmcnt({n}) {extra}".rstrip())
            self.q = self.q[last + 1:]
        elif extra:
            A(f"s_waitcnt {extra}")
vm = VM()

nst = [0]
def stamp(label=""):
    if not STAMP: return
    i = nst[0]; nst[0] += 1
    print(f"stamp {i}: {label}", file=sys.stderr)
    A(f"""s_memrealtime s[100:101]
    s_waitcnt lgkmcnt(0)
    v_writelane_b32 v143, s100, {i}""")

def rnd1(r):
    A(f"v_cvt_pk_bf16_f32 v{r}, v{r}, v{r}\nv_lshlrev_b32 v{r}, 16, v{r}")
def capture(fn):
    save = A.lines; A.lines = []
    fn()
    tmp = [x.strip() for x in A.lines]; A.lines = save
    return tmp

def poll(addr_v, nloads, stride_imm, dst, lab, only_wave0=True):
    if only_wave0:
        A(f"s_cmp_lg_u32 s{sWAVE}, 0\ns_cbranch_scc1 {lab}_done")
    A(f"s_mov_b32 s{T0}, 0\n{lab}:")
    for k in range(nloads):
        A(f"s_mov_b32 s{T1}, {k*stride_imm}\nbuffer_load_dword v{dst+k}, v{addr_v}, {W4}, s{T1} offen sc1")
    A("s_waitcnt vmcnt(0)")
    for k in range(nloads):
        A(f"v_xor_b32 v{dst+k}, s{sEP}, v{dst+k}")
    for k in range(1, nloads):
        A(f"v_or_b32 v{dst}, v{dst}, v{dst+k}")
    A(f"""v_cmp_ne_u32 vcc, 0, v{dst}
    s_add_u32 s{T0}, s{T0}, 1
    s_cmp_ge_u32 s{T0}, {POLL_MAX}
    s_cbranch_scc1 {lab}_done
    s_cbranch_vccz {lab}_done
    s_mov_b64 exec, vcc
    s_sleep {P("PSLEEP", 2)}
    s_branch {lab}
    {lab}_done:
    s_mov_b64 exec, -1""")

def set_flag(wave, base, idx_code, va, vd, pre=""):
    lab = A.label("fl")
    A(f"""s_cmp_lg_u32 s{sWAVE}, {wave}
    s_cbranch_scc1 {lab}
    {pre}
    {idx_code}
    s_lshl_b32 s{T0}, s{T0}, 6
    s_add_u32 s{T0}, s{T0}, {base}
    v_mov_b32 v{va}, s{T0}
    v_mov_b32 v{vd}, s{sEP}
    s_mov_b64 exec, 1
    buffer_store_dword v{vd}, v{va}, {W4}, 0 offen sc1
    s_mov_b64 exec, -1
    {lab}:""".replace("    \n", ""))

def ln_final(sm, sq, rs_out, m_out):
    A(f"""v_mul_f32 v{m_out}, 0x3b000000, v{sm}
    v_mul_f32 v{rs_out}, 0x3b000000, v{sq}
    v_fma_f32 v{rs_out}, -v{m_out}, v{m_out}, v{rs_out}
    v_max_f32 v{rs_out}, 0, v{rs_out}""")
    rnd1(rs_out); rnd1(m_out)
    A(f"v_add_f32 v{rs_out}, 0x3727c5ac, v{rs_out}")
    rnd1(rs_out)
    A(f"v_sqrt_f32 v{rs_out}, v{rs_out}\ns_nop 0")
    rnd1(rs_out)
    A(f"v_rcp_f32 v{rs_out}, v{rs_out}\ns_nop 0")

A.kernel_begin(name)
NCP = P("NCP", 6)
A(f"""s_cmp_ge_u32 s2, 256
s_cbranch_scc1 k_done
s_load_dwordx16 s[64:79], s[0:1], 0
s_load_dwordx16 s[80:95], s[0:1], 64
s_getpc_b64 s[48:49]
k_pc:""")
A(f"""
v_lshrrev_b32 v1, 6, v0
v_and_b32 v2, 63, v0
v_readfirstlane_b32 s{sWAVE}, v1
s_and_b32 s{sXG}, s2, 7
s_lshr_b32 s{sJ}, s2, 3
v_and_b32 v3, 15, v2
v_lshrrev_b32 v4, 4, v2
s_lshr_b32 s{T0}, s{sJ}, 3
s_lshl_b32 s{T0}, s{T0}, 3
s_add_u32 s{sR}, s{sXG}, s{T0}
s_and_b32 s{sFG}, s{sJ}, 7
s_lshl_b32 s{sD0}, s{sXG}, 6
s_lshl_b32 s{T0}, s{sJ}, 1
s_add_u32 s{sD0}, s{sD0}, s{T0}
s_mov_b32 s{sONES}, 0x3f803f80""")
stamp("start")
KT, VT, QT, US, QS, PKT = L_X, L_X + 9216, L_X + 17408, L_X + 25600, L_X + 33792, L_X + 41984
A(f"""v_lshrrev_b32 v5, 3, v2
v_lshlrev_b32 v5, 10, v5
v_and_b32 v6, 7, v2
v_lshl_add_u32 v5, v6, 4, v5          ; (l>>3)*1024 + (l&7)*16
s_lshl_b32 s{T0}, s{sJ}, 16
s_lshl_b32 s{T1}, s{sXG}, 7
s_add_u32 s{T0}, s{T0}, s{T1}
v_add_u32 v7, s{T0}, v5
v_subrev_u32 v7, 8192, v7
s_lshl_b32 s{T1}, s{sWAVE}, 14
s_add_u32 s{T0}, s{T0}, s{T1}
v_add_u32 v5, s{T0}, v5
v_and_b32 v12, 31, v0                 ; cp
v_lshrrev_b32 v13, 5, v0              ; rg
v_lshlrev_b32 v8, 4, v12
s_lshl_b32 s{T0}, s{sXG}, 9
v_add_u32 v8, s{T0}, v8
s_lshl_b32 s{T4}, s{sWAVE}, 11         ; 2048*w
s_movk_i32 s{T5}, 8192
s_waitcnt lgkmcnt(0)""")
if P("TLBT", 0):
    for p in (66, 68, 64, 70, 72, 74, 86, 88, 78, 82, 80, 84, 90):
        A(f"s_load_dword s0, s[{p}:{p+1}], 0")
    A(f"s_add_u32 s76, s88, 0x200000\ns_addc_u32 s77, s89, 0\ns_load_dword s0, s[76:77], 0")
    A(f"s_mov_b32 s76, s94\ns_mov_b32 s77, s95")
    for pg in range(10):
        A(f"s_load_dword s0, s[76:77], 0")
        if pg < 9: A(f"s_add_u32 s76, s76, 0x200000\ns_addc_u32 s77, s77, 0")
A.srd(SK, 66, SZ_SD); A.srd(SV, 68, SZ_SD); A.srd(SM1, 70, 4096); A.srd(SQ, 64, SZ_SD)
A(f"""s_cmp_lg_u32 s{sWAVE}, 3
s_cbranch_scc1 nohalo
s_mov_b32 m0, {KT}
s_nop 0
buffer_load_dwordx4 v7, s[{SK}:{SK+3}], 0 offen lds
nohalo:""")
W = 44
for (base, srd, tag) in ((KT + 1024, SK, "k"), (VT, SV, "k"), (QT, SQ, "k")):
    for i in range(2):
        A(f"s_add_u32 s{T0}, s{T4}, {base + 1024*i}\ns_mov_b32 m0, s{T0}\ns_nop 0")
        vm.op(f"buffer_load_dwordx4 v5, s[{srd}:{srd+3}], {'s%d'%T5 if i else '0'} offen lds", tag)
vm.op(f"buffer_load_dwordx4 v[{W}:{W+3}], v8, s[{SM1}:{SM1+3}], 0 offen", "k")
A(f"""s_mul_i32 s{T0}, s{sJ}, 43
s_lshr_b32 s{T0}, s{T0}, 8              ; j/6
s_mul_i32 s{T0}, s{T0}, 6
s_sub_u32 s{T0}, s{sJ}, s{T0}           ; j%6
s_lshl_b32 s{T0}, s{T0}, 12
v_lshl_add_u32 v9, v0, 4, s{T0}
v_min_u32 v9, k_end-k_pc-16, v9""")
vm.op(f"global_load_dwordx4 a[0:3], v9, s[48:49]", "code")
A.srd(WS, 94, WS_SZ); A.srd(SKF, 72, SZ_SD); A.srd(SM2, 74, 1024); A.srd(SC, 86, 1024); A.srd(SWM, 88, 512 * 3072 * 2)
A.srd(SOUT, 90, SZ_SD)
A(f"""s_add_u32 s{T2}, s94, {EPOCH}
s_addc_u32 s{T3}, s95, 0
s_load_dword s{sEP}, s[{T2}:{T3}], 0""")
KF0, DD, SR, CC, WM = 48, 58, 60, 68, 72
A(f"""v_lshlrev_b32 v9, 4, v0
s_lshl_b32 s{T0}, s{sD0}, 12
v_add_u32 v9, s{T0}, v9
s_movk_i32 s{T1}, 4096""")
vm.op(f"buffer_load_dwordx4 v[{KF0}:{KF0+3}], v9, s[{SKF}:{SKF+3}], 0 offen", "kf")
vm.op(f"buffer_load_dwordx4 v[{KF0+4}:{KF0+7}], v9, s[{SKF}:{SKF+3}], s{T1} offen", "kf")
A(f"s_lshl_b32 s{T0}, s{sD0}, 1\nv_mov_b32 v9, s{T0}")
vm.op(f"buffer_load_dword v{DD}, v9, s[{SM2}:{SM2+3}], 0 offen", "D")
PS, PA, PD = 88, 92, 90
A(f"""s_sub_u32 s{T0}, s2, 74
v_lshlrev_b32 v{PD}, 4, v2
v_bfe_u32 v9, v2, 2, 2                ; r
v_and_b32 v10, 3, v2                  ; c
s_cmp_lt_u32 s{T0}, 96
s_cbranch_scc0 pk_w2""")
A.srd(SPK, 78, SZ_W)
A(f"""s_and_b32 s{T1}, s{T0}, 15              ; t
s_lshr_b32 s{T2}, s{T0}, 4              ; Fgb
v_lshrrev_b32 v11, 5, v2
v_bfe_u32 v14, v2, 1, 4
s_and_b32 s{T3}, s{sWAVE}, 1
s_lshl_b32 s{T3}, s{T3}, 2
v_or_b32 v15, s{T3}, v11
v_xor_b32 v14, v14, v15               ; i' even
v_xor_b32 v15, 2, v14                 ; i' odd
v_mul_u32_u24 v11, 2752, v11
v_and_b32 v16, 1, v2
v_lshl_add_u32 v11, v16, 4, v11
s_mul_i32 s{T3}, s{T1}, {32*2752}
s_mul_i32 s{T4}, s{sWAVE}, {8*2752}
s_add_u32 s{T3}, s{T3}, s{T4}
s_lshl_b32 s{T4}, s{T2}, 9
s_add_u32 s{T3}, s{T3}, s{T4}
v_add_u32 v11, s{T3}, v11
v_lshl_add_u32 v{PS}, v14, 5, v11
v_lshl_add_u32 v{PS+1}, v15, 5, v11
s_movk_i32 s44, 5504
v_and_b32 v14, 1, v4
v_lshl_or_b32 v14, v14, 2, v9
v_lshl_add_u32 v15, v4, 3, v9
v_lshlrev_b32 v15, 9, v15
v_lshl_add_u32 v15, v10, 3, v15
v_add_u32 v15, {PKT}, v15
s_lshl_b32 s{T3}, s{sWAVE}, 2
v_xor_b32 v14, s{T3}, v14""")
for u in range(4):
    A(f"""v_xor_b32 v16, {u}, v14
    v_lshl_add_u32 v{PA+u}, v16, 5, v15
    v_add_u32 v{PA+4+u}, 2048, v{PA+u}""")
A(f"""s_lshl_b32 s{T2}, s{T2}, 2
s_add_u32 s{T2}, s{T2}, s{sWAVE}        ; Fg
s_lshl_b32 s{T3}, s{T2}, 16
s_lshl_b32 s{T4}, s{T1}, 10
s_add_u32 s{T3}, s{T3}, s{T4}
s_add_u32 s{T3}, s{T3}, {W1P}
s_cmp_ge_u32 s{T2}, 22
s_cselect_b32 s{T3}, {OOB}, s{T3}
v_add_u32 v{PD}, s{T3}, v{PD}
s_movk_i32 s45, 16384
s_cmp_eq_u32 s{T2}, 21
s_cselect_b32 s46, {OOB}, 0
s_branch pk_go
pk_w2:""")
A.srd(SPK, 82, SZ_W)
A(f"""s_sub_u32 s{T1}, s2, 170                ; F
v_bfe_u32 v14, v2, 2, 2
v_xor_b32 v14, v14, v4
v_lshlrev_b32 v11, 10, v4
v_lshl_add_u32 v11, v14, 6, v11
v_lshl_add_u32 v11, v10, 4, v11
s_lshl_b32 s{T3}, s{T1}, 14
s_lshl_b32 s{T4}, s{sWAVE}, 8
s_add_u32 s{T3}, s{T3}, s{T4}
s_cmp_ge_u32 s{T1}, 86
s_cselect_b32 s{T3}, {OOB}, s{T3}
v_add_u32 v{PS}, s{T3}, v11
v_mov_b32 v{PS+1}, v{PS}
s_movk_i32 s44, 4096
v_lshrrev_b32 v14, 1, v4
v_lshl_add_u32 v14, v14, 3, v9
v_lshlrev_b32 v14, 8, v14
v_and_b32 v15, 1, v4
v_lshl_add_u32 v14, v15, 5, v14
v_lshl_add_u32 v14, v10, 3, v14
s_lshl_b32 s{T3}, s{sWAVE}, 12
s_add_u32 s{T3}, s{T3}, {PKT}
v_add_u32 v14, s{T3}, v14""")
for u in range(4):
    A(f"""v_xor_b32 v16, {u}, v9
    v_lshl_add_u32 v{PA+u}, v16, 6, v14
    v_add_u32 v{PA+4+u}, 1024, v{PA+u}""")
A(f"""s_mul_i32 s{T3}, s{sWAVE}, {4*86*1024}
s_lshl_b32 s{T4}, s{T1}, 10
s_add_u32 s{T3}, s{T3}, s{T4}
s_add_u32 s{T3}, s{T3}, {W2P}
s_cmp_ge_u32 s{T1}, 86
s_cselect_b32 s{T3}, {OOB}, s{T3}
v_add_u32 v{PD}, s{T3}, v{PD}
s_mov_b32 s45, {86*1024}
s_mov_b32 s46, 0
pk_go:
s_lshl_b32 s{T4}, s{sWAVE}, 12
s_mov_b32 s47, 0""")
for i in range(4):
    A(f"s_add_u32 s{T0}, s{T4}, {PKT + 1024*i}\ns_mov_b32 m0, s{T0}\ns_nop 0")
    vm.op(f"buffer_load_dwordx4 v{PS+(i&1)}, s[{SPK}:{SPK+3}], s47 offen lds", "pk")
    if i < 3: A(f"s_add_u32 s47, s47, s44")
A(f"""v_lshlrev_b32 v5, 10, v13
v_lshl_add_u32 v5, v12, 2, v5
v_add_u32 v6, {KT + 5*128 + 1024}, v5
v_add_u32 v5, {KT + 5*128}, v5
v_subrev_u32 v7, {KT + 5*128 - VT}, v5
v_add_u32 v8, {QT - VT}, v7
v_and_b32 v9, 7, v12
v_sub_u32 v10, 7, v13
v_xor_b32 v10, v10, v9
v_lshlrev_b32 v14, 8, v12
v_lshl_add_u32 v15, v10, 4, v14
v_add_u32 v15, {US}, v15
v_lshlrev_b32 v10, 1, v13
v_xor_b32 v10, v10, v9
v_lshl_add_u32 v16, v10, 4, v14
v_add_u32 v16, {QS}, v16
v_xor_b32 v17, 16, v16
v_lshrrev_b32 v9, 3, v0               ; ch
v_and_b32 v10, 7, v0
v_bfe_u32 v11, v0, 4, 3
v_xor_b32 v11, v11, v10
v_lshlrev_b32 v18, 7, v9
v_lshl_add_u32 v18, v11, 4, v18
v_add_u32 v18, {US}, v18
v_lshlrev_b32 v19, 12, v9
v_lshl_add_u32 v19, v10, 4, v19
s_lshl_b32 s{T0}, s{sXG}, 18
s_lshl_b32 s{T1}, s{sJ}, 7
s_sub_u32 s{T0}, s{T0}, s{T1}
s_add_u32 s{T0}, s{T0}, 3968
v_add_u32 v19, s{T0}, v19
v_lshrrev_b32 v9, 4, v0
v_and_b32 v11, 7, v9
v_xor_b32 v11, v11, v3
v_lshlrev_b32 v20, 8, v9
v_lshl_add_u32 v20, v11, 4, v20
v_add_u32 v20, {QS}, v20
v_lshlrev_b32 v21, 13, v9
v_lshl_add_u32 v21, v3, 4, v21
s_lshl_b32 s{T0}, s{sXG}, 18
s_lshl_b32 s{T1}, s{sJ}, 8
s_add_u32 s{T0}, s{T0}, s{T1}
s_add_u32 s{T0}, s{T0}, {QP}
v_add_u32 v21, s{T0}, v21""")
stamp("issued")
vm.wait("k")
A("s_barrier")
stamp("kvq in lds")
KR, VR, QR = 144, 156, 164
for j in range(0, 8, 2):
    A(f"ds_read2_b32 v[{KR+j}:{KR+j+1}], v5 offset0:{32*j} offset1:{32*j+32}")
A(f"ds_read2_b32 v[{KR+8}:{KR+9}], v6 offset0:0 offset1:32\nds_read_b32 v{KR+10}, v6 offset:256")
for j in range(0, 8, 2):
    A(f"ds_read2_b32 v[{VR+j}:{VR+j+1}], v7 offset0:{32*j} offset1:{32*j+32}")
for j in range(0, 8, 2):
    A(f"ds_read2_b32 v[{QR+j}:{QR+j+1}], v8 offset0:{32*j} offset1:{32*j+32}")
A(f"""s_mul_i32 s{T0}, s2, 1366
s_lshr_b32 s{T0}, s{T0}, 16
s_mul_i32 s{T1}, s{T0}, 48
s_sub_u32 s{T1}, s2, s{T1}
s_mul_i32 s{sM}, s{T0}, 12288
s_lshl_b32 s{T2}, s{T1}, 8
s_add_u32 s{sM}, s{sM}, s{T2}
s_add_u32 s{sM}, s{sM}, {MODF}
s_cmp_ge_u32 s2, 192
s_cselect_b32 s{sM}, {OOB}, s{sM}
s_mul_i32 s{T2}, s{T0}, {128*6144}
s_lshl_b32 s{T3}, s{T1}, 7
s_add_u32 s{T2}, s{T2}, s{T3}
s_cmp_ge_u32 s2, 192
s_cselect_b32 s{T2}, {OOB}, s{T2}
v_and_b32 v22, 7, v0
v_lshrrev_b32 v23, 3, v0
v_mul_u32_u24 v24, {4*6144}, v23
v_lshl_add_u32 v24, v22, 4, v24
v_add_u32 v24, s{T2}, v24
v_lshlrev_b32 v23, 3, v23
s_lshl_b32 s{T0}, s{T0}, 8
v_add_u32 v23, s{T0}, v23""")
vm.op(f"buffer_load_dwordx2 v[{CC}:{CC+1}], v23, s[{SC}:{SC+3}], 0 offen", "c")
for i in range(4):
    A(f"s_mov_b32 s{T0}, {6144*i}")
    vm.op(f"buffer_load_dwordx4 v[{WM+4*i}:{WM+4*i+3}], v24, s[{SWM}:{SWM+3}], s{T0} offen", "wm")
A(f"""v_lshlrev_b32 v22, 4, v2
s_lshl_b32 s{T0}, s2, 13
s_lshl_b32 s{T1}, s{sWAVE}, 11
s_add_u32 s{T0}, s{T0}, s{T1}
v_add_u32 v22, s{T0}, v22""")
vm.op(f"buffer_load_dwordx4 v[{SR}:{SR+3}], v22, s[{SQ}:{SQ+3}], 0 offen", "sr")
vm.op(f"buffer_load_dwordx4 v[{SR+4}:{SR+7}], v22, s[{SQ}:{SQ+3}], 0 offen offset:1024", "sr")
WF, KFF, O = 100, 108, 172
KV = [180 + 2 * r for r in range(8)]
A(f"""v_lshlrev_b32 v{WF+0}, 16, v{W+0}
v_lshlrev_b32 v{WF+1}, 16, v{W+2}
v_and_b32 v{WF+2}, 0xffff0000, v{W+0}
v_and_b32 v{WF+3}, 0xffff0000, v{W+2}
v_lshlrev_b32 v{WF+4}, 16, v{W+1}
v_lshlrev_b32 v{WF+5}, 16, v{W+3}
v_and_b32 v{WF+6}, 0xffff0000, v{W+1}
v_and_b32 v{WF+7}, 0xffff0000, v{W+3}
s_waitcnt lgkmcnt(8)""")
for j in range(11):
    A(f"v_lshlrev_b32 v{KFF+2*j}, 16, v{KR+j}\nv_and_b32 v{KFF+2*j+1}, 0xffff0000, v{KR+j}")
A(f"""s_waitcnt lgkmcnt(0)
ds_write_b128 v16, v[{QR}:{QR+3}]
ds_write_b128 v17, v[{QR+4}:{QR+7}]""")
for r in range(8):
    A(f"v_pk_mul_f32 v[{KV[r]}:{KV[r]+1}], v[{KFF+2*r}:{KFF+2*r+1}], v[{WF+6}:{WF+7}]")
for t in range(1, 4):
    for r in range(8):
        A(f"v_pk_fma_f32 v[{KV[r]}:{KV[r]+1}], v[{KFF+2*(r+t)}:{KFF+2*(r+t)+1}], v[{WF+2*(3-t)}:{WF+2*(3-t)+1}], v[{KV[r]}:{KV[r]+1}]")
for r in range(8):
    A(f"v_lshlrev_b32 v{KFF+2*r}, 16, v{VR+r}\nv_and_b32 v{KFF+2*r+1}, 0xffff0000, v{VR+r}")
for r in range(8):
    A(f"v_pk_mul_f32 v[{KV[r]}:{KV[r]+1}], v[{KV[r]}:{KV[r]+1}], v[{KFF+2*r}:{KFF+2*r+1}]")
for e in range(2):
    for j in range(4):
        A(f"v_cvt_pk_bf16_f32 v{O+4*e+j}, v{KV[7-2*j]+e}, v{KV[6-2*j]+e}")
    A(f"ds_write_b128 v15, v[{O+4*e}:{O+4*e+3}] offset:{128*e}")
A(f"""s_mov_b32 s{T1}, 131072
s_waitcnt lgkmcnt(0)
s_barrier
ds_read_b128 v[144:147], v18
ds_read_b128 v[148:151], v18 offset:4096
ds_read_b128 v[152:155], v20
ds_read_b128 v[156:159], v20 offset:4096
s_waitcnt lgkmcnt(3)""")
vm.op(f"buffer_store_dwordx4 v[144:147], v19, {W4}, 0 offen {'' if P('PLAIN_UQ',0) else 'sc1'}", "st1")
A("s_waitcnt lgkmcnt(2)")
vm.op(f"buffer_store_dwordx4 v[148:151], v19, {W4}, s{T1} offen {'' if P('PLAIN_UQ',0) else 'sc1'}", "st1")
A("s_waitcnt lgkmcnt(1)")
vm.op(f"buffer_store_dwordx4 v[152:155], v21, {W4}, 0 offen {'' if P('PLAIN_UQ',0) else 'sc1'}", "st1")
A("s_waitcnt lgkmcnt(0)")
vm.op(f"buffer_store_dwordx4 v[156:159], v21, {W4}, s{T1} offen {'' if P('PLAIN_UQ',0) else 'sc1'}", "st1")
stamp("st1 issued")
vm.wait("kf", "D")
A(f"""v_lshlrev_b32 v9, 4, v0
v_mov_b32 v120, 0
v_mov_b32 v121, 0
v_mov_b32 v122, 0
v_mov_b32 v123, 0
ds_write_b128 v9, v[{KF0}:{KF0+3}] offset:{L_KF + 32}
ds_write_b128 v9, v[{KF0+4}:{KF0+7}] offset:{L_KF + KFSZ + 32}
v_mul_u32_u24 v22, {OSZ}, v4
v_lshl_add_u32 v22, v3, 4, v22
v_lshrrev_b32 v10, 1, v2
v_and_b32 v10, 3, v10
v_mul_u32_u24 v10, 4128, v10
v_and_b32 v11, 1, v2
v_lshl_add_u32 v10, v11, 4, v10
ds_write_b128 v22, v[120:123] offset:{L_U + 2048}
ds_write_b128 v10, v[120:123] offset:{L_KF}""")
vm.wait("c")
A(f"""v_lshlrev_b32 v{CC+2}, 16, v{CC+1}
v_and_b32 v{CC+3}, 0xffff0000, v{CC+1}
v_and_b32 v{CC+1}, 0xffff0000, v{CC}
v_lshlrev_b32 v{CC}, 16, v{CC}""")
for i in range(4): A(f"v_mul_f32 v{100+i}, 0xbfb8aa3b, v{CC+i}")
for i in range(4): A(f"v_exp_f32 v{100+i}, v{100+i}")
for i in range(4): A(f"v_add_f32 v{100+i}, 1.0, v{100+i}")
for i in range(4): A(f"v_rcp_f32 v{100+i}, v{100+i}")
for i in range(4): A(f"v_mul_f32 v{CC+i}, v{CC+i}, v{100+i}")
for i in range(0, 4, 2):
    A(f"""v_cvt_pk_bf16_f32 v100, v{CC+i}, v{CC+i+1}
    v_lshlrev_b32 v{CC+i}, 16, v100
    v_and_b32 v{CC+i+1}, 0xffff0000, v100""")
MA = 104
vm.wait("wm")
for i in range(4):
    for j in range(4):
        t = 112 + 2 * (j % 2)
        A(f"v_lshlrev_b32 v{t}, 16, v{WM+4*i+j}\nv_and_b32 v{t+1}, 0xffff0000, v{WM+4*i+j}")
        if i == 0:
            A(f"v_pk_mul_f32 v[{MA+2*j}:{MA+2*j+1}], v[{t}:{t+1}], v[{CC}:{CC+1}] op_sel_hi:[1,0]")
        else:
            sel = "op_sel_hi:[1,0,1]" if i % 2 == 0 else "op_sel:[0,1,0] op_sel_hi:[1,1,1]"
            A(f"v_pk_fma_f32 v[{MA+2*j}:{MA+2*j+1}], v[{t}:{t+1}], v[{CC+(i//2)*2}:{CC+(i//2)*2+1}], v[{MA+2*j}:{MA+2*j+1}] {sel}")
A(f"""v_lshrrev_b32 v11, 4, v0
v_lshlrev_b32 v11, 8, v11
v_and_b32 v10, 7, v0
v_lshl_add_u32 v11, v10, 5, v11""")
for j in range(8):
    A(f"v_add_f32_dpp v{MA+j}, v{MA+j}, v{MA+j} row_shr:8 row_mask:0xf bank_mask:0xf bound_ctrl:0")
A(f"""v_cmp_le_u32 vcc, 8, v3
s_and_saveexec_b64 s[{SX}:{SX+1}], vcc
ds_write_b128 v11, v[{MA}:{MA+3}] offset:{L_MODP}
ds_write_b128 v11, v[{MA+4}:{MA+7}] offset:{L_MODP+16}
s_mov_b64 exec, s[{SX}:{SX+1}]""")
vm.wait("st1", extra="lgkmcnt(0)")
A(f"s_add_u32 s{sEP}, s{sEP}, 0x9e3779b9\ns_barrier")
set_flag(0, F1A, f"s_lshl_b32 s{T0}, s{sXG}, 5\ns_add_u32 s{T0}, s{T0}, s{sJ}", 10, 11)
stamp("flag1a")
PKR = 144
for u in range(4):
    A(f"ds_read_b64_tr_b16 v[{PKR+4*u}:{PKR+4*u+1}], v{PA+u}\nds_read_b64_tr_b16 v[{PKR+4*u+2}:{PKR+4*u+3}], v{PA+4+u}")
KFM = 56
A(f"""ds_read_b32 v{KFM}, v9 offset:{L_KF + 28}
ds_read_b32 v{KFM+1}, v9 offset:{L_KF + KFSZ + 28}
s_mov_b32 s47, 0""")
for u in range(4):
    A(f"s_waitcnt lgkmcnt({8-2*u})")
    vm.op(f"buffer_store_dwordx4 v[{PKR+4*u}:{PKR+4*u+3}], v{PD}, {W4}, s47 offen sc1", "st1b")
    if u < 3:
        A(f"s_add_u32 s47, s47, s45")
        if u == 1: A(f"s_add_u32 s47, s47, s46")
A(f"""s_cmp_lg_u32 s{sWAVE}, 1
s_cbranch_scc1 modf_done
v_lshlrev_b32 v11, 2, v2""")
for p in range(16):
    A(f"ds_read_b32 v{160+p}, v11 offset:{L_MODP+256*p}")
A("s_waitcnt lgkmcnt(0)")
for st in (8, 4, 2, 1):
    for p in range(st):
        A(f"v_add_f32 v{160+p}, v{160+p}, v{160+p+st}")
A(f"""v_add_u32 v10, s{sM}, v11
buffer_store_dword v160, v10, {W4}, 0 offen sc1
modf_done:""")
SA = 100
for i in range(4): A(f"v_mov_b32 v{SA+i}, 0")
for j in range(4):
    for rr in range(2):
        A(f"""v_dot2_f32_bf16 v{SA+2*rr}, v{SR+4*rr+j}, s{sONES}, v{SA+2*rr}
        v_dot2_f32_bf16 v{SA+2*rr+1}, v{SR+4*rr+j}, v{SR+4*rr+j}, v{SA+2*rr+1}""")
A("s_waitcnt lgkmcnt(0)")
for c in range(2):
    o = 124 + 4 * c
    A(f"v_alignbit_b32 v{o}, v{KF0+4*c}, v{KFM+c}, 16")
    for j in range(1, 4):
        A(f"v_alignbit_b32 v{o+j}, v{KF0+4*c+j}, v{KF0+4*c+j-1}, 16")
    A(f"ds_write_b128 v9, v[{o}:{o+3}] offset:{L_KF + c*KFSZ + 4128 + 32}")
for ctrl in ("row_shr:1", "row_shr:2", "row_shr:4", "row_shr:8"):
    for j in range(4):
        A(f"v_add_f32_dpp v{SA+j}, v{SA+j}, v{SA+j} {ctrl} row_mask:0xf bank_mask:0xf bound_ctrl:0")
for j in range(4):
    A(f"v_add_f32_dpp v{SA+j}, v{SA+j}, v{SA+j} row_bcast:15 row_mask:0xa bank_mask:0xf")
for j in range(4):
    A(f"v_add_f32_dpp v{SA+j}, v{SA+j}, v{SA+j} row_bcast:31 row_mask:0xc bank_mask:0xf")
a_ = capture(lambda: ln_final(SA, SA + 1, 104, 105)); b_ = capture(lambda: ln_final(SA + 2, SA + 3, 106, 107))
for x, y in zip(a_, b_):
    A(x)
    if y != "s_nop 0": A(y)
A(f"""s_lshl_b32 s{T0}, s2, 6
s_lshl_b32 s{T1}, s{sWAVE}, 4
s_add_u32 s{T0}, s{T0}, s{T1}
s_add_u32 s{T0}, s{T0}, {ST1}
v_mov_b32 v9, s{T0}
s_mov_b32 s{SX}, 0
s_mov_b32 s{SX+1}, 0x80000000
s_mov_b64 exec, s[{SX}:{SX+1}]""")
vm.op(f"buffer_store_dwordx4 v[104:107], v9, {W4}, 0 offen sc1", "st1b")
A("s_mov_b64 exec, -1")
stamp("p1b stores issued")
sCH, sHF = 44, 45
A.srd(SM1, 80, F * 2); A.srd(SM2, 84, 1024)
A(f"""s_lshr_b32 s{sCH}, s{sWAVE}, 1
s_and_b32 s{sHF}, s{sWAVE}, 1
v_min_u32 v12, 31, v2
v_lshlrev_b32 v12, 6, v12
s_lshl_b32 s{T0}, s{sXG}, 11
s_add_u32 s{T0}, s{T0}, {F1A}
v_add_u32 v12, s{T0}, v12
v_lshlrev_b32 v13, 6, v2
v_lshlrev_b32 v5, 4, v0
s_lshl_b32 s{T0}, s{sD0}, 12
v_add_u32 v5, s{T0}, v5
v_add_u32 v6, 4096, v5
v_and_b32 v7, 1, v0
v_mul_u32_u24 v7, {OSZ}, v7
v_lshrrev_b32 v8, 1, v0
v_lshl_add_u32 v7, v8, 4, v7
v_lshlrev_b32 v15, 1, v4
v_sub_u32 v15, v15, v3
v_lshlrev_b32 v15, 4, v15
s_mul_i32 s{T0}, s{sCH}, {USZ}
s_lshl_b32 s{T1}, s{sHF}, 7
s_add_u32 s{T0}, s{T0}, s{T1}
s_add_u32 s{T0}, s{T0}, {L_U + 240}
v_add_u32 v15, s{T0}, v15
v_and_b32 v8, 1, v3
v_mul_u32_u24 v8, 4130, v8
v_lshlrev_b32 v16, 6, v4
v_lshl_add_u32 v16, v3, 1, v16
v_sub_u32 v16, v16, v8
s_mul_i32 s{T0}, s{sCH}, {KFSZ}
s_lshl_b32 s{T1}, s{sHF}, 8
s_add_u32 s{T0}, s{T0}, s{T1}
s_add_u32 s{T0}, s{T0}, {L_KF + 4132}
v_add_u32 v16, s{T0}, v16
v_add_u32 v17, 1024, v16
v_add_u32 v18, 2048, v16
v_add_u32 v19, 3072, v16
v_lshlrev_b32 v20, 16, v{DD}
v_and_b32 v21, 0xffff0000, v{DD}
v_lshlrev_b32 v8, 6, v3
v_lshl_add_u32 v8, v4, 4, v8          ; 64a' + 16g
s_lshl_b32 s{T0}, s{sD0}, 12
s_lshl_b32 s{T1}, s{sWAVE}, 11
s_add_u32 s{T0}, s{T0}, s{T1}
v_add_u32 v14, s{T0}, v8
v_lshlrev_b32 v63, 1, v8
s_lshl_b32 s{T0}, s{sWAVE}, 12
s_add_u32 s{T0}, s{T0}, {ST1}
v_add_u32 v63, s{T0}, v63
v_lshrrev_b32 v9, 2, v3
v_cmp_eq_u32 vcc, 3, v9
v_lshlrev_b32 v23, 11, v9
v_and_b32 v10, 3, v3
v_cndmask_b32 v11, 0, 1, vcc
v_lshl_add_u32 v23, v11, 11, v23
v_mul_u32_u24 v10, 12288, v10
s_lshl_b32 s{T0}, s{sD0}, 2
s_add_u32 s{T0}, s{T0}, {MODF}
v_add3_u32 v23, v23, v10, s{T0}
v_and_b32 v9, 1, v9
v_cvt_f32_u32 v62, v9
v_lshlrev_b32 v10, 4, v2
s_mul_i32 s{T0}, s{sFG}, 11
s_add_u32 s46, s{T0}, s{sWAVE}         ; F0
s_lshl_b32 s{T0}, s46, 14
s_add_u32 s{T0}, s{T0}, {W1P}
v_add_u32 v248, s{T0}, v10
v_add_u32 v249, 0x10000, v248
v_add_u32 v250, 0x20000, v248
s_add_u32 s{T0}, s46, 8
s_cmp_ge_u32 s{T0}, 86
s_cselect_b32 s47, {OOB}, 0
s_cmp_eq_u32 s{sWAVE}, 3
s_cselect_b32 s47, {OOB}, s47
v_add_u32 v250, s47, v250
""")
vm.wait("st1b", extra="lgkmcnt(0)")
A("s_barrier")
set_flag(1, F1B, f"s_mov_b32 s{T0}, s2", 10, 11, pre="s_waitcnt vmcnt(0)")
stamp("flag1b")
ACC = 24
AB = [64, 96]; BB_ = [144, 176]
UL, QE, SE, ME = 208, 216, 224, 240
def aload(o, st):
    for q in range(8):
        r = AB[st] + 4 * q; base = 128 * (q & 1) + 4 * o
        A(f"ds_read2_b32 v[{r}:{r+1}], v{16+(q>>1)} offset0:{base} offset1:{base+1}")
        A(f"ds_read2_b32 v[{r+2}:{r+3}], v{16+(q>>1)} offset0:{base+2} offset1:{base+3}")
def bload(o, st):
    for dl in range(8):
        r = BB_[st] + 4 * dl
        A(f"ds_read_b128 v[{r}:{r+3}], v15 offset:{(o&1)*OSZ + 16*(112-16*dl+(o>>1))}")
aload(0, 0)
for i in range(32): A(f"v_mov_b32 v{ACC+i}, 0")
sal = []
sal += [f"s_lshr_b32 s{T4}, s{sJ}, 3", f"s_lshl_b32 s{sROT1}, s{T4}, 1", f"s_add_u32 s{sROT1}, s{sROT1}, s{sFG}",
        f"s_lshl_b32 s{sROT1}, s{sROT1}, 1", f"s_and_b32 s{sROT1}, s{sROT1}, 15"]
for t in range(16):
    sal += [f"s_add_u32 s{ROT1[t]}, s{sROT1}, {t}", f"s_and_b32 s{ROT1[t]}, s{ROT1[t]}, 15", f"s_lshl_b32 s{ROT1[t]}, s{ROT1[t]}, 10"]
sal += [f"s_mul_i32 s{T4}, s{T4}, 11", f"s_lshr_b32 s{T4}, s{T4}, 1", f"s_mul_i32 s{T5}, s{sFG}, 3", f"s_add_u32 s{T4}, s{T4}, s{T5}",
        f"s_cmp_ge_u32 s{sWAVE}, 2", f"s_cselect_b32 s{T5}, 21, 99",
        f"s_cmp_ge_u32 s{T4}, 22", f"s_cselect_b32 s15, 22, 0", f"s_sub_u32 s{T4}, s{T4}, s15"]
for i in range(22):
    r = ROT2[i]
    sal += [(f"s_lshl_b32 s{r}, s{T4}, 12", f"s_cmp_eq_u32 s{T4}, s{T5}", f"s_cselect_b32 s{r}, {OOB}, s{r}"),
            (f"s_add_u32 s{T4}, s{T4}, 1", f"s_cmp_eq_u32 s{T4}, 22", f"s_cselect_b32 s{T4}, 0, s{T4}")]
for x in sal: A(x if isinstance(x, str) else "\n".join(x))
sal = []
poll(12, 1, 0, 22, "p1a")
A("s_barrier")
stamp("poll1a done")
vm.op(f"buffer_load_dwordx4 v[{UL}:{UL+3}], v5, {W4}, 0 offen sc1", "u")
vm.op(f"buffer_load_dwordx4 v[{UL+4}:{UL+7}], v6, {W4}, 0 offen sc1", "u")
A(f"s_mov_b32 s{T2}, {QP}")
for jn in range(2):
    vm.op(f"buffer_load_dwordx4 v[{QE+4*jn}:{QE+4*jn+3}], v14, {W4}, s{T2} offen offset:{1024*jn} sc1", "qe")
for k in range(4):
    A(f"s_mov_b32 s{T1}, {F1B + 4096*k}")
    vm.op(f"buffer_load_dword v{56+k}, v13, {W4}, s{T1} offen sc1", "f1b")
vm.wait("u")
A(f"""ds_write_b128 v7, v[{UL}:{UL+3}] offset:{L_U}
ds_write_b128 v7, v[{UL+4}:{UL+7}] offset:{L_U+USZ}
s_waitcnt lgkmcnt(0)
s_barrier""")
bload(0, 0)
stamp("u in lds")
w1q = [(t, j) for t in range(16) for j in range(3)]
def w1_issue(n):
    for _ in range(n):
        if not w1q: return
        t, j = w1q.pop(0)
        vm.op(f"buffer_load_dwordx4 a[{(t*3+j)*4}:{(t*3+j)*4+3}], v{248+j}, {W4}, s{ROT1[t]} offen sc1", f"w1_{t}")
def me_final():
    vm.wait("me")
    for sh in (1, 2):
        A("s_nop 1")
        for k in range(2):
            A(f"v_add_f32_dpp v{UL+k}, v{UL+k}, v{UL+k} row_shr:{sh} row_mask:0xf bank_mask:0xf bound_ctrl:0")
    A(f"""v_cvt_pk_bf16_f32 v{UL+2}, v{UL}, v{UL+1}
    v_lshlrev_b32 v{UL}, 16, v{UL+2}
    v_and_b32 v{UL+1}, 0xffff0000, v{UL+2}
    v_add_f32 v{UL}, v{UL}, v62
    v_add_f32 v{UL+1}, v{UL+1}, v62
    v_cvt_pk_bf16_f32 v{UL+2}, v{UL}, v{UL+1}
    v_lshlrev_b32 v{UL}, 16, v{UL+2}
    v_and_b32 v{UL+1}, 0xffff0000, v{UL+2}
    s_nop 1""")
    for i in range(4):
        for k in range(2):
            A(f"v_mov_b32_dpp v{ME+2*i+k}, v{UL+k} row_newbcast:{4*i+3} row_mask:0xf bank_mask:0xf")
for o in range(4):
    st = o & 1
    A("s_waitcnt lgkmcnt(0)")
    lds = []
    if o + 1 < 4:
        lds = capture(lambda: (bload(o + 1, st ^ 1), aload(o + 1, st ^ 1)))
    side = []; cnt = 0
    if o == 3: side = capture(me_final)
    for dl in range(8):
        for q in range(8 - dl):
            n = q + dl
            A(f"v_mfma_f32_16x16x32_bf16 v[{ACC+4*n}:{ACC+4*n+3}], v[{AB[st]+4*q}:{AB[st]+4*q+3}], v[{BB_[st]+4*dl}:{BB_[st]+4*dl+3}], v[{ACC+4*n}:{ACC+4*n+3}]")
            cnt += 1
            if lds: A(lds.pop(0))
            if o > P("F1B_O", 0) and o >= P("W1_O0", 1) and cnt % P("W1_EVERY", 4) == 0: w1_issue(1)
            for _ in range(2 if o == 0 else 1):
                if sal:
                    x = sal.pop(0)
                    A(x if isinstance(x, str) else "\n".join(x))
            if side: A(side.pop(0))
    for x in side: A(x)
    if o == P("F1B_O", 0):
        vm.wait("f1b")
        A(f"""v_xor_b32 v56, s{sEP}, v56
        v_xor_b32 v57, s{sEP}, v57
        v_xor_b32 v58, s{sEP}, v58
        v_xor_b32 v59, s{sEP}, v59
        v_or3_b32 v56, v56, v57, v58
        v_or_b32 v56, v56, v59
        v_cmp_ne_u32 vcc, 0, v56
        s_nop 1
        s_cbranch_vccz p1b_done
        v_add_u32 v22, {F1B}, v13""")
        poll(22, 4, 4096, 56, "p1b", only_wave0=False)
        vm.op(f"buffer_load_dwordx2 v[{UL}:{UL+1}], v23, {W4}, 0 offen sc1", "me")
        for jn in range(2):
            for hh in range(2):
                vm.op(f"buffer_load_dwordx4 v[{SE+8*jn+4*hh}:{SE+8*jn+4*hh+3}], v63, {W4}, 0 offen offset:{2048*jn+16*hh} sc1", "se")
        if P("WTOUCH", 0):
            A(f"""s_mul_i32 s{T0}, s{sJ}, 44032
            v_lshlrev_b32 v22, 7, v0
            v_add_u32 v22, s{T0}, v22
            v_add_u32 v60, 32768, v22
            v_cmp_gt_u32 vcc, 88, v0
            v_mov_b32 v61, {OOB}
            s_mov_b32 s{T0}, {W1P}
            s_mov_b32 s{T1}, {W2P}
            v_cndmask_b32 v60, v61, v60, vcc""")
            for (ad, so) in ((22, T0), (60, T0), (22, T1), (60, T1)):
                vm.op(f"buffer_load_dword v61, v{ad}, {W4}, s{so} offen sc1", "touch")
        stamp("flag1b all seen")
assert not sal
stamp("conv mfma done")
A(f"""v_lshlrev_b32 v9, 4, v2
s_lshl_b32 s{T0}, s{sWAVE}, 13
s_add_u32 s{T0}, s{T0}, {L_RED}
v_add_u32 v10, s{T0}, v9
s_lshl_b32 s{T0}, s{sWAVE}, 11
s_add_u32 s{T0}, s{T0}, {L_RED}
v_add_u32 v11, s{T0}, v9
v_lshrrev_b32 v5, 1, v4
v_sub_u32 v5, 1, v5
v_mul_u32_u24 v5, {OSZ}, v5
v_lshlrev_b32 v6, 4, v3
v_sub_u32 v5, v5, v6
v_and_b32 v6, 1, v4
v_lshlrev_b32 v6, 3, v6
v_sub_u32 v5, v5, v6
s_lshl_b32 s{T0}, s{sWAVE}, 9
s_sub_u32 s{T0}, {L_U + 16*(127-16) + 8}, s{T0}
v_add_u32 v5, s{T0}, v5""")
for n in range(8):
    A(f"ds_write_b128 v10, v[{ACC+4*n}:{ACC+4*n+3}] offset:{1024*n}")
UE = 128
for jn in range(2):
    for c in range(2):
        A(f"ds_read_b64 v[{UE+4*jn+2*c}:{UE+4*jn+2*c+1}], v5 offset:{256*(1-jn) + c*USZ}")
A("s_waitcnt lgkmcnt(0)\ns_barrier")
RR = 64
for jn in range(2):
    for src in range(4):
        r = RR + 16 * jn + 4 * src
        A(f"ds_read_b128 v[{r}:{r+3}], v11 offset:{8192*src + 1024*jn}")
vm.wait("qe", "se", "me")
XO, XS = 112, 120
SAp, C1p, GAp, C2p = ME, ME + 2, ME + 4, ME + 6
A(f"s_mov_b32 s{T2}, {X1S}\ns_mov_b32 s{T3}, {X1P}")
for jn in range(2):
    A(f"s_waitcnt lgkmcnt({4*(1-jn)})")
    seqs = []
    for r in range(4):
        Y, QF, QC, H, X = [24 + 10 * r + 2 * k for k in range(5)]
        b = RR + 16 * jn
        dw = 1 if r < 2 else 0
        sq = []
        for c in range(2):
            src = UE + 4 * jn + 2 * c + dw
            sq.append(f"v_and_b32 v{X+c}, 0xffff0000, v{src}" if r % 2 == 0 else f"v_lshlrev_b32 v{X+c}, 16, v{src}")
        st = SE + 8 * jn + 2 * r
        sq += f"""v_add_f32 v{Y}, v{b+r}, v{b+4+r}
        v_add_f32 v{Y+1}, v{b+8+r}, v{b+12+r}
        v_lshlrev_b32 v{QF}, 16, v{QE+4*jn+r}
        v_and_b32 v{QF+1}, 0xffff0000, v{QE+4*jn+r}
        v_pk_fma_f32 v[{Y}:{Y+1}], v[{X}:{X+1}], v[20:21], v[{Y}:{Y+1}]
        v_pk_add_f32 v[{QC}:{QC+1}], v[{QF}:{QF+1}], v[{st}:{st+1}] op_sel:[0,1] op_sel_hi:[1,1] neg_lo:[0,1] neg_hi:[0,1]
        v_pk_mul_f32 v[{H}:{H+1}], v[{QC}:{QC+1}], v[{st}:{st+1}] op_sel_hi:[1,0]
        v_pk_fma_f32 v[{H}:{H+1}], v[{H}:{H+1}], v[{C1p}:{C1p+1}], v[{SAp}:{SAp+1}]
        v_pk_mul_f32 v[{H}:{H+1}], v[{H}:{H+1}], v[{Y}:{Y+1}]
        v_pk_fma_f32 v[{QC}:{QC+1}], v[{H}:{H+1}], v[{GAp}:{GAp+1}], v[{QC}:{QC+1}]
        v_pk_fma_f32 v[{QF}:{QF+1}], v[{H}:{H+1}], v[{GAp}:{GAp+1}], v[{QF}:{QF+1}]
        v_pk_mul_f32 v[{QC}:{QC+1}], v[{QC}:{QC+1}], v[{C2p}:{C2p+1}]
        v_cvt_pk_bf16_f32 v{XO+4*jn+r}, v{QF}, v{QF+1}
        v_cvt_pk_bf16_f32 v{XS+4*jn+r}, v{QC}, v{QC+1}""".split("\n")
        seqs.append(sq)
    for grp in zip(*seqs):
        for x in grp: A(x)
    vm.op(f"buffer_store_dwordx4 v[{XS+4*jn}:{XS+4*jn+3}], v14, {W4}, s{T2} offen offset:{1024*jn} sc1", "st2")
    vm.op(f"buffer_store_dwordx4 v[{XO+4*jn}:{XO+4*jn+3}], v14, {W4}, s{T3} offen offset:{1024*jn} sc1", "st2")
stamp("st2 issued")
vm.wait("st2")
A("s_barrier")
set_flag(0, F2, f"s_mov_b32 s{T0}, s2", 10, 11)
stamp("flag2")
TP = 144
A(f"""v_lshlrev_b32 v9, 3, v0
v_add_u32 v9, {MODF + 3*2048}, v9
v_lshlrev_b32 v11, 3, v4
s_lshl_b32 s{T0}, s46, 5
v_add_u32 v11, s{T0}, v11
v_lshlrev_b32 v15, 3, v3
s_lshl_b32 s{T0}, s{sR}, 9
s_lshl_b32 s{T1}, s{sWAVE}, 7
s_add_u32 s{T0}, s{T0}, s{T1}
s_add_u32 s{T0}, s{T0}, {ST1 + 4}
v_add_u32 v15, s{T0}, v15""")
for ks in range(4):
    A(f"s_mov_b32 s{T1}, {12288*ks}\ns_mov_b32 s{T0}, {12288*ks+4096}")
    for sec in range(3):
        so, off = (T1, 2048 * sec) if sec < 2 else (T0, 0)
        vm.op(f"buffer_load_dwordx2 v[{TP+8*sec+2*ks}:{TP+8*sec+2*ks+1}], v9, {W4}, s{so} offen offset:{off} sc1", "tp")
B1R, M1R = 208, 140
for j in range(3):
    vm.op(f"buffer_load_dwordx2 v[{B1R+2*j}:{B1R+2*j+1}], v11, s[{SM1}:{SM1+3}], 0 offen offset:{128*j}", "b1")
vm.op(f"buffer_load_dword v{M1R}, v15, {W4}, 0 offen sc1", "m1")
w1_issue(99)
vm.wait("tp")
for sec in range(3):
    b = TP + 8 * sec
    A(f"""v_pk_add_f32 v[{b}:{b+1}], v[{b}:{b+1}], v[{b+2}:{b+3}]
    v_pk_add_f32 v[{b+4}:{b+5}], v[{b+4}:{b+5}], v[{b+6}:{b+7}]""")
for sec in range(3):
    b = TP + 8 * sec
    A(f"""v_pk_add_f32 v[{b}:{b+1}], v[{b}:{b+1}], v[{b+4}:{b+5}]
    v_cvt_pk_bf16_f32 v{b+2}, v{b}, v{b+1}""")
A(f"""v_lshlrev_b32 v{TP+8}, 16, v{TP+10}
v_and_b32 v{TP+9}, 0xffff0000, v{TP+10}
v_lshlrev_b32 v{TP+16}, 16, v{TP+18}
v_and_b32 v{TP+17}, 0xffff0000, v{TP+18}
v_add_f32 v{TP+8}, 1.0, v{TP+8}
v_add_f32 v{TP+9}, 1.0, v{TP+9}
v_cvt_pk_bf16_f32 v{TP+10}, v{TP+8}, v{TP+9}
v_lshlrev_b32 v9, 2, v0
v_add_u32 v9, {L_TB}, v9
v_lshlrev_b32 v10, 3, v0
v_add_u32 v10, {L_TGB}, v10
ds_write_b32 v9, v{TP+2}
ds_write_b32 v9, v{TP+2} offset:1024
ds_write_b32 v9, v{TP+10} offset:{L_TC2-L_TB}
ds_write_b32 v9, v{TP+10} offset:{L_TC2-L_TB+1024}
ds_write_b64 v10, v[{TP+16}:{TP+17}]
v_and_b32 v9, 1, v3
v_mul_u32_u24 v9, {L_TC2-L_TB}, v9
v_lshl_add_u32 v9, v4, 4, v9
s_lshl_b32 s{T0}, s{sROT1}, 6
s_add_u32 s{T0}, s{T0}, {L_TB}
v_add_u32 v9, s{T0}, v9""")
A(f"""v_lshlrev_b32 v5, 13, v4
s_lshl_b32 s{T0}, s{sWAVE}, 15
s_lshl_b32 s{T1}, s{sR}, 8
s_add_u32 s{T0}, s{T0}, s{T1}
v_add_u32 v5, s{T0}, v5
s_and_b32 s{T1}, s{sWAVE}, 1
s_lshl_b32 s{T1}, s{T1}, 2
v_xor_b32 v7, s{T1}, v3
v_lshl_add_u32 v5, v7, 4, v5
v_add_u32 v6, {X1P}, v5
v_add_u32 v5, {X1S}, v5
v_and_b32 v7, 1, v4
v_lshlrev_b32 v8, 10, v4
v_lshl_add_u32 v8, v3, 2, v8
v_add_u32 v8, {L_X}, v8""")
for sg in range(4):
    A(f"v_xor_b32 v10, {sg}, v7\nv_lshl_add_u32 v{16+sg}, v10, 6, v8")
A(f"v_xor_b32 v10, s{sWAVE}, v7\nv_lshl_add_u32 v141, v10, 6, v8\nv_subrev_u32 v141, {L_X-L_XP}, v141")
A(f"""v_lshlrev_b32 v10, 4, v2
s_lshl_b32 s{T0}, s{sWAVE}, 10
v_add_u32 v11, s{T0}, v10
s_mul_i32 s{T0}, s{sFG}, {2*86*1024}
s_add_u32 s{T0}, s{T0}, {W2P}
v_add_u32 v20, s{T0}, v11
v_add_u32 v21, {86*1024}, v20
s_mul_i32 s{T0}, s{sR}, {2*86*1024}
s_add_u32 s{T0}, s{T0}, {HID}
v_add_u32 v22, s{T0}, v11
v_add_u32 v23, {86*1024}, v22
v_add_u32 v12, {F2}, v13
s_mul_i32 s{T0}, s{sWAVE}, 384
s_add_u32 s{T0}, s{T0}, {L_BB}
v_lshl_add_u32 v14, v4, 4, s{T0}
s_waitcnt lgkmcnt(0)
s_barrier""")
MBF = 64
for t in range(16):
    A(f"ds_read_b128 v[{MBF+4*t}:{MBF+4*t+3}], v9 offset:{64*t}")
MD = 24
for i in range(12): A(f"v_mov_b32 v{MD+i}, 0")
A("s_waitcnt lgkmcnt(0)")
for t in range(16):
    vm.wait(f"w1_{t}")
    for j in range(3):
        A(f"v_mfma_f32_16x16x32_bf16 v[{MD+4*j}:{MD+4*j+3}], a[{(t*3+j)*4}:{(t*3+j)*4+3}], v[{MBF+4*t}:{MBF+4*t+3}], v[{MD+4*j}:{MD+4*j+3}]")
stamp("MB pass done")
def w2reg(i, cb):
    k = 2 * i + cb
    return f"a[{192+4*k}:{195+4*k}]" if k < 16 else f"v[{144+4*(k-16)}:{147+4*(k-16)}]"
w2q = [(i, cb) for i in range(22) for cb in range(2)]
def w2_issue(n):
    for _ in range(n):
        if not w2q: return
        i, cb = w2q.pop(0)
        vm.op(f"buffer_load_dwordx4 {w2reg(i,cb)}, v{20+cb}, {W4}, s{ROT2[i]} offen sc1", "w2")
A("s_nop 7\ns_nop 1")
Bq = 36
for j in range(3):
    for r in range(4):
        A(f"v_mov_b32_dpp v{Bq+4*j+r}, v{MD+4*j+r} row_newbcast:0 row_mask:0xf bank_mask:0xf")
        A(f"v_mov_b32_dpp v{Bq+12+4*j+r}, v{MD+4*j+r} row_newbcast:1 row_mask:0xf bank_mask:0xf")
for j in range(3):
    A(f"""v_lshlrev_b32 v60, 16, v{B1R+2*j}
    v_and_b32 v61, 0xffff0000, v{B1R+2*j}
    v_lshlrev_b32 v62, 16, v{B1R+2*j+1}
    v_and_b32 v63, 0xffff0000, v{B1R+2*j+1}
    v_pk_add_f32 v[{Bq+4*j}:{Bq+4*j+1}], v[{Bq+4*j}:{Bq+4*j+1}], v[60:61]
    v_pk_add_f32 v[{Bq+4*j+2}:{Bq+4*j+3}], v[{Bq+4*j+2}:{Bq+4*j+3}], v[62:63]""")
A(f"s_mov_b32 s{SX}, 0x00010001\ns_mov_b32 s{SX+1}, 0x00010001\ns_mov_b64 exec, s[{SX}:{SX+1}]")
for i in range(6):
    A(f"ds_write_b128 v14, v[{Bq+4*i}:{Bq+4*i+3}] offset:{64*i}")
A("s_mov_b64 exec, -1")
w2_issue(P("W2_EARLY", 8))
G1 = 24; SAC = 128
A("s_waitcnt lgkmcnt(0)")
for i in range(48): A(f"v_mov_b32 v{G1+i}, 0")
stamp("pre poll2")
poll(12, 4, 4096, 136, "p2")
A(f"""s_cmp_lg_u32 s2, 0
s_cbranch_scc1 noep
s_cmp_lg_u32 s{sWAVE}, 0
s_cbranch_scc1 noep
v_mov_b32 v10, {EPOCH}
v_mov_b32 v11, s{sEP}
s_mov_b64 exec, 1
buffer_store_dword v11, v10, {W4}, 0 offen sc1
s_mov_b64 exec, -1
noep:
s_barrier""")
stamp("poll2 done")
A(f"s_lshl_b32 s{T5}, s{sWAVE}, 10\ns_add_u32 s{T5}, s{T5}, {L_X}")
for c in range(16):
    A(f"""s_add_u32 s{T0}, s{T5}, {4096*c}
    s_mov_b32 m0, s{T0}
    s_lshl_b32 s{T1}, s{ROT1[c]}, 7""")
    vm.op(f"buffer_load_dwordx4 v5, {W4}, s{T1} offen sc1 lds", f"x{c//4}")
A(f"s_sub_u32 s{T5}, s{T5}, {L_X - L_XP}")
def xp_issue(c):
    A(f"""s_add_u32 s{T0}, s{T5}, {4096*c}
    s_mov_b32 m0, s{T0}
    s_lshl_b32 s{T1}, s{ROT1[c]}, 7""")
    vm.op(f"buffer_load_dwordx4 v6, {W4}, s{T1} offen sc1 lds", f"p{c//4}")
BF = [72, 88]; PF = [104, 112]; ONE = 120; D1 = 136; D2 = 128
def bl(t, st):
    for sg in range(4):
        r = BF[st] + 4 * sg
        A(f"ds_read2st64_b32 v[{r}:{r+1}], v{16+sg} offset0:{16*t} offset1:{16*t+1}")
        A(f"ds_read2st64_b32 v[{r+2}:{r+3}], v{16+sg} offset0:{16*t+2} offset1:{16*t+3}")
def pl(u, r):
    A(f"ds_read2st64_b32 v[{r}:{r+1}], v141 offset0:{16*u} offset1:{16*u+1}")
    A(f"ds_read2st64_b32 v[{r+2}:{r+3}], v141 offset0:{16*u+2} offset1:{16*u+3}")
for i in range(4): A(f"v_mov_b32 v{ONE+i}, s{sONES}\nv_mov_b32 v{D1+i}, 0\nv_mov_b32 v{D2+i}, 0")
vm.wait("x0"); A("s_barrier")
stamp("x chunk0")
bl(0, 0)
W2_T0, W2_EVERY = P("W2_T0", 4), P("W2_EVERY", 4)
xpq = list(range(16))
for t in range(16):
    st = t & 1
    lds = []
    if (t + 1) % 4 == 0 and t + 1 < 16:
        tags = [f"x{(t+1)//4}"] + {3: [], 7: ["p0", "p1"], 11: ["p2", "p3"]}[t]
        vm.wait(*tags); A("s_barrier")
    if t + 1 < 16: lds += capture(lambda: bl(t + 1, st ^ 1))
    if 8 <= t + 1 < 16:
        for k in range(2): lds += capture(lambda: pl(2 * (t + 1 - 8) + k, PF[st ^ 1] + 4 * k))
    A("s_waitcnt lgkmcnt(0)")
    if os.environ.get("G1ST"): stamp(f"g1 t{t}")
    mfs = []
    for j in range(3):
        for sg in range(4):
            c = G1 + (j * 4 + sg) * 4
            mfs.append(f"v_mfma_f32_16x16x32_bf16 v[{c}:{c+3}], a[{(t*3+j)*4}:{(t*3+j)*4+3}], v[{BF[st]+4*sg}:{BF[st]+4*sg+3}], v[{c}:{c+3}]")
    if t >= 8:
        for k in range(2):
            p = PF[st] + 4 * k
            mfs.insert(0, f"v_mfma_f32_16x16x32_bf16 v[{D1}:{D1+3}], v[{ONE}:{ONE+3}], v[{p}:{p+3}], v[{D1}:{D1+3}]")
            mfs.insert(0, f"v_mfma_f32_16x16x32_bf16 v[{D2}:{D2+3}], v[{p}:{p+3}], v[{p}:{p+3}], v[{D2}:{D2+3}]")
    for mf, x in enumerate(mfs, 1):
        A(x)
        if lds: A(lds.pop(0))
        if mf % 3 == 0 and xpq: xp_issue(xpq.pop(0))
        elif t >= W2_T0 and mf % W2_EVERY == 0: w2_issue(1)
    assert not lds
SAC = 128
A(f"""v_and_b32 v124, 3, v3
v_lshrrev_b32 v125, 2, v3
v_cmp_eq_u32 s[{SX}:{SX+1}], v125, v4
v_lshlrev_b32 v126, 3, v3
s_lshl_b32 s{T0}, s{sWAVE}, 7
s_add_u32 s{T0}, s{T0}, {L_ST}
v_add_u32 v127, s{T0}, v126
v_add_u32 v126, {L_ST}, v126
v_cmp_eq_u32 vcc, 1, v124
s_nop 1
v_cndmask_b32 v{D2}, v{D2}, v{D2+1}, vcc
v_cmp_eq_u32 vcc, 2, v124
s_nop 1
v_cndmask_b32 v{D2}, v{D2}, v{D2+2}, vcc
v_cmp_eq_u32 vcc, 3, v124
s_nop 1
v_cndmask_b32 v{D2}, v{D2}, v{D2+3}, vcc""")
ln_final(D1, D2, 104, 105)
A(f"""v_sub_f32 v105, v105, v{M1R}
v_mul_f32 v105, v105, v104
s_mov_b64 exec, s[{SX}:{SX+1}]
ds_write_b64 v127, v[104:105]
s_mov_b64 exec, -1
s_waitcnt lgkmcnt(0)
s_barrier""")
for sg in range(4):
    A(f"ds_read_b64 v[{SAC+2*sg}:{SAC+2*sg+1}], v126 offset:{128*sg}")
stamp("gemm1 mfma done")
for i in range(6):
    A(f"ds_read_b128 v[{72+4*i}:{75+4*i}], v14 offset:{64*i}")
A(f"""v_lshrrev_b32 v5, 1, v4
v_lshlrev_b32 v5, 9, v5
v_lshl_add_u32 v5, v3, 4, v5
v_and_b32 v6, 1, v4
v_lshl_add_u32 v5, v6, 3, v5
s_mul_i32 s{T0}, s{sR}, {2*86*1024}
s_lshl_b32 s{T1}, s46, 10
s_add_u32 s{T0}, s{T0}, s{T1}
s_add_u32 s{T0}, s{T0}, {HID}
v_add_u32 v5, s{T0}, v5
v_add_u32 v6, 4096, v5
v_add_u32 v7, 8192, v5
v_add_u32 v7, s47, v7
s_mov_b32 s{T3}, {86*1024}
s_waitcnt lgkmcnt(0)""")
for j in range(3):
    for sp2 in range(2):
        seqs = []
        for sg in (2 * sp2, 2 * sp2 + 1):
            c = G1 + (j * 4 + sg) * 4
            sp = SAC + 2 * sg
            TT = 96 + 4 * (sg & 1)
            sq = []
            for hh in range(2):
                sq.append(f"v_pk_fma_f32 v[{TT+2*hh}:{TT+2*hh+1}], v[{84+4*j+2*hh}:{85+4*j+2*hh}], v[{sp}:{sp+1}], v[{72+4*j+2*hh}:{73+4*j+2*hh}] op_sel:[0,1,0] op_sel_hi:[1,1,1] neg_lo:[0,1,0] neg_hi:[0,1,0]")
            for hh in range(2):
                sq.append(f"v_pk_fma_f32 v[{c+2*hh}:{c+2*hh+1}], v[{c+2*hh}:{c+2*hh+1}], v[{sp}:{sp+1}], v[{TT+2*hh}:{TT+2*hh+1}] op_sel_hi:[1,0,1]")
            for r in range(4): sq.append(f"v_max_f32 v{c+r}, 0, v{c+r}")
            sq += [f"v_pk_mul_f32 v[{c}:{c+1}], v[{c}:{c+1}], v[{c}:{c+1}]",
                   f"v_pk_mul_f32 v[{c+2}:{c+3}], v[{c+2}:{c+3}], v[{c+2}:{c+3}]",
                   f"v_cvt_pk_bf16_f32 v{c}, v{c}, v{c+1}",
                   f"v_cvt_pk_bf16_f32 v{c+1}, v{c+2}, v{c+3}"]
            seqs.append(sq)
        for grp in zip(*seqs):
            for x in grp: A(x)
        for sg in (2 * sp2, 2 * sp2 + 1):
            c = G1 + (j * 4 + sg) * 4
            vm.op(f"buffer_store_dwordx2 v[{c}:{c+1}], v{5+j}, {W4}, {'s%d'%T3 if sg>>1 else '0'} offen offset:{256*(sg&1)} {'' if P('PLAIN_HID',0) else 'sc1'}", "st3")
stamp("st3 issued")
XR, BR, GR = 96, 104, 112
A(f"""v_and_b32 v8, 31, v2
v_lshrrev_b32 v9, 5, v2
s_lshr_b32 s{T0}, s{sWAVE}, 1
s_and_b32 s{T1}, s{sWAVE}, 1
s_lshl_b32 s{T2}, s{sFG}, 7
s_lshl_b32 s{T4}, s{T1}, 6
s_add_u32 s{T2}, s{T2}, s{T4}
v_lshlrev_b32 v10, 3, v9
v_add_u32 v10, s{T2}, v10
v_lshlrev_b32 v11, 1, v10
v_add_u32 v11, {L_TGB}, v11
s_lshl_b32 s{T4}, s{sR}, 6
s_lshl_b32 s{T5}, s{T0}, 5
s_add_u32 s{T4}, s{T4}, s{T5}
v_add_u32 v12, s{T4}, v8
v_lshlrev_b32 v15, 11, v10
v_lshl_add_u32 v15, v12, 2, v15
v_add_u32 v15, {X1P}, v15
v_lshl_add_u32 v12, v12, 10, v10
v_min_u32 v16, 7, v2
v_lshlrev_b32 v16, 6, v16
s_lshl_b32 s{T0}, s{sR}, 9
s_add_u32 s{T0}, s{T0}, {F3}
v_add_u32 v16, s{T0}, v16""")
for q in range(4):
    A(f"ds_read_b128 v[{GR+4*q}:{GR+4*q+3}], v11 offset:{32*q}")
for q in range(4):
    for pp in range(2):
        A(f"s_mov_b32 s{T1}, {8192*(4*q+pp)}")
        vm.op(f"buffer_load_dword v{XR+2*q+pp}, v15, {W4}, s{T1} offen sc1", "xr")
for q in range(4):
    vm.op(f"buffer_load_dwordx2 v[{BR+2*q}:{BR+2*q+1}], v10, s[{SM2}:{SM2+3}], 0 offen offset:{16*q}", "xr")
w2_issue(99)
vm.wait("st3")
A("s_barrier")
set_flag(0, F3, f"s_lshl_b32 s{T0}, s{sR}, 3\ns_add_u32 s{T0}, s{T0}, s{sFG}", 17, 18)
if P("HTOUCH", 1):
    A(f"""v_lshlrev_b32 v19, 12, v4
    v_bfe_u32 v20, v2, 3, 1
    v_mul_u32_u24 v20, {86*1024}, v20
    v_and_b32 v21, 7, v2
    v_lshl_add_u32 v19, v21, 7, v19
    s_mul_i32 s{T0}, s{sR}, {2*86*1024}
    s_lshl_b32 s{T1}, s46, 10
    s_add_u32 s{T0}, s{T0}, s{T1}
    s_add_u32 s{T0}, s{T0}, {HID}
    v_add3_u32 v19, v19, v20, s{T0}
    s_cmp_eq_u32 s47, 0
    s_cselect_b32 s{T1}, 48, 32
    v_cmp_gt_u32 vcc, s{T1}, v2
    v_mov_b32 v20, {OOB}
    s_nop 0
    v_cndmask_b32 v19, v20, v19, vcc""")
    vm.op(f"buffer_load_dword v21, v19, {W4}, 0 offen sc1", "touch")
G2 = 24
for i in range(64): A(f"v_mov_b32 v{G2+i}, 0")
stamp("flag3")
poll(16, 1, 0, 17, "p3")
A("s_barrier")
stamp("poll3 done")
HD = P("HD", 6)
def h_issue(i):
    for sb in range(2):
        vm.op(f"buffer_load_dwordx4 a[{(2*i+sb)*4}:{(2*i+sb)*4+3}], v{22+sb}, {W4}, s{ROT2[i]} offen sc1", f"h{i}")
for i in range(HD): h_issue(i)
for i in range(22):
    vm.wait(f"h{i}")
    for sb in range(2):
        for cb in range(2):
            c = G2 + 16 * (2 * sb + cb)
            A(f"v_mfma_f32_32x32x16_bf16 v[{c}:{c+15}], {w2reg(i,cb)}, a[{(2*i+sb)*4}:{(2*i+sb)*4+3}], v[{c}:{c+15}]")
            if sb == 0 and cb == 0 and i + HD < 22: h_issue(i + HD)
stamp("gemm2 mfma done")
A(f"""s_nop 7
s_nop 3
v_lshlrev_b32 v13, 4, v2""")
for T in range(4):
    lab = A.label("skip")
    A(f"""s_cmp_eq_u32 s{sWAVE}, {T}
    s_cbranch_scc1 {lab}
    s_sub_u32 s{T0}, s{sWAVE}, {T+1}
    s_and_b32 s{T0}, s{T0}, 3
    s_lshl_b32 s{T0}, s{T0}, 12
    s_add_u32 s{T0}, s{T0}, {L_RED + T*12288}
    v_add_u32 v14, s{T0}, v13""")
    for q in range(4):
        A(f"ds_write_b128 v14, v[{G2+16*T+4*q}:{G2+16*T+4*q+3}] offset:{1024*q}")
    A(f"{lab}:")
OWN = 144
for T in range(4):
    lab = A.label("mv")
    A(f"s_cmp_lg_u32 s{sWAVE}, {T}\ns_cbranch_scc1 {lab}")
    for i in range(16): A(f"v_mov_b32 v{OWN+i}, v{G2+16*T+i}")
    A(f"{lab}:")
A(f"""s_mul_i32 s{T0}, s{sWAVE}, 12288
s_add_u32 s{T0}, s{T0}, {L_RED}
v_add_u32 v14, s{T0}, v13
s_waitcnt lgkmcnt(0)
s_barrier""")
for q in range(4):
    for sl in range(3):
        A(f"ds_read_b128 v[{G2+16*sl+4*q}:{G2+16*sl+4*q+3}], v14 offset:{4096*sl+1024*q}")
U = 160
for q in range(4):
    c = OWN + 4 * q
    A(f"""v_lshlrev_b32 v{U}, 16, v{BR+2*q}
    v_and_b32 v{U+1}, 0xffff0000, v{BR+2*q}
    v_lshlrev_b32 v{U+2}, 16, v{BR+2*q+1}
    v_and_b32 v{U+3}, 0xffff0000, v{BR+2*q+1}
    v_pk_add_f32 v[{c}:{c+1}], v[{c}:{c+1}], v[{U}:{U+1}]
    v_pk_add_f32 v[{c+2}:{c+3}], v[{c+2}:{c+3}], v[{U+2}:{U+3}]
    v_lshlrev_b32 v{U}, 16, v{XR+2*q}
    v_and_b32 v{U+1}, 0xffff0000, v{XR+2*q}
    v_lshlrev_b32 v{U+2}, 16, v{XR+2*q+1}
    v_and_b32 v{U+3}, 0xffff0000, v{XR+2*q+1}
    s_waitcnt lgkmcnt({3*(3-q)})""")
    for sl in range(3):
        for hh in range(2):
            A(f"v_pk_add_f32 v[{c+2*hh}:{c+2*hh+1}], v[{c+2*hh}:{c+2*hh+1}], v[{G2+16*sl+4*q+2*hh}:{G2+16*sl+4*q+2*hh+1}]")
    A(f"""v_pk_fma_f32 v[{c}:{c+1}], v[{c}:{c+1}], v[{GR+4*q}:{GR+4*q+1}], v[{U}:{U+1}]
    v_pk_fma_f32 v[{c+2}:{c+3}], v[{c+2}:{c+3}], v[{GR+4*q+2}:{GR+4*q+3}], v[{U+2}:{U+3}]
    v_cvt_pk_bf16_f32 v{c}, v{c}, v{c+1}
    v_cvt_pk_bf16_f32 v{c+1}, v{c+2}, v{c+3}
    buffer_store_dwordx2 v[{c}:{c+1}], v12, s[{SOUT}:{SOUT+3}], 0 offen offset:{16*q}""")
if STAMP:
    stamp("out issued")
    A("s_waitcnt vmcnt(0)")
    stamp("end")
    A(f"""v_lshlrev_b32 v1, 2, v2
    s_lshl_b32 s{T0}, s2, 10
    s_lshl_b32 s{T1}, s{sWAVE}, 8
    s_add_u32 s{T0}, s{T0}, s{T1}
    s_add_u32 s{T0}, s{T0}, {TS}
    v_add_u32 v1, s{T0}, v1
    buffer_store_dword v143, v1, {W4}, 0 offen""")
A("k_done:\ns_endpgm\nk_end:")

hdr = f"; @launch grid=(256,1,1) block=(256,1,1) lds={LDS_SZ}\n.amdgcn_target \"amdgcn-amd-amdhsa--gfx950\"\n.text\n"
out = hdr + A.text() + '.section .rodata,"a"\n' + A.kd(name, 256, 102, accum=256, agpr=256)
open(sys.argv[1], "w").write(out)
print("stamps", nst[0], "lds", LDS_SZ, file=sys.stderr)
```

```python
import sys, os
from asmlib import *

STAMP = os.environ.get("STAMP") == "1"
def P(n, d): return int(os.environ.get(n, d))
S, D, F = 2048, 512, 1376
UR, QP, X1P, X1S, HID, W1P, W2P = 0x0, 0x200000, 0x400000, 0x600000, 0x800000, 0xE00000, 0x1000000
MODF, ST1 = 0x1200000, 0x1210000
F1A, F1B, F2, F3, EPOCH = 0x1300000, 0x1304000, 0x1308000, 0x130C000, 0x1310000
TS = 0x1400000
WS_SZ = 0x1500000
OOB = 0x40000000
SZ_SD = S * D * 2
SZ_W = D * F * 2
POLL_MAX = 200000

OSZ = 2368; USZ = 2 * OSZ
L_U = 0
L_KF = 9472; KFSZ = 8256
L_MODP = L_KF + 2 * KFSZ
L_XP = 0
L_X = 65536
L_RED = L_X
L_TB = 131072
L_TC2 = L_TB + 2048 + 64
L_TGB = L_TC2 + 2048 + 64
L_BB = L_TGB + 2048
L_ST = L_BB + 4 * 384
LDS_SZ = L_ST + 512
assert LDS_SZ <= 160 * 1024 and L_MODP + 4096 <= 65536

WS, SK, SV, SQ, SM1, SKF, SM2, SC, SWM, SPK, SOUT = 4, 8, 12, 16, 20, 24, 28, 32, 36, 40, 48
sWAVE, sXG, sJ, sEP = 52, 53, 54, 55
sR, sFG, sD0, sONES, sM = 96, 97, 98, 99, 3
T0, T1, T2, T3, T4, T5 = 56, 57, 58, 59, 60, 61
SX = 62
ROT1 = [64 + i for i in range(16)]
ROT2 = [80 + i for i in range(16)] + [8 + i for i in range(6)]
sROT1 = 14

A = Asm()
name = "adaLN_cond__ssm_conv_h3__dense_activation_squared_relu__prompt_kernel"
W4 = f"s[{WS}:{WS+3}]"

class VM:
    def __init__(self): self.q = []
    def op(self, text, tag):
        A(text); self.q.append(tag)
    def wait(self, *tags, extra=""):
        last = max((i for i, t in enumerate(self.q) if t in tags), default=-1)
        n = len(self.q) - 1 - last
        if last >= 0:
            assert n <= 63, (tags, n)
            A(f"s_waitcnt vmcnt({n}) {extra}".rstrip())
            self.q = self.q[last + 1:]
        elif extra:
            A(f"s_waitcnt {extra}")
vm = VM()

nst = [0]
def stamp(label=""):
    if not STAMP: return
    i = nst[0]; nst[0] += 1
    print(f"stamp {i}: {label}", file=sys.stderr)
    A(f"""s_memrealtime s[100:101]
    s_waitcnt lgkmcnt(0)
    v_writelane_b32 v143, s100, {i}""")

def rnd1(r):
    A(f"v_cvt_pk_bf16_f32 v{r}, v{r}, v{r}\nv_lshlrev_b32 v{r}, 16, v{r}")
def capture(fn):
    save = A.lines; A.lines = []
    fn()
    tmp = [x.strip() for x in A.lines]; A.lines = save
    return tmp

def poll(addr_v, nloads, stride_imm, dst, lab, only_wave0=True):
    if only_wave0:
        A(f"s_cmp_lg_u32 s{sWAVE}, 0\ns_cbranch_scc1 {lab}_done")
    A(f"s_mov_b32 s{T0}, 0\n{lab}:")
    for k in range(nloads):
        A(f"s_mov_b32 s{T1}, {k*stride_imm}\nbuffer_load_dword v{dst+k}, v{addr_v}, {W4}, s{T1} offen sc1")
    A("s_waitcnt vmcnt(0)")
    for k in range(nloads):
        A(f"v_xor_b32 v{dst+k}, s{sEP}, v{dst+k}")
    for k in range(1, nloads):
        A(f"v_or_b32 v{dst}, v{dst}, v{dst+k}")
    A(f"""v_cmp_ne_u32 vcc, 0, v{dst}
    s_add_u32 s{T0}, s{T0}, 1
    s_cmp_ge_u32 s{T0}, {POLL_MAX}
    s_cbranch_scc1 {lab}_done
    s_cbranch_vccz {lab}_done
    s_mov_b64 exec, vcc
    s_sleep {P("PSLEEP", 2)}
    s_branch {lab}
    {lab}_done:
    s_mov_b64 exec, -1""")

def set_flag(wave, base, idx_code, va, vd, pre=""):
    lab = A.label("fl")
    A(f"""s_cmp_lg_u32 s{sWAVE}, {wave}
    s_cbranch_scc1 {lab}
    {pre}
    {idx_code}
    s_lshl_b32 s{T0}, s{T0}, 6
    s_add_u32 s{T0}, s{T0}, {base}
    v_mov_b32 v{va}, s{T0}
    v_mov_b32 v{vd}, s{sEP}
    s_mov_b64 exec, 1
    buffer_store_dword v{vd}, v{va}, {W4}, 0 offen sc1
    s_mov_b64 exec, -1
    {lab}:""".replace("    \n", ""))

def ln_final(sm, sq, rs_out, m_out):
    A(f"""v_mul_f32 v{m_out}, 0x3b000000, v{sm}
    v_mul_f32 v{rs_out}, 0x3b000000, v{sq}
    v_fma_f32 v{rs_out}, -v{m_out}, v{m_out}, v{rs_out}
    v_max_f32 v{rs_out}, 0, v{rs_out}""")
    rnd1(rs_out); rnd1(m_out)
    A(f"v_add_f32 v{rs_out}, 0x3727c5ac, v{rs_out}")
    rnd1(rs_out)
    A(f"v_sqrt_f32 v{rs_out}, v{rs_out}\ns_nop 0")
    rnd1(rs_out)
    A(f"v_rcp_f32 v{rs_out}, v{rs_out}\ns_nop 0")

A.kernel_begin(name)
NCP = P("NCP", 6)
A(f"""s_cmp_ge_u32 s2, 256
s_cbranch_scc1 k_done
s_load_dwordx16 s[64:79], s[0:1], 0
s_load_dwordx16 s[80:95], s[0:1], 64
s_getpc_b64 s[48:49]
k_pc:""")
A(f"""
v_lshrrev_b32 v1, 6, v0
v_and_b32 v2, 63, v0
v_readfirstlane_b32 s{sWAVE}, v1
s_and_b32 s{sXG}, s2, 7
s_lshr_b32 s{sJ}, s2, 3
v_and_b32 v3, 15, v2
v_lshrrev_b32 v4, 4, v2
s_lshr_b32 s{T0}, s{sJ}, 3
s_lshl_b32 s{T0}, s{T0}, 3
s_add_u32 s{sR}, s{sXG}, s{T0}
s_and_b32 s{sFG}, s{sJ}, 7
s_lshl_b32 s{sD0}, s{sXG}, 6
s_lshl_b32 s{T0}, s{sJ}, 1
s_add_u32 s{sD0}, s{sD0}, s{T0}
s_mov_b32 s{sONES}, 0x3f803f80""")
stamp("start")
KT, VT, QT, US, QS, PKT = L_X, L_X + 9216, L_X + 17408, L_X + 25600, L_X + 33792, L_X + 41984
A(f"""v_lshrrev_b32 v5, 3, v2
v_lshlrev_b32 v5, 10, v5
v_and_b32 v6, 7, v2
v_lshl_add_u32 v5, v6, 4, v5          ; (l>>3)*1024 + (l&7)*16
s_lshl_b32 s{T0}, s{sJ}, 16
s_lshl_b32 s{T1}, s{sXG}, 7
s_add_u32 s{T0}, s{T0}, s{T1}
v_add_u32 v7, s{T0}, v5
v_subrev_u32 v7, 8192, v7
s_lshl_b32 s{T1}, s{sWAVE}, 14
s_add_u32 s{T0}, s{T0}, s{T1}
v_add_u32 v5, s{T0}, v5
v_and_b32 v12, 31, v0                 ; cp
v_lshrrev_b32 v13, 5, v0              ; rg
v_lshlrev_b32 v8, 4, v12
s_lshl_b32 s{T0}, s{sXG}, 9
v_add_u32 v8, s{T0}, v8
s_lshl_b32 s{T4}, s{sWAVE}, 11         ; 2048*w
s_movk_i32 s{T5}, 8192
s_waitcnt lgkmcnt(0)""")
if P("TLBT", 0):
    for p in (66, 68, 64, 70, 72, 74, 86, 88, 78, 82, 80, 84, 90):
        A(f"s_load_dword s0, s[{p}:{p+1}], 0")
    A(f"s_add_u32 s76, s88, 0x200000\ns_addc_u32 s77, s89, 0\ns_load_dword s0, s[76:77], 0")
    A(f"s_mov_b32 s76, s94\ns_mov_b32 s77, s95")
    for pg in range(10):
        A(f"s_load_dword s0, s[76:77], 0")
        if pg < 9: A(f"s_add_u32 s76, s76, 0x200000\ns_addc_u32 s77, s77, 0")
A.srd(SK, 66, SZ_SD); A.srd(SV, 68, SZ_SD); A.srd(SM1, 70, 4096); A.srd(SQ, 64, SZ_SD)
A(f"""s_cmp_lg_u32 s{sWAVE}, 3
s_cbranch_scc1 nohalo
s_mov_b32 m0, {KT}
s_nop 0
buffer_load_dwordx4 v7, s[{SK}:{SK+3}], 0 offen lds
nohalo:""")
W = 44
for (base, srd, tag) in ((KT + 1024, SK, "k"), (VT, SV, "k"), (QT, SQ, "k")):
    for i in range(2):
        A(f"s_add_u32 s{T0}, s{T4}, {base + 1024*i}\ns_mov_b32 m0, s{T0}\ns_nop 0")
        vm.op(f"buffer_load_dwordx4 v5, s[{srd}:{srd+3}], {'s%d'%T5 if i else '0'} offen lds", tag)
vm.op(f"buffer_load_dwordx4 v[{W}:{W+3}], v8, s[{SM1}:{SM1+3}], 0 offen", "k")
A(f"""s_mul_i32 s{T0}, s{sJ}, 43
s_lshr_b32 s{T0}, s{T0}, 8              ; j/6
s_mul_i32 s{T0}, s{T0}, 6
s_sub_u32 s{T0}, s{sJ}, s{T0}           ; j%6
s_lshl_b32 s{T0}, s{T0}, 12
v_lshl_add_u32 v9, v0, 4, s{T0}
v_min_u32 v9, k_end-k_pc-16, v9""")
vm.op(f"global_load_dwordx4 a[0:3], v9, s[48:49]", "code")
A.srd(WS, 94, WS_SZ); A.srd(SKF, 72, SZ_SD); A.srd(SM2, 74, 1024); A.srd(SC, 86, 1024); A.srd(SWM, 88, 512 * 3072 * 2)
A.srd(SOUT, 90, SZ_SD)
A(f"v_mov_b32 v142, {EPOCH}")
vm.op(f"buffer_load_dword v142, v142, {W4}, 0 offen sc1", "ep")
KF0, DD, SR, CC, WM = 48, 58, 60, 68, 72
A(f"""v_lshlrev_b32 v9, 4, v0
s_lshl_b32 s{T0}, s{sD0}, 12
v_add_u32 v9, s{T0}, v9
s_movk_i32 s{T1}, 4096""")
vm.op(f"buffer_load_dwordx4 v[{KF0}:{KF0+3}], v9, s[{SKF}:{SKF+3}], 0 offen", "kf")
vm.op(f"buffer_load_dwordx4 v[{KF0+4}:{KF0+7}], v9, s[{SKF}:{SKF+3}], s{T1} offen", "kf")
A(f"s_lshl_b32 s{T0}, s{sD0}, 1\nv_mov_b32 v9, s{T0}")
vm.op(f"buffer_load_dword v{DD}, v9, s[{SM2}:{SM2+3}], 0 offen", "D")
PS, PA, PD = 88, 92, 90
A(f"""s_sub_u32 s{T0}, s2, 74
v_lshlrev_b32 v{PD}, 4, v2
v_bfe_u32 v9, v2, 2, 2                ; r
v_and_b32 v10, 3, v2                  ; c
s_cmp_lt_u32 s{T0}, 96
s_cbranch_scc0 pk_w2""")
A.srd(SPK, 78, SZ_W)
A(f"""s_and_b32 s{T1}, s{T0}, 15              ; t
s_lshr_b32 s{T2}, s{T0}, 4              ; Fgb
v_lshrrev_b32 v11, 5, v2
v_bfe_u32 v14, v2, 1, 4
s_and_b32 s{T3}, s{sWAVE}, 1
s_lshl_b32 s{T3}, s{T3}, 2
v_or_b32 v15, s{T3}, v11
v_xor_b32 v14, v14, v15               ; i' even
v_xor_b32 v15, 2, v14                 ; i' odd
v_mul_u32_u24 v11, 2752, v11
v_and_b32 v16, 1, v2
v_lshl_add_u32 v11, v16, 4, v11
s_mul_i32 s{T3}, s{T1}, {32*2752}
s_mul_i32 s{T4}, s{sWAVE}, {8*2752}
s_add_u32 s{T3}, s{T3}, s{T4}
s_lshl_b32 s{T4}, s{T2}, 9
s_add_u32 s{T3}, s{T3}, s{T4}
v_add_u32 v11, s{T3}, v11
v_lshl_add_u32 v{PS}, v14, 5, v11
v_lshl_add_u32 v{PS+1}, v15, 5, v11
s_movk_i32 s44, 5504
v_and_b32 v14, 1, v4
v_lshl_or_b32 v14, v14, 2, v9
v_lshl_add_u32 v15, v4, 3, v9
v_lshlrev_b32 v15, 9, v15
v_lshl_add_u32 v15, v10, 3, v15
v_add_u32 v15, {PKT}, v15
s_lshl_b32 s{T3}, s{sWAVE}, 2
v_xor_b32 v14, s{T3}, v14""")
for u in range(4):
    A(f"""v_xor_b32 v16, {u}, v14
    v_lshl_add_u32 v{PA+u}, v16, 5, v15
    v_add_u32 v{PA+4+u}, 2048, v{PA+u}""")
A(f"""s_lshl_b32 s{T2}, s{T2}, 2
s_add_u32 s{T2}, s{T2}, s{sWAVE}        ; Fg
s_lshl_b32 s{T3}, s{T2}, 16
s_lshl_b32 s{T4}, s{T1}, 10
s_add_u32 s{T3}, s{T3}, s{T4}
s_add_u32 s{T3}, s{T3}, {W1P}
s_cmp_ge_u32 s{T2}, 22
s_cselect_b32 s{T3}, {OOB}, s{T3}
v_add_u32 v{PD}, s{T3}, v{PD}
s_movk_i32 s45, 16384
s_cmp_eq_u32 s{T2}, 21
s_cselect_b32 s46, {OOB}, 0
s_branch pk_go
pk_w2:""")
A.srd(SPK, 82, SZ_W)
A(f"""s_sub_u32 s{T1}, s2, 170                ; F
v_bfe_u32 v14, v2, 2, 2
v_xor_b32 v14, v14, v4
v_lshlrev_b32 v11, 10, v4
v_lshl_add_u32 v11, v14, 6, v11
v_lshl_add_u32 v11, v10, 4, v11
s_lshl_b32 s{T3}, s{T1}, 14
s_lshl_b32 s{T4}, s{sWAVE}, 8
s_add_u32 s{T3}, s{T3}, s{T4}
s_cmp_ge_u32 s{T1}, 86
s_cselect_b32 s{T3}, {OOB}, s{T3}
v_add_u32 v{PS}, s{T3}, v11
v_mov_b32 v{PS+1}, v{PS}
s_movk_i32 s44, 4096
v_lshrrev_b32 v14, 1, v4
v_lshl_add_u32 v14, v14, 3, v9
v_lshlrev_b32 v14, 8, v14
v_and_b32 v15, 1, v4
v_lshl_add_u32 v14, v15, 5, v14
v_lshl_add_u32 v14, v10, 3, v14
s_lshl_b32 s{T3}, s{sWAVE}, 12
s_add_u32 s{T3}, s{T3}, {PKT}
v_add_u32 v14, s{T3}, v14""")
for u in range(4):
    A(f"""v_xor_b32 v16, {u}, v9
    v_lshl_add_u32 v{PA+u}, v16, 6, v14
    v_add_u32 v{PA+4+u}, 1024, v{PA+u}""")
A(f"""s_mul_i32 s{T3}, s{sWAVE}, {4*86*1024}
s_lshl_b32 s{T4}, s{T1}, 10
s_add_u32 s{T3}, s{T3}, s{T4}
s_add_u32 s{T3}, s{T3}, {W2P}
s_cmp_ge_u32 s{T1}, 86
s_cselect_b32 s{T3}, {OOB}, s{T3}
v_add_u32 v{PD}, s{T3}, v{PD}
s_mov_b32 s45, {86*1024}
s_mov_b32 s46, 0
pk_go:
s_lshl_b32 s{T4}, s{sWAVE}, 12
s_mov_b32 s47, 0""")
for i in range(4):
    A(f"s_add_u32 s{T0}, s{T4}, {PKT + 1024*i}\ns_mov_b32 m0, s{T0}\ns_nop 0")
    vm.op(f"buffer_load_dwordx4 v{PS+(i&1)}, s[{SPK}:{SPK+3}], s47 offen lds", "pk")
    if i < 3: A(f"s_add_u32 s47, s47, s44")
A(f"""v_lshlrev_b32 v5, 10, v13
v_lshl_add_u32 v5, v12, 2, v5
v_add_u32 v6, {KT + 5*128 + 1024}, v5
v_add_u32 v5, {KT + 5*128}, v5
v_subrev_u32 v7, {KT + 5*128 - VT}, v5
v_add_u32 v8, {QT - VT}, v7
v_and_b32 v9, 7, v12
v_sub_u32 v10, 7, v13
v_xor_b32 v10, v10, v9
v_lshlrev_b32 v14, 8, v12
v_lshl_add_u32 v15, v10, 4, v14
v_add_u32 v15, {US}, v15
v_lshlrev_b32 v10, 1, v13
v_xor_b32 v10, v10, v9
v_lshl_add_u32 v16, v10, 4, v14
v_add_u32 v16, {QS}, v16
v_xor_b32 v17, 16, v16
v_lshrrev_b32 v9, 3, v0               ; ch
v_and_b32 v10, 7, v0
v_bfe_u32 v11, v0, 4, 3
v_xor_b32 v11, v11, v10
v_lshlrev_b32 v18, 7, v9
v_lshl_add_u32 v18, v11, 4, v18
v_add_u32 v18, {US}, v18
v_lshlrev_b32 v19, 12, v9
v_lshl_add_u32 v19, v10, 4, v19
s_lshl_b32 s{T0}, s{sXG}, 18
s_lshl_b32 s{T1}, s{sJ}, 7
s_sub_u32 s{T0}, s{T0}, s{T1}
s_add_u32 s{T0}, s{T0}, 3968
v_add_u32 v19, s{T0}, v19
v_lshrrev_b32 v9, 4, v0
v_and_b32 v11, 7, v9
v_xor_b32 v11, v11, v3
v_lshlrev_b32 v20, 8, v9
v_lshl_add_u32 v20, v11, 4, v20
v_add_u32 v20, {QS}, v20
v_lshlrev_b32 v21, 13, v9
v_lshl_add_u32 v21, v3, 4, v21
s_lshl_b32 s{T0}, s{sXG}, 18
s_lshl_b32 s{T1}, s{sJ}, 8
s_add_u32 s{T0}, s{T0}, s{T1}
s_add_u32 s{T0}, s{T0}, {QP}
v_add_u32 v21, s{T0}, v21""")
stamp("issued")
vm.wait("k")
A("s_barrier")
stamp("kvq in lds")
KR, VR, QR = 144, 156, 164
for j in range(0, 8, 2):
    A(f"ds_read2_b32 v[{KR+j}:{KR+j+1}], v5 offset0:{32*j} offset1:{32*j+32}")
A(f"ds_read2_b32 v[{KR+8}:{KR+9}], v6 offset0:0 offset1:32\nds_read_b32 v{KR+10}, v6 offset:256")
for j in range(0, 8, 2):
    A(f"ds_read2_b32 v[{VR+j}:{VR+j+1}], v7 offset0:{32*j} offset1:{32*j+32}")
for j in range(0, 8, 2):
    A(f"ds_read2_b32 v[{QR+j}:{QR+j+1}], v8 offset0:{32*j} offset1:{32*j+32}")
A(f"""s_mul_i32 s{T0}, s2, 1366
s_lshr_b32 s{T0}, s{T0}, 16
s_mul_i32 s{T1}, s{T0}, 48
s_sub_u32 s{T1}, s2, s{T1}
s_mul_i32 s{sM}, s{T0}, 12288
s_lshl_b32 s{T2}, s{T1}, 8
s_add_u32 s{sM}, s{sM}, s{T2}
s_add_u32 s{sM}, s{sM}, {MODF}
s_cmp_ge_u32 s2, 192
s_cselect_b32 s{sM}, {OOB}, s{sM}
s_mul_i32 s{T2}, s{T0}, {128*6144}
s_lshl_b32 s{T3}, s{T1}, 7
s_add_u32 s{T2}, s{T2}, s{T3}
s_cmp_ge_u32 s2, 192
s_cselect_b32 s{T2}, {OOB}, s{T2}
v_and_b32 v22, 7, v0
v_lshrrev_b32 v23, 3, v0
v_mul_u32_u24 v24, {4*6144}, v23
v_lshl_add_u32 v24, v22, 4, v24
v_add_u32 v24, s{T2}, v24
v_lshlrev_b32 v23, 3, v23
s_lshl_b32 s{T0}, s{T0}, 8
v_add_u32 v23, s{T0}, v23""")
vm.op(f"buffer_load_dwordx2 v[{CC}:{CC+1}], v23, s[{SC}:{SC+3}], 0 offen", "c")
for i in range(4):
    A(f"s_mov_b32 s{T0}, {6144*i}")
    vm.op(f"buffer_load_dwordx4 v[{WM+4*i}:{WM+4*i+3}], v24, s[{SWM}:{SWM+3}], s{T0} offen", "wm")
A(f"""v_lshlrev_b32 v22, 4, v2
s_lshl_b32 s{T0}, s2, 13
s_lshl_b32 s{T1}, s{sWAVE}, 11
s_add_u32 s{T0}, s{T0}, s{T1}
v_add_u32 v22, s{T0}, v22""")
vm.op(f"buffer_load_dwordx4 v[{SR}:{SR+3}], v22, s[{SQ}:{SQ+3}], 0 offen", "sr")
vm.op(f"buffer_load_dwordx4 v[{SR+4}:{SR+7}], v22, s[{SQ}:{SQ+3}], 0 offen offset:1024", "sr")
WF, KFF, O = 100, 108, 172
KV = [180 + 2 * r for r in range(8)]
A(f"""v_lshlrev_b32 v{WF+0}, 16, v{W+0}
v_lshlrev_b32 v{WF+1}, 16, v{W+2}
v_and_b32 v{WF+2}, 0xffff0000, v{W+0}
v_and_b32 v{WF+3}, 0xffff0000, v{W+2}
v_lshlrev_b32 v{WF+4}, 16, v{W+1}
v_lshlrev_b32 v{WF+5}, 16, v{W+3}
v_and_b32 v{WF+6}, 0xffff0000, v{W+1}
v_and_b32 v{WF+7}, 0xffff0000, v{W+3}
s_waitcnt lgkmcnt(8)""")
for j in range(11):
    A(f"v_lshlrev_b32 v{KFF+2*j}, 16, v{KR+j}\nv_and_b32 v{KFF+2*j+1}, 0xffff0000, v{KR+j}")
A(f"""s_waitcnt lgkmcnt(0)
ds_write_b128 v16, v[{QR}:{QR+3}]
ds_write_b128 v17, v[{QR+4}:{QR+7}]""")
for r in range(8):
    A(f"v_pk_mul_f32 v[{KV[r]}:{KV[r]+1}], v[{KFF+2*r}:{KFF+2*r+1}], v[{WF+6}:{WF+7}]")
for t in range(1, 4):
    for r in range(8):
        A(f"v_pk_fma_f32 v[{KV[r]}:{KV[r]+1}], v[{KFF+2*(r+t)}:{KFF+2*(r+t)+1}], v[{WF+2*(3-t)}:{WF+2*(3-t)+1}], v[{KV[r]}:{KV[r]+1}]")
for r in range(8):
    A(f"v_lshlrev_b32 v{KFF+2*r}, 16, v{VR+r}\nv_and_b32 v{KFF+2*r+1}, 0xffff0000, v{VR+r}")
for r in range(8):
    A(f"v_pk_mul_f32 v[{KV[r]}:{KV[r]+1}], v[{KV[r]}:{KV[r]+1}], v[{KFF+2*r}:{KFF+2*r+1}]")
for e in range(2):
    for j in range(4):
        A(f"v_cvt_pk_bf16_f32 v{O+4*e+j}, v{KV[7-2*j]+e}, v{KV[6-2*j]+e}")
    A(f"ds_write_b128 v15, v[{O+4*e}:{O+4*e+3}] offset:{128*e}")
A(f"""s_mov_b32 s{T1}, 131072
s_waitcnt lgkmcnt(0)
s_barrier
ds_read_b128 v[144:147], v18
ds_read_b128 v[148:151], v18 offset:4096
ds_read_b128 v[152:155], v20
ds_read_b128 v[156:159], v20 offset:4096
s_waitcnt lgkmcnt(3)""")
vm.op(f"buffer_store_dwordx4 v[144:147], v19, {W4}, 0 offen {'' if P('PLAIN_UQ',0) else 'sc1'}", "st1")
A("s_waitcnt lgkmcnt(2)")
vm.op(f"buffer_store_dwordx4 v[148:151], v19, {W4}, s{T1} offen {'' if P('PLAIN_UQ',0) else 'sc1'}", "st1")
A("s_waitcnt lgkmcnt(1)")
vm.op(f"buffer_store_dwordx4 v[152:155], v21, {W4}, 0 offen {'' if P('PLAIN_UQ',0) else 'sc1'}", "st1")
A("s_waitcnt lgkmcnt(0)")
vm.op(f"buffer_store_dwordx4 v[156:159], v21, {W4}, s{T1} offen {'' if P('PLAIN_UQ',0) else 'sc1'}", "st1")
stamp("st1 issued")
vm.wait("kf", "D")
A(f"""v_lshlrev_b32 v9, 4, v0
v_mov_b32 v120, 0
v_mov_b32 v121, 0
v_mov_b32 v122, 0
v_mov_b32 v123, 0
ds_write_b128 v9, v[{KF0}:{KF0+3}] offset:{L_KF + 32}
ds_write_b128 v9, v[{KF0+4}:{KF0+7}] offset:{L_KF + KFSZ + 32}
v_mul_u32_u24 v22, {OSZ}, v4
v_lshl_add_u32 v22, v3, 4, v22
v_lshrrev_b32 v10, 1, v2
v_and_b32 v10, 3, v10
v_mul_u32_u24 v10, 4128, v10
v_and_b32 v11, 1, v2
v_lshl_add_u32 v10, v11, 4, v10
ds_write_b128 v22, v[120:123] offset:{L_U + 2048}
ds_write_b128 v10, v[120:123] offset:{L_KF}""")
vm.wait("c")
A(f"""v_lshlrev_b32 v{CC+2}, 16, v{CC+1}
v_and_b32 v{CC+3}, 0xffff0000, v{CC+1}
v_and_b32 v{CC+1}, 0xffff0000, v{CC}
v_lshlrev_b32 v{CC}, 16, v{CC}""")
for i in range(4): A(f"v_mul_f32 v{100+i}, 0xbfb8aa3b, v{CC+i}")
for i in range(4): A(f"v_exp_f32 v{100+i}, v{100+i}")
for i in range(4): A(f"v_add_f32 v{100+i}, 1.0, v{100+i}")
for i in range(4): A(f"v_rcp_f32 v{100+i}, v{100+i}")
for i in range(4): A(f"v_mul_f32 v{CC+i}, v{CC+i}, v{100+i}")
for i in range(0, 4, 2):
    A(f"""v_cvt_pk_bf16_f32 v100, v{CC+i}, v{CC+i+1}
    v_lshlrev_b32 v{CC+i}, 16, v100
    v_and_b32 v{CC+i+1}, 0xffff0000, v100""")
MA = 104
vm.wait("wm")
for i in range(4):
    for j in range(4):
        t = 112 + 2 * (j % 2)
        A(f"v_lshlrev_b32 v{t}, 16, v{WM+4*i+j}\nv_and_b32 v{t+1}, 0xffff0000, v{WM+4*i+j}")
        if i == 0:
            A(f"v_pk_mul_f32 v[{MA+2*j}:{MA+2*j+1}], v[{t}:{t+1}], v[{CC}:{CC+1}] op_sel_hi:[1,0]")
        else:
            sel = "op_sel_hi:[1,0,1]" if i % 2 == 0 else "op_sel:[0,1,0] op_sel_hi:[1,1,1]"
            A(f"v_pk_fma_f32 v[{MA+2*j}:{MA+2*j+1}], v[{t}:{t+1}], v[{CC+(i//2)*2}:{CC+(i//2)*2+1}], v[{MA+2*j}:{MA+2*j+1}] {sel}")
A(f"""v_lshrrev_b32 v11, 4, v0
v_lshlrev_b32 v11, 8, v11
v_and_b32 v10, 7, v0
v_lshl_add_u32 v11, v10, 5, v11""")
for j in range(8):
    A(f"v_add_f32_dpp v{MA+j}, v{MA+j}, v{MA+j} row_shr:8 row_mask:0xf bank_mask:0xf bound_ctrl:0")
A(f"""v_cmp_le_u32 vcc, 8, v3
s_and_saveexec_b64 s[{SX}:{SX+1}], vcc
ds_write_b128 v11, v[{MA}:{MA+3}] offset:{L_MODP}
ds_write_b128 v11, v[{MA+4}:{MA+7}] offset:{L_MODP+16}
s_mov_b64 exec, s[{SX}:{SX+1}]""")
vm.wait("st1", extra="lgkmcnt(0)")
A(f"v_readfirstlane_b32 s{sEP}, v142\ns_barrier\ns_add_u32 s{sEP}, s{sEP}, 0x9e3779b9")
set_flag(0, F1A, f"s_lshl_b32 s{T0}, s{sXG}, 5\ns_add_u32 s{T0}, s{T0}, s{sJ}", 10, 11)
stamp("flag1a")
PKR = 144
for u in range(4):
    A(f"ds_read_b64_tr_b16 v[{PKR+4*u}:{PKR+4*u+1}], v{PA+u}\nds_read_b64_tr_b16 v[{PKR+4*u+2}:{PKR+4*u+3}], v{PA+4+u}")
KFM = 56
A(f"""ds_read_b32 v{KFM}, v9 offset:{L_KF + 28}
ds_read_b32 v{KFM+1}, v9 offset:{L_KF + KFSZ + 28}
s_mov_b32 s47, 0""")
for u in range(4):
    A(f"s_waitcnt lgkmcnt({8-2*u})")
    vm.op(f"buffer_store_dwordx4 v[{PKR+4*u}:{PKR+4*u+3}], v{PD}, {W4}, s47 offen sc1", "st1b")
    if u < 3:
        A(f"s_add_u32 s47, s47, s45")
        if u == 1: A(f"s_add_u32 s47, s47, s46")
A(f"""s_cmp_lg_u32 s{sWAVE}, 1
s_cbranch_scc1 modf_done
v_lshlrev_b32 v11, 2, v2""")
for p in range(16):
    A(f"ds_read_b32 v{160+p}, v11 offset:{L_MODP+256*p}")
A("s_waitcnt lgkmcnt(0)")
for st in (8, 4, 2, 1):
    for p in range(st):
        A(f"v_add_f32 v{160+p}, v{160+p}, v{160+p+st}")
A(f"""v_add_u32 v10, s{sM}, v11
buffer_store_dword v160, v10, {W4}, 0 offen sc1
modf_done:""")
SA = 100
for i in range(4): A(f"v_mov_b32 v{SA+i}, 0")
for j in range(4):
    for rr in range(2):
        A(f"""v_dot2_f32_bf16 v{SA+2*rr}, v{SR+4*rr+j}, s{sONES}, v{SA+2*rr}
        v_dot2_f32_bf16 v{SA+2*rr+1}, v{SR+4*rr+j}, v{SR+4*rr+j}, v{SA+2*rr+1}""")
A("s_waitcnt lgkmcnt(0)")
for c in range(2):
    o = 124 + 4 * c
    A(f"v_alignbit_b32 v{o}, v{KF0+4*c}, v{KFM+c}, 16")
    for j in range(1, 4):
        A(f"v_alignbit_b32 v{o+j}, v{KF0+4*c+j}, v{KF0+4*c+j-1}, 16")
    A(f"ds_write_b128 v9, v[{o}:{o+3}] offset:{L_KF + c*KFSZ + 4128 + 32}")
for ctrl in ("row_shr:1", "row_shr:2", "row_shr:4", "row_shr:8"):
    for j in range(4):
        A(f"v_add_f32_dpp v{SA+j}, v{SA+j}, v{SA+j} {ctrl} row_mask:0xf bank_mask:0xf bound_ctrl:0")
for j in range(4):
    A(f"v_add_f32_dpp v{SA+j}, v{SA+j}, v{SA+j} row_bcast:15 row_mask:0xa bank_mask:0xf")
for j in range(4):
    A(f"v_add_f32_dpp v{SA+j}, v{SA+j}, v{SA+j} row_bcast:31 row_mask:0xc bank_mask:0xf")
a_ = capture(lambda: ln_final(SA, SA + 1, 104, 105)); b_ = capture(lambda: ln_final(SA + 2, SA + 3, 106, 107))
for x, y in zip(a_, b_):
    A(x)
    if y != "s_nop 0": A(y)
A(f"""s_lshl_b32 s{T0}, s2, 6
s_lshl_b32 s{T1}, s{sWAVE}, 4
s_add_u32 s{T0}, s{T0}, s{T1}
s_add_u32 s{T0}, s{T0}, {ST1}
v_mov_b32 v9, s{T0}
s_mov_b32 s{SX}, 0
s_mov_b32 s{SX+1}, 0x80000000
s_mov_b64 exec, s[{SX}:{SX+1}]""")
vm.op(f"buffer_store_dwordx4 v[104:107], v9, {W4}, 0 offen sc1", "st1b")
A("s_mov_b64 exec, -1")
stamp("p1b stores issued")
sCH, sHF = 44, 45
A.srd(SM1, 80, F * 2); A.srd(SM2, 84, 1024)
A(f"""s_lshr_b32 s{sCH}, s{sWAVE}, 1
s_and_b32 s{sHF}, s{sWAVE}, 1
v_min_u32 v12, 31, v2
v_lshlrev_b32 v12, 6, v12
s_lshl_b32 s{T0}, s{sXG}, 11
s_add_u32 s{T0}, s{T0}, {F1A}
v_add_u32 v12, s{T0}, v12
v_lshlrev_b32 v13, 6, v2
v_lshlrev_b32 v5, 4, v0
s_lshl_b32 s{T0}, s{sD0}, 12
v_add_u32 v5, s{T0}, v5
v_add_u32 v6, 4096, v5
v_and_b32 v7, 1, v0
v_mul_u32_u24 v7, {OSZ}, v7
v_lshrrev_b32 v8, 1, v0
v_lshl_add_u32 v7, v8, 4, v7
v_lshlrev_b32 v15, 1, v4
v_sub_u32 v15, v15, v3
v_lshlrev_b32 v15, 4, v15
s_mul_i32 s{T0}, s{sCH}, {USZ}
s_lshl_b32 s{T1}, s{sHF}, 7
s_add_u32 s{T0}, s{T0}, s{T1}
s_add_u32 s{T0}, s{T0}, {L_U + 240}
v_add_u32 v15, s{T0}, v15
v_and_b32 v8, 1, v3
v_mul_u32_u24 v8, 4130, v8
v_lshlrev_b32 v16, 6, v4
v_lshl_add_u32 v16, v3, 1, v16
v_sub_u32 v16, v16, v8
s_mul_i32 s{T0}, s{sCH}, {KFSZ}
s_lshl_b32 s{T1}, s{sHF}, 8
s_add_u32 s{T0}, s{T0}, s{T1}
s_add_u32 s{T0}, s{T0}, {L_KF + 4132}
v_add_u32 v16, s{T0}, v16
v_add_u32 v17, 1024, v16
v_add_u32 v18, 2048, v16
v_add_u32 v19, 3072, v16
v_lshlrev_b32 v20, 16, v{DD}
v_and_b32 v21, 0xffff0000, v{DD}
v_lshlrev_b32 v8, 6, v3
v_lshl_add_u32 v8, v4, 4, v8          ; 64a' + 16g
s_lshl_b32 s{T0}, s{sD0}, 12
s_lshl_b32 s{T1}, s{sWAVE}, 11
s_add_u32 s{T0}, s{T0}, s{T1}
v_add_u32 v14, s{T0}, v8
v_lshlrev_b32 v63, 1, v8
s_lshl_b32 s{T0}, s{sWAVE}, 12
s_add_u32 s{T0}, s{T0}, {ST1}
v_add_u32 v63, s{T0}, v63
v_lshrrev_b32 v9, 2, v3
v_cmp_eq_u32 vcc, 3, v9
v_lshlrev_b32 v23, 11, v9
v_and_b32 v10, 3, v3
v_cndmask_b32 v11, 0, 1, vcc
v_lshl_add_u32 v23, v11, 11, v23
v_mul_u32_u24 v10, 12288, v10
s_lshl_b32 s{T0}, s{sD0}, 2
s_add_u32 s{T0}, s{T0}, {MODF}
v_add3_u32 v23, v23, v10, s{T0}
v_and_b32 v9, 1, v9
v_cvt_f32_u32 v62, v9
v_lshlrev_b32 v10, 4, v2
s_mul_i32 s{T0}, s{sFG}, 11
s_add_u32 s46, s{T0}, s{sWAVE}         ; F0
s_lshl_b32 s{T0}, s46, 14
s_add_u32 s{T0}, s{T0}, {W1P}
v_add_u32 v248, s{T0}, v10
v_add_u32 v249, 0x10000, v248
v_add_u32 v250, 0x20000, v248
s_add_u32 s{T0}, s46, 8
s_cmp_ge_u32 s{T0}, 86
s_cselect_b32 s47, {OOB}, 0
s_cmp_eq_u32 s{sWAVE}, 3
s_cselect_b32 s47, {OOB}, s47
v_add_u32 v250, s47, v250
""")
vm.wait("st1b", extra="lgkmcnt(0)")
A("s_barrier")
set_flag(1, F1B, f"s_mov_b32 s{T0}, s2", 10, 11, pre="s_waitcnt vmcnt(0)")
stamp("flag1b")
ACC = 24
AB = [64, 96]; BB_ = [144, 176]
UL, QE, SE, ME = 208, 216, 224, 240
def aload(o, st):
    for q in range(8):
        r = AB[st] + 4 * q; base = 128 * (q & 1) + 4 * o
        A(f"ds_read2_b32 v[{r}:{r+1}], v{16+(q>>1)} offset0:{base} offset1:{base+1}")
        A(f"ds_read2_b32 v[{r+2}:{r+3}], v{16+(q>>1)} offset0:{base+2} offset1:{base+3}")
def bload(o, st):
    for dl in range(8):
        r = BB_[st] + 4 * dl
        A(f"ds_read_b128 v[{r}:{r+3}], v15 offset:{(o&1)*OSZ + 16*(112-16*dl+(o>>1))}")
aload(0, 0)
for i in range(32): A(f"v_mov_b32 v{ACC+i}, 0")
sal = []
sal += [f"s_lshr_b32 s{T4}, s{sJ}, 3", f"s_lshl_b32 s{sROT1}, s{T4}, 1", f"s_add_u32 s{sROT1}, s{sROT1}, s{sFG}",
        f"s_lshl_b32 s{sROT1}, s{sROT1}, 1", f"s_and_b32 s{sROT1}, s{sROT1}, 15"]
for t in range(16):
    sal += [f"s_add_u32 s{ROT1[t]}, s{sROT1}, {t}", f"s_and_b32 s{ROT1[t]}, s{ROT1[t]}, 15", f"s_lshl_b32 s{ROT1[t]}, s{ROT1[t]}, 10"]
sal += [f"s_mul_i32 s{T4}, s{T4}, 11", f"s_lshr_b32 s{T4}, s{T4}, 1", f"s_mul_i32 s{T5}, s{sFG}, 3", f"s_add_u32 s{T4}, s{T4}, s{T5}",
        f"s_cmp_ge_u32 s{sWAVE}, 2", f"s_cselect_b32 s{T5}, 21, 99",
        f"s_cmp_ge_u32 s{T4}, 22", f"s_cselect_b32 s15, 22, 0", f"s_sub_u32 s{T4}, s{T4}, s15"]
for i in range(22):
    r = ROT2[i]
    sal += [(f"s_lshl_b32 s{r}, s{T4}, 12", f"s_cmp_eq_u32 s{T4}, s{T5}", f"s_cselect_b32 s{r}, {OOB}, s{r}"),
            (f"s_add_u32 s{T4}, s{T4}, 1", f"s_cmp_eq_u32 s{T4}, 22", f"s_cselect_b32 s{T4}, 0, s{T4}")]
for x in sal: A(x if isinstance(x, str) else "\n".join(x))
sal = []
poll(12, 1, 0, 22, "p1a")
A("s_barrier")
stamp("poll1a done")
vm.op(f"buffer_load_dwordx4 v[{UL}:{UL+3}], v5, {W4}, 0 offen sc1", "u")
vm.op(f"buffer_load_dwordx4 v[{UL+4}:{UL+7}], v6, {W4}, 0 offen sc1", "u")
A(f"s_mov_b32 s{T2}, {QP}")
for jn in range(2):
    vm.op(f"buffer_load_dwordx4 v[{QE+4*jn}:{QE+4*jn+3}], v14, {W4}, s{T2} offen offset:{1024*jn} sc1", "qe")
for k in range(4):
    A(f"s_mov_b32 s{T1}, {F1B + 4096*k}")
    vm.op(f"buffer_load_dword v{56+k}, v13, {W4}, s{T1} offen sc1", "f1b")
vm.wait("u")
A(f"""ds_write_b128 v7, v[{UL}:{UL+3}] offset:{L_U}
ds_write_b128 v7, v[{UL+4}:{UL+7}] offset:{L_U+USZ}
s_waitcnt lgkmcnt(0)
s_barrier""")
bload(0, 0)
stamp("u in lds")
w1q = [(t, j) for t in range(16) for j in range(3)]
def w1_issue(n):
    for _ in range(n):
        if not w1q: return
        t, j = w1q.pop(0)
        vm.op(f"buffer_load_dwordx4 a[{(t*3+j)*4}:{(t*3+j)*4+3}], v{248+j}, {W4}, s{ROT1[t]} offen sc1", f"w1_{t}")
def me_final():
    vm.wait("me")
    for sh in (1, 2):
        A("s_nop 1")
        for k in range(2):
            A(f"v_add_f32_dpp v{UL+k}, v{UL+k}, v{UL+k} row_shr:{sh} row_mask:0xf bank_mask:0xf bound_ctrl:0")
    A(f"""v_cvt_pk_bf16_f32 v{UL+2}, v{UL}, v{UL+1}
    v_lshlrev_b32 v{UL}, 16, v{UL+2}
    v_and_b32 v{UL+1}, 0xffff0000, v{UL+2}
    v_add_f32 v{UL}, v{UL}, v62
    v_add_f32 v{UL+1}, v{UL+1}, v62
    v_cvt_pk_bf16_f32 v{UL+2}, v{UL}, v{UL+1}
    v_lshlrev_b32 v{UL}, 16, v{UL+2}
    v_and_b32 v{UL+1}, 0xffff0000, v{UL+2}
    s_nop 1""")
    for i in range(4):
        for k in range(2):
            A(f"v_mov_b32_dpp v{ME+2*i+k}, v{UL+k} row_newbcast:{4*i+3} row_mask:0xf bank_mask:0xf")
for o in range(4):
    st = o & 1
    A("s_waitcnt lgkmcnt(0)")
    lds = []
    if o + 1 < 4:
        lds = capture(lambda: (bload(o + 1, st ^ 1), aload(o + 1, st ^ 1)))
    side = []; cnt = 0
    if o == 3: side = capture(me_final)
    for dl in range(8):
        for q in range(8 - dl):
            n = q + dl
            A(f"v_mfma_f32_16x16x32_bf16 v[{ACC+4*n}:{ACC+4*n+3}], v[{AB[st]+4*q}:{AB[st]+4*q+3}], v[{BB_[st]+4*dl}:{BB_[st]+4*dl+3}], v[{ACC+4*n}:{ACC+4*n+3}]")
            cnt += 1
            if lds: A(lds.pop(0))
            if o > P("F1B_O", 0) and o >= P("W1_O0", 1) and cnt % P("W1_EVERY", 6) == 0: w1_issue(1)
            for _ in range(2 if o == 0 else 1):
                if sal:
                    x = sal.pop(0)
                    A(x if isinstance(x, str) else "\n".join(x))
            if side: A(side.pop(0))
    for x in side: A(x)
    if o == P("F1B_O", 0):
        vm.wait("f1b")
        A(f"""v_xor_b32 v56, s{sEP}, v56
        v_xor_b32 v57, s{sEP}, v57
        v_xor_b32 v58, s{sEP}, v58
        v_xor_b32 v59, s{sEP}, v59
        v_or3_b32 v56, v56, v57, v58
        v_or_b32 v56, v56, v59
        v_cmp_ne_u32 vcc, 0, v56
        s_nop 1
        s_cbranch_vccz p1b_done
        v_add_u32 v22, {F1B}, v13""")
        poll(22, 4, 4096, 56, "p1b", only_wave0=False)
        vm.op(f"buffer_load_dwordx2 v[{UL}:{UL+1}], v23, {W4}, 0 offen sc1", "me")
        for jn in range(2):
            for hh in range(2):
                vm.op(f"buffer_load_dwordx4 v[{SE+8*jn+4*hh}:{SE+8*jn+4*hh+3}], v63, {W4}, 0 offen offset:{2048*jn+16*hh} sc1", "se")
        if P("WTOUCH", 0):
            A(f"""s_mul_i32 s{T0}, s{sJ}, 44032
            v_lshlrev_b32 v22, 7, v0
            v_add_u32 v22, s{T0}, v22
            v_add_u32 v60, 32768, v22
            v_cmp_gt_u32 vcc, 88, v0
            v_mov_b32 v61, {OOB}
            s_mov_b32 s{T0}, {W1P}
            s_mov_b32 s{T1}, {W2P}
            v_cndmask_b32 v60, v61, v60, vcc""")
            for (ad, so) in ((22, T0), (60, T0), (22, T1), (60, T1)):
                vm.op(f"buffer_load_dword v61, v{ad}, {W4}, s{so} offen sc1", "touch")
        A(f"""v_lshlrev_b32 v128, 3, v0
        v_add_u32 v128, {MODF + 3*2048}, v128
        v_lshlrev_b32 v129, 3, v4
        s_lshl_b32 s{T0}, s46, 5
        v_add_u32 v129, s{T0}, v129
        v_lshlrev_b32 v130, 3, v3
        s_lshl_b32 s{T0}, s{sR}, 9
        s_lshl_b32 s{T1}, s{sWAVE}, 7
        s_add_u32 s{T0}, s{T0}, s{T1}
        s_add_u32 s{T0}, s{T0}, {ST1 + 4}
        v_add_u32 v130, s{T0}, v130""")
        for ks in range(4):
            A(f"s_mov_b32 s{T1}, {12288*ks}\ns_mov_b32 s{T0}, {12288*ks+4096}")
            for sec in range(3):
                so, off = (T1, 2048 * sec) if sec < 2 else (T0, 0)
                vm.op(f"buffer_load_dwordx2 a[{192+8*sec+2*ks}:{192+8*sec+2*ks+1}], v128, {W4}, s{so} offen offset:{off} sc1", "tp")
        for j in range(3):
            vm.op(f"buffer_load_dwordx2 a[{216+2*j}:{217+2*j}], v129, s[{SM1}:{SM1+3}], 0 offen offset:{128*j}", "tp")
        vm.op(f"buffer_load_dword v140, v130, {W4}, 0 offen sc1", "tp")
        stamp("flag1b all seen")
assert not sal
stamp("conv mfma done")
A(f"""v_lshlrev_b32 v9, 4, v2
s_lshl_b32 s{T0}, s{sWAVE}, 13
s_add_u32 s{T0}, s{T0}, {L_RED}
v_add_u32 v10, s{T0}, v9
s_lshl_b32 s{T0}, s{sWAVE}, 11
s_add_u32 s{T0}, s{T0}, {L_RED}
v_add_u32 v11, s{T0}, v9
v_lshrrev_b32 v5, 1, v4
v_sub_u32 v5, 1, v5
v_mul_u32_u24 v5, {OSZ}, v5
v_lshlrev_b32 v6, 4, v3
v_sub_u32 v5, v5, v6
v_and_b32 v6, 1, v4
v_lshlrev_b32 v6, 3, v6
v_sub_u32 v5, v5, v6
s_lshl_b32 s{T0}, s{sWAVE}, 9
s_sub_u32 s{T0}, {L_U + 16*(127-16) + 8}, s{T0}
v_add_u32 v5, s{T0}, v5""")
for n in range(8):
    A(f"ds_write_b128 v10, v[{ACC+4*n}:{ACC+4*n+3}] offset:{1024*n}")
UE = 128
for jn in range(2):
    for c in range(2):
        A(f"ds_read_b64 v[{UE+4*jn+2*c}:{UE+4*jn+2*c+1}], v5 offset:{256*(1-jn) + c*USZ}")
A("s_waitcnt lgkmcnt(0)\ns_barrier")
RR = 64
for jn in range(2):
    for src in range(4):
        r = RR + 16 * jn + 4 * src
        A(f"ds_read_b128 v[{r}:{r+3}], v11 offset:{8192*src + 1024*jn}")
vm.wait("qe", "se", "me")
XO, XS = 112, 120
SAp, C1p, GAp, C2p = ME, ME + 2, ME + 4, ME + 6
A(f"s_mov_b32 s{T2}, {X1S}\ns_mov_b32 s{T3}, {X1P}")
for jn in range(2):
    A(f"s_waitcnt lgkmcnt({4*(1-jn)})")
    seqs = []
    for r in range(4):
        Y, QF, QC, H, X = [24 + 10 * r + 2 * k for k in range(5)]
        b = RR + 16 * jn
        dw = 1 if r < 2 else 0
        sq = []
        for c in range(2):
            src = UE + 4 * jn + 2 * c + dw
            sq.append(f"v_and_b32 v{X+c}, 0xffff0000, v{src}" if r % 2 == 0 else f"v_lshlrev_b32 v{X+c}, 16, v{src}")
        st = SE + 8 * jn + 2 * r
        sq += f"""v_add_f32 v{Y}, v{b+r}, v{b+4+r}
        v_add_f32 v{Y+1}, v{b+8+r}, v{b+12+r}
        v_lshlrev_b32 v{QF}, 16, v{QE+4*jn+r}
        v_and_b32 v{QF+1}, 0xffff0000, v{QE+4*jn+r}
        v_pk_fma_f32 v[{Y}:{Y+1}], v[{X}:{X+1}], v[20:21], v[{Y}:{Y+1}]
        v_pk_add_f32 v[{QC}:{QC+1}], v[{QF}:{QF+1}], v[{st}:{st+1}] op_sel:[0,1] op_sel_hi:[1,1] neg_lo:[0,1] neg_hi:[0,1]
        v_pk_mul_f32 v[{H}:{H+1}], v[{QC}:{QC+1}], v[{st}:{st+1}] op_sel_hi:[1,0]
        v_pk_fma_f32 v[{H}:{H+1}], v[{H}:{H+1}], v[{C1p}:{C1p+1}], v[{SAp}:{SAp+1}]
        v_pk_mul_f32 v[{H}:{H+1}], v[{H}:{H+1}], v[{Y}:{Y+1}]
        v_pk_fma_f32 v[{QC}:{QC+1}], v[{H}:{H+1}], v[{GAp}:{GAp+1}], v[{QC}:{QC+1}]
        v_pk_fma_f32 v[{QF}:{QF+1}], v[{H}:{H+1}], v[{GAp}:{GAp+1}], v[{QF}:{QF+1}]
        v_pk_mul_f32 v[{QC}:{QC+1}], v[{QC}:{QC+1}], v[{C2p}:{C2p+1}]
        v_cvt_pk_bf16_f32 v{XO+4*jn+r}, v{QF}, v{QF+1}
        v_cvt_pk_bf16_f32 v{XS+4*jn+r}, v{QC}, v{QC+1}""".split("\n")
        seqs.append(sq)
    for gi, grp in enumerate(zip(*seqs)):
        for x in grp: A(x)
        if gi < P("W1_EPI", 8): w1_issue(1)
    vm.op(f"buffer_store_dwordx4 v[{XS+4*jn}:{XS+4*jn+3}], v14, {W4}, s{T2} offen offset:{1024*jn} sc1", "st2")
    vm.op(f"buffer_store_dwordx4 v[{XO+4*jn}:{XO+4*jn+3}], v14, {W4}, s{T3} offen offset:{1024*jn} sc1", "st2")
stamp("st2 issued")
w1_issue(99)
TP, B1R, M1R = 144, 208, 140
vm.wait("tp")
for i in range(24): A(f"v_accvgpr_read_b32 v{TP+i}, a{192+i}")
for i in range(6): A(f"v_accvgpr_read_b32 v{B1R+i}, a{216+i}")
for sec in range(3):
    b = TP + 8 * sec
    A(f"""v_pk_add_f32 v[{b}:{b+1}], v[{b}:{b+1}], v[{b+2}:{b+3}]
    v_pk_add_f32 v[{b+4}:{b+5}], v[{b+4}:{b+5}], v[{b+6}:{b+7}]""")
for sec in range(3):
    b = TP + 8 * sec
    A(f"""v_pk_add_f32 v[{b}:{b+1}], v[{b}:{b+1}], v[{b+4}:{b+5}]
    v_cvt_pk_bf16_f32 v{b+2}, v{b}, v{b+1}""")
A(f"""v_lshlrev_b32 v{TP+8}, 16, v{TP+10}
v_and_b32 v{TP+9}, 0xffff0000, v{TP+10}
v_lshlrev_b32 v{TP+16}, 16, v{TP+18}
v_and_b32 v{TP+17}, 0xffff0000, v{TP+18}
v_add_f32 v{TP+8}, 1.0, v{TP+8}
v_add_f32 v{TP+9}, 1.0, v{TP+9}
v_cvt_pk_bf16_f32 v{TP+10}, v{TP+8}, v{TP+9}
v_lshlrev_b32 v9, 2, v0
v_add_u32 v9, {L_TB}, v9
v_lshlrev_b32 v10, 3, v0
v_add_u32 v10, {L_TGB}, v10
ds_write_b32 v9, v{TP+2}
ds_write_b32 v9, v{TP+2} offset:1024
ds_write_b32 v9, v{TP+10} offset:{L_TC2-L_TB}
ds_write_b32 v9, v{TP+10} offset:{L_TC2-L_TB+1024}
ds_write_b64 v10, v[{TP+16}:{TP+17}]
v_and_b32 v9, 1, v3
v_mul_u32_u24 v9, {L_TC2-L_TB}, v9
v_lshl_add_u32 v9, v4, 4, v9
s_lshl_b32 s{T0}, s{sROT1}, 6
s_add_u32 s{T0}, s{T0}, {L_TB}
v_add_u32 v9, s{T0}, v9""")
A(f"""v_lshlrev_b32 v5, 13, v4
s_lshl_b32 s{T0}, s{sWAVE}, 15
s_lshl_b32 s{T1}, s{sR}, 8
s_add_u32 s{T0}, s{T0}, s{T1}
v_add_u32 v5, s{T0}, v5
s_and_b32 s{T1}, s{sWAVE}, 1
s_lshl_b32 s{T1}, s{T1}, 2
v_xor_b32 v7, s{T1}, v3
v_lshl_add_u32 v5, v7, 4, v5
v_add_u32 v6, {X1P}, v5
v_add_u32 v5, {X1S}, v5
v_and_b32 v7, 1, v4
v_lshlrev_b32 v8, 10, v4
v_lshl_add_u32 v8, v3, 2, v8
v_add_u32 v8, {L_X}, v8""")
for sg in range(4):
    A(f"v_xor_b32 v10, {sg}, v7\nv_lshl_add_u32 v{16+sg}, v10, 6, v8")
A(f"v_xor_b32 v10, s{sWAVE}, v7\nv_lshl_add_u32 v141, v10, 6, v8\nv_subrev_u32 v141, {L_X-L_XP}, v141")
A(f"""v_lshlrev_b32 v10, 4, v2
s_lshl_b32 s{T0}, s{sWAVE}, 10
v_add_u32 v11, s{T0}, v10
s_mul_i32 s{T0}, s{sFG}, {2*86*1024}
s_add_u32 s{T0}, s{T0}, {W2P}
v_add_u32 v20, s{T0}, v11
v_add_u32 v21, {86*1024}, v20
s_mul_i32 s{T0}, s{sR}, {2*86*1024}
s_add_u32 s{T0}, s{T0}, {HID}
v_add_u32 v22, s{T0}, v11
v_add_u32 v23, {86*1024}, v22
v_add_u32 v12, {F2}, v13
s_mul_i32 s{T0}, s{sWAVE}, 384
s_add_u32 s{T0}, s{T0}, {L_BB}
v_lshl_add_u32 v14, v4, 4, s{T0}
""")
vm.wait("st2", extra="lgkmcnt(0)")
A("s_barrier")
set_flag(0, F2, f"s_mov_b32 s{T0}, s2", 10, 11)
stamp("flag2")
MBF = 64
for t in range(16):
    A(f"ds_read_b128 v[{MBF+4*t}:{MBF+4*t+3}], v9 offset:{64*t}")
MD = 24
for i in range(12): A(f"v_mov_b32 v{MD+i}, 0")
A("s_waitcnt lgkmcnt(0)")
for t in range(16):
    vm.wait(f"w1_{t}")
    for j in range(3):
        A(f"v_mfma_f32_16x16x32_bf16 v[{MD+4*j}:{MD+4*j+3}], a[{(t*3+j)*4}:{(t*3+j)*4+3}], v[{MBF+4*t}:{MBF+4*t+3}], v[{MD+4*j}:{MD+4*j+3}]")
stamp("MB pass done")
def w2reg(i, cb):
    k = 2 * i + cb
    return f"a[{192+4*k}:{195+4*k}]" if k < 16 else f"v[{252-4*(k-16)}:{255-4*(k-16)}]"
w2q = [(i, cb) for i in range(22) for cb in range(2)]
def w2_issue(n):
    for _ in range(n):
        if not w2q: return
        i, cb = w2q.pop(0)
        vm.op(f"buffer_load_dwordx4 {w2reg(i,cb)}, v{20+cb}, {W4}, s{ROT2[i]} offen sc1", "w2")
A("s_nop 7\ns_nop 1")
Bq = 36
for j in range(3):
    for r in range(4):
        A(f"v_mov_b32_dpp v{Bq+4*j+r}, v{MD+4*j+r} row_newbcast:0 row_mask:0xf bank_mask:0xf")
        A(f"v_mov_b32_dpp v{Bq+12+4*j+r}, v{MD+4*j+r} row_newbcast:1 row_mask:0xf bank_mask:0xf")
for j in range(3):
    A(f"""v_lshlrev_b32 v60, 16, v{B1R+2*j}
    v_and_b32 v61, 0xffff0000, v{B1R+2*j}
    v_lshlrev_b32 v62, 16, v{B1R+2*j+1}
    v_and_b32 v63, 0xffff0000, v{B1R+2*j+1}
    v_pk_add_f32 v[{Bq+4*j}:{Bq+4*j+1}], v[{Bq+4*j}:{Bq+4*j+1}], v[60:61]
    v_pk_add_f32 v[{Bq+4*j+2}:{Bq+4*j+3}], v[{Bq+4*j+2}:{Bq+4*j+3}], v[62:63]""")
A(f"s_mov_b32 s{SX}, 0x00010001\ns_mov_b32 s{SX+1}, 0x00010001\ns_mov_b64 exec, s[{SX}:{SX+1}]")
for i in range(6):
    A(f"ds_write_b128 v14, v[{Bq+4*i}:{Bq+4*i+3}] offset:{64*i}")
A("s_mov_b64 exec, -1")
G1 = 24; SAC = 128
A("s_waitcnt lgkmcnt(0)")
for i in range(48): A(f"v_mov_b32 v{G1+i}, 0")
stamp("pre poll2")
w2e = capture(lambda: w2_issue(P("W2_EARLY", 8)))
A(f"s_cmp_eq_u32 s{sWAVE}, 0\ns_cbranch_scc1 p2w0")
for x in w2e: A(x)
A("s_branch p2join\np2w0:")
poll(12, 4, 4096, 136, "p2")
for x in w2e: A(x)
A("p2join:")
A(f"""s_cmp_lg_u32 s2, 0
s_cbranch_scc1 noep
s_cmp_lg_u32 s{sWAVE}, 0
s_cbranch_scc1 noep
v_mov_b32 v10, {EPOCH}
v_mov_b32 v11, s{sEP}
s_mov_b64 exec, 1
buffer_store_dword v11, v10, {W4}, 0 offen sc1
s_mov_b64 exec, -1
noep:
s_barrier""")
stamp("poll2 done")
A(f"s_lshl_b32 s{T5}, s{sWAVE}, 10\ns_add_u32 s{T5}, s{T5}, {L_X}")
for c in range(16):
    A(f"""s_add_u32 s{T0}, s{T5}, {4096*c}
    s_mov_b32 m0, s{T0}
    s_lshl_b32 s{T1}, s{ROT1[c]}, 7""")
    vm.op(f"buffer_load_dwordx4 v5, {W4}, s{T1} offen sc1 lds", f"x{c//4}")
A(f"s_sub_u32 s{T5}, s{T5}, {L_X - L_XP}")
def xp_issue(c):
    A(f"""s_add_u32 s{T0}, s{T5}, {4096*c}
    s_mov_b32 m0, s{T0}
    s_lshl_b32 s{T1}, s{ROT1[c]}, 7""")
    vm.op(f"buffer_load_dwordx4 v6, {W4}, s{T1} offen sc1 lds", f"p{c//4}")
BF = [72, 88]; PF = [104, 112]; ONE = 120; D1 = 136; D2 = 128
def bl(t, st):
    for sg in range(4):
        r = BF[st] + 4 * sg
        A(f"ds_read2st64_b32 v[{r}:{r+1}], v{16+sg} offset0:{16*t} offset1:{16*t+1}")
        A(f"ds_read2st64_b32 v[{r+2}:{r+3}], v{16+sg} offset0:{16*t+2} offset1:{16*t+3}")
def pl(u, r):
    A(f"ds_read2st64_b32 v[{r}:{r+1}], v141 offset0:{16*u} offset1:{16*u+1}")
    A(f"ds_read2st64_b32 v[{r+2}:{r+3}], v141 offset0:{16*u+2} offset1:{16*u+3}")
for i in range(4): A(f"v_mov_b32 v{ONE+i}, s{sONES}\nv_mov_b32 v{D1+i}, 0\nv_mov_b32 v{D2+i}, 0")
vm.wait("x0"); A("s_barrier")
stamp("x chunk0")
bl(0, 0)
W2_T0, W2_EVERY = P("W2_T0", 4), P("W2_EVERY", 4)
xpq = list(range(16))
SAC = 128
def fin():
    A(f"""v_and_b32 v124, 3, v3
    v_lshrrev_b32 v125, 2, v3
    v_cmp_eq_u32 s[{SX}:{SX+1}], v125, v4
    v_lshlrev_b32 v126, 3, v3
    s_lshl_b32 s{T0}, s{sWAVE}, 7
    s_add_u32 s{T0}, s{T0}, {L_ST}
    v_add_u32 v127, s{T0}, v126
    v_add_u32 v126, {L_ST}, v126
    v_cmp_eq_u32 vcc, 1, v124
    s_nop 1
    v_cndmask_b32 v{D2}, v{D2}, v{D2+1}, vcc
    v_cmp_eq_u32 vcc, 2, v124
    s_nop 1
    v_cndmask_b32 v{D2}, v{D2}, v{D2+2}, vcc
    v_cmp_eq_u32 vcc, 3, v124
    s_nop 1
    v_cndmask_b32 v{D2}, v{D2}, v{D2+3}, vcc""")
    ln_final(D1, D2, 104, 105)
    A(f"""v_sub_f32 v105, v105, v{M1R}
    v_mul_f32 v105, v105, v104""")
finl = capture(fin)
PFX = [[104, 108, 112, 116], [144, 148, 152, 156]]
for t in range(16):
    st = t & 1
    lds = []
    if t in (3, 7, 11, 14):
        tags = {3: ["x1"], 7: ["x2", "p3"], 11: ["x3"], 14: []}[t]
        vm.wait(*tags, extra="lgkmcnt(0)" if t == 14 else ""); A("s_barrier")
    if t + 1 < 16: lds += capture(lambda: bl(t + 1, st ^ 1))
    if 8 <= t + 1 < 12:
        for k in range(4): lds += capture(lambda: pl(4 * (t + 1 - 8) + k, PFX[st ^ 1][k]))
    if t == 15:
        for sg in range(4): lds.append(f"ds_read_b64 v[{SAC+2*sg}:{SAC+2*sg+1}], v126 offset:{128*sg}")
    A("s_waitcnt lgkmcnt(0)")
    if os.environ.get("G1ST"): stamp(f"g1 t{t}")
    mfs = []
    for j in range(3):
        for sg in range(4):
            c = G1 + (j * 4 + sg) * 4
            mfs.append(f"v_mfma_f32_16x16x32_bf16 v[{c}:{c+3}], a[{(t*3+j)*4}:{(t*3+j)*4+3}], v[{BF[st]+4*sg}:{BF[st]+4*sg+3}], v[{c}:{c+3}]")
    if 8 <= t < 12:
        for k in range(4):
            p = PFX[st][k]
            mfs.insert(0, f"v_mfma_f32_16x16x32_bf16 v[{D1}:{D1+3}], v[{ONE}:{ONE+3}], v[{p}:{p+3}], v[{D1}:{D1+3}]")
            mfs.insert(0, f"v_mfma_f32_16x16x32_bf16 v[{D2}:{D2+3}], v[{p}:{p+3}], v[{p}:{p+3}], v[{D2}:{D2+3}]")
    LPG = 2 if len(lds) > len(mfs) - 5 else 1
    for mf, x in enumerate(mfs, 1):
        A(x)
        for _ in range(P("LPG", 2) if mf <= 4 else LPG):
            if lds: A(lds.pop(0))
        if t in (12, 13):
            for _ in range(2):
                if finl: A(finl.pop(0))
            if t == 13 and mf == 12:
                for y in finl: A(y)
                A(f"s_mov_b64 exec, s[{SX}:{SX+1}]\nds_write_b64 v127, v[104:105]\ns_mov_b64 exec, -1\ns_nop 3")
        if mf % 3 == 0 and xpq: xp_issue(xpq.pop(0))
        elif t >= W2_T0 and mf % W2_EVERY == 0 and (t >= 12 or len(w2q) > 4): w2_issue(1)
    assert not lds
stamp("gemm1 mfma done")
for i in range(6):
    A(f"ds_read_b128 v[{72+4*i}:{75+4*i}], v14 offset:{64*i}")
A(f"""v_lshrrev_b32 v5, 1, v4
v_lshlrev_b32 v5, 9, v5
v_lshl_add_u32 v5, v3, 4, v5
v_and_b32 v6, 1, v4
v_lshl_add_u32 v5, v6, 3, v5
s_mul_i32 s{T0}, s{sR}, {2*86*1024}
s_lshl_b32 s{T1}, s46, 10
s_add_u32 s{T0}, s{T0}, s{T1}
s_add_u32 s{T0}, s{T0}, {HID}
v_add_u32 v5, s{T0}, v5
v_add_u32 v6, 4096, v5
v_add_u32 v7, 8192, v5
v_add_u32 v7, s47, v7
s_mov_b32 s{T3}, {86*1024}
s_waitcnt lgkmcnt(0)""")
for j in range(3):
    for sp2 in range(2):
        seqs = []
        for sg in (2 * sp2, 2 * sp2 + 1):
            c = G1 + (j * 4 + sg) * 4
            sp = SAC + 2 * sg
            TT = 96 + 4 * (sg & 1)
            sq = []
            for hh in range(2):
                sq.append(f"v_pk_fma_f32 v[{TT+2*hh}:{TT+2*hh+1}], v[{84+4*j+2*hh}:{85+4*j+2*hh}], v[{sp}:{sp+1}], v[{72+4*j+2*hh}:{73+4*j+2*hh}] op_sel:[0,1,0] op_sel_hi:[1,1,1] neg_lo:[0,1,0] neg_hi:[0,1,0]")
            for hh in range(2):
                sq.append(f"v_pk_fma_f32 v[{c+2*hh}:{c+2*hh+1}], v[{c+2*hh}:{c+2*hh+1}], v[{sp}:{sp+1}], v[{TT+2*hh}:{TT+2*hh+1}] op_sel_hi:[1,0,1]")
            for r in range(4): sq.append(f"v_max_f32 v{c+r}, 0, v{c+r}")
            sq += [f"v_pk_mul_f32 v[{c}:{c+1}], v[{c}:{c+1}], v[{c}:{c+1}]",
                   f"v_pk_mul_f32 v[{c+2}:{c+3}], v[{c+2}:{c+3}], v[{c+2}:{c+3}]",
                   f"v_cvt_pk_bf16_f32 v{c}, v{c}, v{c+1}",
                   f"v_cvt_pk_bf16_f32 v{c+1}, v{c+2}, v{c+3}"]
            seqs.append(sq)
        for grp in zip(*seqs):
            for x in grp: A(x)
        for sg in (2 * sp2, 2 * sp2 + 1):
            c = G1 + (j * 4 + sg) * 4
            vm.op(f"buffer_store_dwordx2 v[{c}:{c+1}], v{5+j}, {W4}, {'s%d'%T3 if sg>>1 else '0'} offen offset:{256*(sg&1)} {'' if P('PLAIN_HID',0) else 'sc1'}", "st3")
stamp("st3 issued")
XR, BR, GR = 96, 104, 112
A(f"""v_and_b32 v8, 31, v2
v_lshrrev_b32 v9, 5, v2
s_lshr_b32 s{T0}, s{sWAVE}, 1
s_and_b32 s{T1}, s{sWAVE}, 1
s_lshl_b32 s{T2}, s{sFG}, 7
s_lshl_b32 s{T4}, s{T1}, 6
s_add_u32 s{T2}, s{T2}, s{T4}
v_lshlrev_b32 v10, 3, v9
v_add_u32 v10, s{T2}, v10
v_lshlrev_b32 v11, 1, v10
v_add_u32 v11, {L_TGB}, v11
s_lshl_b32 s{T4}, s{sR}, 6
s_lshl_b32 s{T5}, s{T0}, 5
s_add_u32 s{T4}, s{T4}, s{T5}
v_add_u32 v12, s{T4}, v8
v_lshlrev_b32 v15, 11, v10
v_lshl_add_u32 v15, v12, 2, v15
v_add_u32 v15, {X1P}, v15
v_lshl_add_u32 v12, v12, 10, v10
v_min_u32 v16, 7, v2
v_lshlrev_b32 v16, 6, v16
s_lshl_b32 s{T0}, s{sR}, 9
s_add_u32 s{T0}, s{T0}, {F3}
v_add_u32 v16, s{T0}, v16""")
for q in range(4):
    A(f"ds_read_b128 v[{GR+4*q}:{GR+4*q+3}], v11 offset:{32*q}")
for q in range(4):
    for pp in range(2):
        A(f"s_mov_b32 s{T1}, {8192*(4*q+pp)}")
        vm.op(f"buffer_load_dword v{XR+2*q+pp}, v15, {W4}, s{T1} offen sc1", "xr")
for q in range(4):
    vm.op(f"buffer_load_dwordx2 v[{BR+2*q}:{BR+2*q+1}], v10, s[{SM2}:{SM2+3}], 0 offen offset:{16*q}", "xr")
w2_issue(99)
vm.wait("st3")
A("s_barrier")
set_flag(0, F3, f"s_lshl_b32 s{T0}, s{sR}, 3\ns_add_u32 s{T0}, s{T0}, s{sFG}", 17, 18)
if P("HTOUCH", 1):
    A(f"""v_lshlrev_b32 v19, 12, v4
    v_bfe_u32 v20, v2, 3, 1
    v_mul_u32_u24 v20, {86*1024}, v20
    v_and_b32 v21, 7, v2
    v_lshl_add_u32 v19, v21, 7, v19
    s_mul_i32 s{T0}, s{sR}, {2*86*1024}
    s_lshl_b32 s{T1}, s46, 10
    s_add_u32 s{T0}, s{T0}, s{T1}
    s_add_u32 s{T0}, s{T0}, {HID}
    v_add3_u32 v19, v19, v20, s{T0}
    s_cmp_eq_u32 s47, 0
    s_cselect_b32 s{T1}, 48, 32
    v_cmp_gt_u32 vcc, s{T1}, v2
    v_mov_b32 v20, {OOB}
    s_nop 0
    v_cndmask_b32 v19, v20, v19, vcc""")
    vm.op(f"buffer_load_dword v21, v19, {W4}, 0 offen sc1", "touch")
G2 = 24
for i in range(64): A(f"v_mov_b32 v{G2+i}, 0")
stamp("flag3")
poll(16, 1, 0, 17, "p3")
A("s_barrier")
stamp("poll3 done")
HD = P("HD", 6)
def h_issue(i):
    for sb in range(2):
        vm.op(f"buffer_load_dwordx4 a[{(2*i+sb)*4}:{(2*i+sb)*4+3}], v{22+sb}, {W4}, s{ROT2[i]} offen sc1", f"h{i}")
for i in range(HD): h_issue(i)
for i in range(22):
    vm.wait(f"h{i}")
    for sb in range(2):
        for cb in range(2):
            c = G2 + 16 * (2 * sb + cb)
            A(f"v_mfma_f32_32x32x16_bf16 v[{c}:{c+15}], {w2reg(i,cb)}, a[{(2*i+sb)*4}:{(2*i+sb)*4+3}], v[{c}:{c+15}]")
            if sb == 0 and cb == 0 and i + HD < 22: h_issue(i + HD)
stamp("gemm2 mfma done")
A(f"""s_nop 7
s_nop 3
v_lshlrev_b32 v13, 4, v2""")
for T in range(4):
    lab = A.label("skip")
    A(f"""s_cmp_eq_u32 s{sWAVE}, {T}
    s_cbranch_scc1 {lab}
    s_sub_u32 s{T0}, s{sWAVE}, {T+1}
    s_and_b32 s{T0}, s{T0}, 3
    s_lshl_b32 s{T0}, s{T0}, 12
    s_add_u32 s{T0}, s{T0}, {L_RED + T*12288}
    v_add_u32 v14, s{T0}, v13""")
    for q in range(4):
        A(f"ds_write_b128 v14, v[{G2+16*T+4*q}:{G2+16*T+4*q+3}] offset:{1024*q}")
    A(f"{lab}:")
OWN = 144
for T in range(4):
    lab = A.label("mv")
    A(f"s_cmp_lg_u32 s{sWAVE}, {T}\ns_cbranch_scc1 {lab}")
    for i in range(16): A(f"v_mov_b32 v{OWN+i}, v{G2+16*T+i}")
    A(f"{lab}:")
A(f"""s_mul_i32 s{T0}, s{sWAVE}, 12288
s_add_u32 s{T0}, s{T0}, {L_RED}
v_add_u32 v14, s{T0}, v13
s_waitcnt lgkmcnt(0)
s_barrier""")
for q in range(4):
    for sl in range(3):
        A(f"ds_read_b128 v[{G2+16*sl+4*q}:{G2+16*sl+4*q+3}], v14 offset:{4096*sl+1024*q}")
U = 160
for q in range(4):
    c = OWN + 4 * q
    A(f"""v_lshlrev_b32 v{U}, 16, v{BR+2*q}
    v_and_b32 v{U+1}, 0xffff0000, v{BR+2*q}
    v_lshlrev_b32 v{U+2}, 16, v{BR+2*q+1}
    v_and_b32 v{U+3}, 0xffff0000, v{BR+2*q+1}
    v_pk_add_f32 v[{c}:{c+1}], v[{c}:{c+1}], v[{U}:{U+1}]
    v_pk_add_f32 v[{c+2}:{c+3}], v[{c+2}:{c+3}], v[{U+2}:{U+3}]
    v_lshlrev_b32 v{U}, 16, v{XR+2*q}
    v_and_b32 v{U+1}, 0xffff0000, v{XR+2*q}
    v_lshlrev_b32 v{U+2}, 16, v{XR+2*q+1}
    v_and_b32 v{U+3}, 0xffff0000, v{XR+2*q+1}
    s_waitcnt lgkmcnt({3*(3-q)})""")
    for sl in range(3):
        for hh in range(2):
            A(f"v_pk_add_f32 v[{c+2*hh}:{c+2*hh+1}], v[{c+2*hh}:{c+2*hh+1}], v[{G2+16*sl+4*q+2*hh}:{G2+16*sl+4*q+2*hh+1}]")
    A(f"""v_pk_fma_f32 v[{c}:{c+1}], v[{c}:{c+1}], v[{GR+4*q}:{GR+4*q+1}], v[{U}:{U+1}]
    v_pk_fma_f32 v[{c+2}:{c+3}], v[{c+2}:{c+3}], v[{GR+4*q+2}:{GR+4*q+3}], v[{U+2}:{U+3}]
    v_cvt_pk_bf16_f32 v{c}, v{c}, v{c+1}
    v_cvt_pk_bf16_f32 v{c+1}, v{c+2}, v{c+3}
    buffer_store_dwordx2 v[{c}:{c+1}], v12, s[{SOUT}:{SOUT+3}], 0 offen offset:{16*q}""")
if STAMP:
    stamp("out issued")
    A("s_waitcnt vmcnt(0)")
    stamp("end")
    A(f"""v_lshlrev_b32 v1, 2, v2
    s_lshl_b32 s{T0}, s2, 10
    s_lshl_b32 s{T1}, s{sWAVE}, 8
    s_add_u32 s{T0}, s{T0}, s{T1}
    s_add_u32 s{T0}, s{T0}, {TS}
    v_add_u32 v1, s{T0}, v1
    buffer_store_dword v143, v1, {W4}, 0 offen""")
A("k_done:\ns_endpgm\nk_end:")

hdr = f"; @launch grid=(256,1,1) block=(256,1,1) lds={LDS_SZ}\n.amdgcn_target \"amdgcn-amd-amdhsa--gfx950\"\n.text\n"
out = hdr + A.text() + '.section .rodata,"a"\n' + A.kd(name, 256, 102, accum=256, agpr=256)
open(sys.argv[1], "w").write(out)
print("stamps", nst[0], "lds", LDS_SZ, file=sys.stderr)
```

```python
import sys, os
from asmlib import *

STAMP = os.environ.get("STAMP") == "1"
def P(n, d): return int(os.environ.get(n, d))
S, D, F = 2048, 512, 1376
UR, QP, X1P, X1S, HID, W1P, W2P = 0x0, 0x200000, 0x400000, 0x600000, 0x800000, 0xE00000, 0x1000000
MODF, ST1 = 0x1200000, 0x1210000
F1A, F1B, F2, F3, EPOCH, F3B = 0x1300000, 0x1304000, 0x1308000, 0x130C000, 0x1310000, 0x1314000
TS = 0x1400000
WS_SZ = 0x1500000
OOB = 0x40000000
SZ_SD = S * D * 2
SZ_W = D * F * 2
POLL_MAX = 200000

OSZ = 2368; USZ = 2 * OSZ
L_U = 0
L_KF = 9472; KFSZ = 8256
L_MODP = L_KF + 2 * KFSZ
L_XP = 0
L_X = 65536
L_RED = L_X
L_TB = 131072
L_TC2 = L_TB + 2048 + 64
L_TGB = L_TC2 + 2048 + 64
L_BB = L_TGB + 2048
L_ST = L_BB + 4 * 384
LDS_SZ = L_ST + 512
assert LDS_SZ <= 160 * 1024 and L_MODP + 4096 <= 65536

WS, SK, SV, SQ, SM1, SKF, SM2, SC, SWM, SPK, SOUT = 4, 8, 12, 16, 20, 24, 28, 32, 36, 40, 48
sWAVE, sXG, sJ, sEP = 52, 53, 54, 55
sR, sFG, sD0, sONES, sM = 96, 97, 98, 99, 3
T0, T1, T2, T3, T4, T5 = 56, 57, 58, 59, 60, 61
SX = 62
ROT1 = [64 + i for i in range(16)]
ROT2 = [80 + i for i in range(16)] + [8 + i for i in range(6)]
sROT1 = 14

A = Asm()
name = "adaLN_cond__ssm_conv_h3__dense_activation_squared_relu__prompt_kernel"
W4 = f"s[{WS}:{WS+3}]"

class VM:
    def __init__(self): self.q = []
    def op(self, text, tag):
        A(text); self.q.append(tag)
    def wait(self, *tags, extra=""):
        last = max((i for i, t in enumerate(self.q) if t in tags), default=-1)
        n = len(self.q) - 1 - last
        if last >= 0:
            assert n <= 63, (tags, n)
            A(f"s_waitcnt vmcnt({n}) {extra}".rstrip())
            self.q = self.q[last + 1:]
        elif extra:
            A(f"s_waitcnt {extra}")
vm = VM()

nst = [0]
def stamp(label=""):
    if not STAMP: return
    i = nst[0]; nst[0] += 1
    print(f"stamp {i}: {label}", file=sys.stderr)
    A(f"""s_memrealtime s[100:101]
    s_waitcnt lgkmcnt(0)
    v_writelane_b32 v143, s100, {i}""")

def rnd1(r):
    A(f"v_cvt_pk_bf16_f32 v{r}, v{r}, v{r}\nv_lshlrev_b32 v{r}, 16, v{r}")
def capture(fn):
    save = A.lines; A.lines = []
    fn()
    tmp = [x.strip() for x in A.lines]; A.lines = save
    return tmp

def poll(addr_v, nloads, stride_imm, dst, lab, only_wave0=True):
    if only_wave0:
        A(f"s_cmp_lg_u32 s{sWAVE}, 0\ns_cbranch_scc1 {lab}_done")
    A(f"s_mov_b32 s{T0}, 0\n{lab}:")
    for k in range(nloads):
        A(f"s_mov_b32 s{T1}, {k*stride_imm}\nbuffer_load_dword v{dst+k}, v{addr_v}, {W4}, s{T1} offen sc1")
    A("s_waitcnt vmcnt(0)")
    for k in range(nloads):
        A(f"v_xor_b32 v{dst+k}, s{sEP}, v{dst+k}")
    for k in range(1, nloads):
        A(f"v_or_b32 v{dst}, v{dst}, v{dst+k}")
    A(f"""v_cmp_ne_u32 vcc, 0, v{dst}
    s_add_u32 s{T0}, s{T0}, 1
    s_cmp_ge_u32 s{T0}, {POLL_MAX}
    s_cbranch_scc1 {lab}_done
    s_cbranch_vccz {lab}_done
    s_mov_b64 exec, vcc
    s_sleep {P("PSLEEP", 2)}
    s_branch {lab}
    {lab}_done:
    s_mov_b64 exec, -1""")

def set_flag(wave, base, idx_code, va, vd, pre=""):
    lab = A.label("fl")
    A(f"""s_cmp_lg_u32 s{sWAVE}, {wave}
    s_cbranch_scc1 {lab}
    {pre}
    {idx_code}
    s_lshl_b32 s{T0}, s{T0}, 6
    s_add_u32 s{T0}, s{T0}, {base}
    v_mov_b32 v{va}, s{T0}
    v_mov_b32 v{vd}, s{sEP}
    s_mov_b64 exec, 1
    buffer_store_dword v{vd}, v{va}, {W4}, 0 offen sc1
    s_mov_b64 exec, -1
    {lab}:""".replace("    \n", ""))

def ln_final(sm, sq, rs_out, m_out):
    A(f"""v_mul_f32 v{m_out}, 0x3b000000, v{sm}
    v_mul_f32 v{rs_out}, 0x3b000000, v{sq}
    v_fma_f32 v{rs_out}, -v{m_out}, v{m_out}, v{rs_out}
    v_max_f32 v{rs_out}, 0, v{rs_out}""")
    rnd1(rs_out); rnd1(m_out)
    A(f"v_add_f32 v{rs_out}, 0x3727c5ac, v{rs_out}")
    rnd1(rs_out)
    A(f"v_sqrt_f32 v{rs_out}, v{rs_out}\ns_nop 0")
    rnd1(rs_out)
    A(f"v_rcp_f32 v{rs_out}, v{rs_out}\ns_nop 0")

A.kernel_begin(name)
NCP = P("NCP", 6)
A(f"""s_cmp_ge_u32 s2, 256
s_cbranch_scc1 k_done
s_load_dwordx16 s[64:79], s[0:1], 0
s_load_dwordx16 s[80:95], s[0:1], 64
s_getpc_b64 s[48:49]
k_pc:""")
A(f"""
v_lshrrev_b32 v1, 6, v0
v_and_b32 v2, 63, v0
v_readfirstlane_b32 s{sWAVE}, v1
s_and_b32 s{sXG}, s2, 7
s_lshr_b32 s{sJ}, s2, 3
v_and_b32 v3, 15, v2
v_lshrrev_b32 v4, 4, v2
s_lshr_b32 s{T0}, s{sJ}, 3
s_lshl_b32 s{T0}, s{T0}, 3
s_add_u32 s{sR}, s{sXG}, s{T0}
s_and_b32 s{sFG}, s{sJ}, 7
s_lshl_b32 s{sD0}, s{sXG}, 6
s_lshl_b32 s{T0}, s{sJ}, 1
s_add_u32 s{sD0}, s{sD0}, s{T0}
s_mov_b32 s{sONES}, 0x3f803f80""")
stamp("start")
if STAMP: A("s_memtime s[100:101]\ns_waitcnt lgkmcnt(0)\nv_writelane_b32 v143, s100, 62")
KT, VT, QT, US, QS, PKT = L_X, L_X + 9216, L_X + 17408, L_X + 25600, L_X + 33792, L_X + 41984
A(f"""v_lshrrev_b32 v5, 3, v2
v_lshlrev_b32 v5, 10, v5
v_and_b32 v6, 7, v2
v_lshl_add_u32 v5, v6, 4, v5          ; (l>>3)*1024 + (l&7)*16
s_lshl_b32 s{T0}, s{sJ}, 16
s_lshl_b32 s{T1}, s{sXG}, 7
s_add_u32 s{T0}, s{T0}, s{T1}
v_add_u32 v7, s{T0}, v5
v_subrev_u32 v7, 8192, v7
s_lshl_b32 s{T1}, s{sWAVE}, 14
s_add_u32 s{T0}, s{T0}, s{T1}
v_add_u32 v5, s{T0}, v5
v_and_b32 v12, 31, v0                 ; cp
v_lshrrev_b32 v13, 5, v0              ; rg
v_lshlrev_b32 v8, 4, v12
s_lshl_b32 s{T0}, s{sXG}, 9
v_add_u32 v8, s{T0}, v8
s_lshl_b32 s{T4}, s{sWAVE}, 11         ; 2048*w
s_movk_i32 s{T5}, 8192
s_waitcnt lgkmcnt(0)""")
if P("TLBT", 0):
    for p in (66, 68, 64, 70, 72, 74, 86, 88, 78, 82, 80, 84, 90):
        A(f"s_load_dword s0, s[{p}:{p+1}], 0")
    A(f"s_add_u32 s76, s88, 0x200000\ns_addc_u32 s77, s89, 0\ns_load_dword s0, s[76:77], 0")
    A(f"s_mov_b32 s76, s94\ns_mov_b32 s77, s95")
    for pg in range(10):
        A(f"s_load_dword s0, s[76:77], 0")
        if pg < 9: A(f"s_add_u32 s76, s76, 0x200000\ns_addc_u32 s77, s77, 0")
A.srd(SK, 66, SZ_SD); A.srd(SV, 68, SZ_SD); A.srd(SM1, 70, 4096); A.srd(SQ, 64, SZ_SD)
A(f"""s_cmp_lg_u32 s{sWAVE}, 3
s_cbranch_scc1 nohalo
s_mov_b32 m0, {KT}
s_nop 0
buffer_load_dwordx4 v7, s[{SK}:{SK+3}], 0 offen lds
nohalo:""")
W = 44
for (base, srd, tag) in ((KT + 1024, SK, "k"), (VT, SV, "k"), (QT, SQ, "k")):
    for i in range(2):
        A(f"s_add_u32 s{T0}, s{T4}, {base + 1024*i}\ns_mov_b32 m0, s{T0}\ns_nop 0")
        vm.op(f"buffer_load_dwordx4 v5, s[{srd}:{srd+3}], {'s%d'%T5 if i else '0'} offen lds", tag)
vm.op(f"buffer_load_dwordx4 v[{W}:{W+3}], v8, s[{SM1}:{SM1+3}], 0 offen", "k")
A(f"""s_mul_i32 s{T0}, s{sJ}, 43
s_lshr_b32 s{T0}, s{T0}, 8              ; j/6
s_mul_i32 s{T0}, s{T0}, 6
s_sub_u32 s{T0}, s{sJ}, s{T0}           ; j%6
s_lshl_b32 s{T0}, s{T0}, 12
v_lshl_add_u32 v9, v0, 4, s{T0}
v_min_u32 v9, k_end-k_pc-16, v9""")
vm.op(f"global_load_dwordx4 a[0:3], v9, s[48:49]", "code")
A.srd(WS, 94, WS_SZ); A.srd(SKF, 72, SZ_SD); A.srd(SM2, 74, 1024); A.srd(SC, 86, 1024); A.srd(SWM, 88, 512 * 3072 * 2)
A.srd(SOUT, 90, SZ_SD)
A(f"v_mov_b32 v142, {EPOCH}")
vm.op(f"buffer_load_dword v142, v142, {W4}, 0 offen sc1", "ep")
KF0, DD, SR, CC, WM = 48, 58, 60, 68, 72
A(f"""v_lshlrev_b32 v9, 4, v0
s_lshl_b32 s{T0}, s{sD0}, 12
v_add_u32 v9, s{T0}, v9
s_movk_i32 s{T1}, 4096""")
vm.op(f"buffer_load_dwordx4 v[{KF0}:{KF0+3}], v9, s[{SKF}:{SKF+3}], 0 offen", "kf")
vm.op(f"buffer_load_dwordx4 v[{KF0+4}:{KF0+7}], v9, s[{SKF}:{SKF+3}], s{T1} offen", "kf")
A(f"s_lshl_b32 s{T0}, s{sD0}, 1\nv_mov_b32 v9, s{T0}")
vm.op(f"buffer_load_dword v{DD}, v9, s[{SM2}:{SM2+3}], 0 offen", "D")
PS, PA, PD = 88, 92, 90
A(f"""s_sub_u32 s{T0}, s2, 74
v_lshlrev_b32 v{PD}, 4, v2
v_bfe_u32 v9, v2, 2, 2                ; r
v_and_b32 v10, 3, v2                  ; c
s_cmp_lt_u32 s{T0}, 96
s_cbranch_scc0 pk_w2""")
A.srd(SPK, 78, SZ_W)
A(f"""s_and_b32 s{T1}, s{T0}, 15              ; t
s_lshr_b32 s{T2}, s{T0}, 4              ; Fgb
v_lshrrev_b32 v11, 5, v2
v_bfe_u32 v14, v2, 1, 4
s_and_b32 s{T3}, s{sWAVE}, 1
s_lshl_b32 s{T3}, s{T3}, 2
v_or_b32 v15, s{T3}, v11
v_xor_b32 v14, v14, v15               ; i' even
v_xor_b32 v15, 2, v14                 ; i' odd
v_mul_u32_u24 v11, 2752, v11
v_and_b32 v16, 1, v2
v_lshl_add_u32 v11, v16, 4, v11
s_mul_i32 s{T3}, s{T1}, {32*2752}
s_mul_i32 s{T4}, s{sWAVE}, {8*2752}
s_add_u32 s{T3}, s{T3}, s{T4}
s_lshl_b32 s{T4}, s{T2}, 9
s_add_u32 s{T3}, s{T3}, s{T4}
v_add_u32 v11, s{T3}, v11
v_lshl_add_u32 v{PS}, v14, 5, v11
v_lshl_add_u32 v{PS+1}, v15, 5, v11
s_movk_i32 s44, 5504
v_and_b32 v14, 1, v4
v_lshl_or_b32 v14, v14, 2, v9
v_lshl_add_u32 v15, v4, 3, v9
v_lshlrev_b32 v15, 9, v15
v_lshl_add_u32 v15, v10, 3, v15
v_add_u32 v15, {PKT}, v15
s_lshl_b32 s{T3}, s{sWAVE}, 2
v_xor_b32 v14, s{T3}, v14""")
for u in range(4):
    A(f"""v_xor_b32 v16, {u}, v14
    v_lshl_add_u32 v{PA+u}, v16, 5, v15
    v_add_u32 v{PA+4+u}, 2048, v{PA+u}""")
A(f"""s_lshl_b32 s{T2}, s{T2}, 2
s_add_u32 s{T2}, s{T2}, s{sWAVE}        ; Fg
s_lshl_b32 s{T3}, s{T2}, 16
s_lshl_b32 s{T4}, s{T1}, 10
s_add_u32 s{T3}, s{T3}, s{T4}
s_add_u32 s{T3}, s{T3}, {W1P}
s_cmp_ge_u32 s{T2}, 22
s_cselect_b32 s{T3}, {OOB}, s{T3}
v_add_u32 v{PD}, s{T3}, v{PD}
s_movk_i32 s45, 16384
s_cmp_eq_u32 s{T2}, 21
s_cselect_b32 s46, {OOB}, 0
s_branch pk_go
pk_w2:""")
A.srd(SPK, 82, SZ_W)
A(f"""s_sub_u32 s{T1}, s2, 170                ; F
v_bfe_u32 v14, v2, 2, 2
v_xor_b32 v14, v14, v4
v_lshlrev_b32 v11, 10, v4
v_lshl_add_u32 v11, v14, 6, v11
v_lshl_add_u32 v11, v10, 4, v11
s_lshl_b32 s{T3}, s{T1}, 14
s_lshl_b32 s{T4}, s{sWAVE}, 8
s_add_u32 s{T3}, s{T3}, s{T4}
s_cmp_ge_u32 s{T1}, 86
s_cselect_b32 s{T3}, {OOB}, s{T3}
v_add_u32 v{PS}, s{T3}, v11
v_mov_b32 v{PS+1}, v{PS}
s_movk_i32 s44, 4096
v_lshrrev_b32 v14, 1, v4
v_lshl_add_u32 v14, v14, 3, v9
v_lshlrev_b32 v14, 8, v14
v_and_b32 v15, 1, v4
v_lshl_add_u32 v14, v15, 5, v14
v_lshl_add_u32 v14, v10, 3, v14
s_lshl_b32 s{T3}, s{sWAVE}, 12
s_add_u32 s{T3}, s{T3}, {PKT}
v_add_u32 v14, s{T3}, v14""")
for u in range(4):
    A(f"""v_xor_b32 v16, {u}, v9
    v_lshl_add_u32 v{PA+u}, v16, 6, v14
    v_add_u32 v{PA+4+u}, 1024, v{PA+u}""")
A(f"""s_mul_i32 s{T3}, s{sWAVE}, {4*86*1024}
s_lshl_b32 s{T4}, s{T1}, 10
s_add_u32 s{T3}, s{T3}, s{T4}
s_add_u32 s{T3}, s{T3}, {W2P}
s_cmp_ge_u32 s{T1}, 86
s_cselect_b32 s{T3}, {OOB}, s{T3}
v_add_u32 v{PD}, s{T3}, v{PD}
s_mov_b32 s45, {86*1024}
s_mov_b32 s46, 0
pk_go:
s_lshl_b32 s{T4}, s{sWAVE}, 12
s_mov_b32 s47, 0""")
for i in range(4):
    A(f"s_add_u32 s{T0}, s{T4}, {PKT + 1024*i}\ns_mov_b32 m0, s{T0}\ns_nop 0")
    vm.op(f"buffer_load_dwordx4 v{PS+(i&1)}, s[{SPK}:{SPK+3}], s47 offen lds", "pk")
    if i < 3: A(f"s_add_u32 s47, s47, s44")
A(f"""v_lshlrev_b32 v5, 10, v13
v_lshl_add_u32 v5, v12, 2, v5
v_add_u32 v6, {KT + 5*128 + 1024}, v5
v_add_u32 v5, {KT + 5*128}, v5
v_subrev_u32 v7, {KT + 5*128 - VT}, v5
v_add_u32 v8, {QT - VT}, v7
v_and_b32 v9, 7, v12
v_sub_u32 v10, 7, v13
v_xor_b32 v10, v10, v9
v_lshlrev_b32 v14, 8, v12
v_lshl_add_u32 v15, v10, 4, v14
v_add_u32 v15, {US}, v15
v_lshlrev_b32 v10, 1, v13
v_xor_b32 v10, v10, v9
v_lshl_add_u32 v16, v10, 4, v14
v_add_u32 v16, {QS}, v16
v_xor_b32 v17, 16, v16
v_lshrrev_b32 v9, 3, v0               ; ch
v_and_b32 v10, 7, v0
v_bfe_u32 v11, v0, 4, 3
v_xor_b32 v11, v11, v10
v_lshlrev_b32 v18, 7, v9
v_lshl_add_u32 v18, v11, 4, v18
v_add_u32 v18, {US}, v18
v_lshlrev_b32 v19, 12, v9
v_lshl_add_u32 v19, v10, 4, v19
s_lshl_b32 s{T0}, s{sXG}, 18
s_lshl_b32 s{T1}, s{sJ}, 7
s_sub_u32 s{T0}, s{T0}, s{T1}
s_add_u32 s{T0}, s{T0}, 3968
v_add_u32 v19, s{T0}, v19
v_lshrrev_b32 v9, 4, v0
v_and_b32 v11, 7, v9
v_xor_b32 v11, v11, v3
v_lshlrev_b32 v20, 8, v9
v_lshl_add_u32 v20, v11, 4, v20
v_add_u32 v20, {QS}, v20
v_lshlrev_b32 v21, 13, v9
v_lshl_add_u32 v21, v3, 4, v21
s_lshl_b32 s{T0}, s{sXG}, 18
s_lshl_b32 s{T1}, s{sJ}, 8
s_add_u32 s{T0}, s{T0}, s{T1}
s_add_u32 s{T0}, s{T0}, {QP}
v_add_u32 v21, s{T0}, v21""")
stamp("issued")
vm.wait("k")
A("s_barrier")
stamp("kvq in lds")
KR, VR, QR = 144, 156, 164
for j in range(0, 8, 2):
    A(f"ds_read2_b32 v[{KR+j}:{KR+j+1}], v5 offset0:{32*j} offset1:{32*j+32}")
A(f"ds_read2_b32 v[{KR+8}:{KR+9}], v6 offset0:0 offset1:32\nds_read_b32 v{KR+10}, v6 offset:256")
for j in range(0, 8, 2):
    A(f"ds_read2_b32 v[{VR+j}:{VR+j+1}], v7 offset0:{32*j} offset1:{32*j+32}")
for j in range(0, 8, 2):
    A(f"ds_read2_b32 v[{QR+j}:{QR+j+1}], v8 offset0:{32*j} offset1:{32*j+32}")
A(f"""s_mul_i32 s{T0}, s2, 1366
s_lshr_b32 s{T0}, s{T0}, 16
s_mul_i32 s{T1}, s{T0}, 48
s_sub_u32 s{T1}, s2, s{T1}
s_mul_i32 s{sM}, s{T0}, 12288
s_lshl_b32 s{T2}, s{T1}, 8
s_add_u32 s{sM}, s{sM}, s{T2}
s_add_u32 s{sM}, s{sM}, {MODF}
s_cmp_ge_u32 s2, 192
s_cselect_b32 s{sM}, {OOB}, s{sM}
s_mul_i32 s{T2}, s{T0}, {128*6144}
s_lshl_b32 s{T3}, s{T1}, 7
s_add_u32 s{T2}, s{T2}, s{T3}
s_cmp_ge_u32 s2, 192
s_cselect_b32 s{T2}, {OOB}, s{T2}
v_and_b32 v22, 7, v0
v_lshrrev_b32 v23, 3, v0
v_mul_u32_u24 v24, {4*6144}, v23
v_lshl_add_u32 v24, v22, 4, v24
v_add_u32 v24, s{T2}, v24
v_lshlrev_b32 v23, 3, v23
s_lshl_b32 s{T0}, s{T0}, 8
v_add_u32 v23, s{T0}, v23""")
vm.op(f"buffer_load_dwordx2 v[{CC}:{CC+1}], v23, s[{SC}:{SC+3}], 0 offen", "c")
for i in range(4):
    A(f"s_mov_b32 s{T0}, {6144*i}")
    vm.op(f"buffer_load_dwordx4 v[{WM+4*i}:{WM+4*i+3}], v24, s[{SWM}:{SWM+3}], s{T0} offen", "wm")
A(f"""v_lshlrev_b32 v22, 4, v2
s_lshl_b32 s{T0}, s2, 13
s_lshl_b32 s{T1}, s{sWAVE}, 11
s_add_u32 s{T0}, s{T0}, s{T1}
v_add_u32 v22, s{T0}, v22""")
vm.op(f"buffer_load_dwordx4 v[{SR}:{SR+3}], v22, s[{SQ}:{SQ+3}], 0 offen", "sr")
vm.op(f"buffer_load_dwordx4 v[{SR+4}:{SR+7}], v22, s[{SQ}:{SQ+3}], 0 offen offset:1024", "sr")
WF, KFF, O = 100, 108, 172
KV = [180 + 2 * r for r in range(8)]
A(f"""v_lshlrev_b32 v{WF+0}, 16, v{W+0}
v_lshlrev_b32 v{WF+1}, 16, v{W+2}
v_and_b32 v{WF+2}, 0xffff0000, v{W+0}
v_and_b32 v{WF+3}, 0xffff0000, v{W+2}
v_lshlrev_b32 v{WF+4}, 16, v{W+1}
v_lshlrev_b32 v{WF+5}, 16, v{W+3}
v_and_b32 v{WF+6}, 0xffff0000, v{W+1}
v_and_b32 v{WF+7}, 0xffff0000, v{W+3}
s_waitcnt lgkmcnt(8)""")
for j in range(11):
    A(f"v_lshlrev_b32 v{KFF+2*j}, 16, v{KR+j}\nv_and_b32 v{KFF+2*j+1}, 0xffff0000, v{KR+j}")
A(f"""s_waitcnt lgkmcnt(0)
ds_write_b128 v16, v[{QR}:{QR+3}]
ds_write_b128 v17, v[{QR+4}:{QR+7}]""")
for r in range(8):
    A(f"v_pk_mul_f32 v[{KV[r]}:{KV[r]+1}], v[{KFF+2*r}:{KFF+2*r+1}], v[{WF+6}:{WF+7}]")
for t in range(1, 4):
    for r in range(8):
        A(f"v_pk_fma_f32 v[{KV[r]}:{KV[r]+1}], v[{KFF+2*(r+t)}:{KFF+2*(r+t)+1}], v[{WF+2*(3-t)}:{WF+2*(3-t)+1}], v[{KV[r]}:{KV[r]+1}]")
for r in range(8):
    A(f"v_lshlrev_b32 v{KFF+2*r}, 16, v{VR+r}\nv_and_b32 v{KFF+2*r+1}, 0xffff0000, v{VR+r}")
for r in range(8):
    A(f"v_pk_mul_f32 v[{KV[r]}:{KV[r]+1}], v[{KV[r]}:{KV[r]+1}], v[{KFF+2*r}:{KFF+2*r+1}]")
for e in range(2):
    for j in range(4):
        A(f"v_cvt_pk_bf16_f32 v{O+4*e+j}, v{KV[7-2*j]+e}, v{KV[6-2*j]+e}")
    A(f"ds_write_b128 v15, v[{O+4*e}:{O+4*e+3}] offset:{128*e}")
A(f"""s_mov_b32 s{T1}, 131072
s_waitcnt lgkmcnt(0)
s_barrier
ds_read_b128 v[144:147], v18
ds_read_b128 v[148:151], v18 offset:4096
ds_read_b128 v[152:155], v20
ds_read_b128 v[156:159], v20 offset:4096
s_waitcnt lgkmcnt(3)""")
vm.op(f"buffer_store_dwordx4 v[144:147], v19, {W4}, 0 offen {'' if P('PLAIN_UQ',0) else 'sc1'}", "st1")
A("s_waitcnt lgkmcnt(2)")
vm.op(f"buffer_store_dwordx4 v[148:151], v19, {W4}, s{T1} offen {'' if P('PLAIN_UQ',0) else 'sc1'}", "st1")
A("s_waitcnt lgkmcnt(1)")
vm.op(f"buffer_store_dwordx4 v[152:155], v21, {W4}, 0 offen {'' if P('PLAIN_UQ',0) else 'sc1'}", "st1")
A("s_waitcnt lgkmcnt(0)")
vm.op(f"buffer_store_dwordx4 v[156:159], v21, {W4}, s{T1} offen {'' if P('PLAIN_UQ',0) else 'sc1'}", "st1")
stamp("st1 issued")
vm.wait("kf", "D")
A(f"""v_lshlrev_b32 v9, 4, v0
v_mov_b32 v120, 0
v_mov_b32 v121, 0
v_mov_b32 v122, 0
v_mov_b32 v123, 0
ds_write_b128 v9, v[{KF0}:{KF0+3}] offset:{L_KF + 32}
ds_write_b128 v9, v[{KF0+4}:{KF0+7}] offset:{L_KF + KFSZ + 32}
v_mul_u32_u24 v22, {OSZ}, v4
v_lshl_add_u32 v22, v3, 4, v22
v_lshrrev_b32 v10, 1, v2
v_and_b32 v10, 3, v10
v_mul_u32_u24 v10, 4128, v10
v_and_b32 v11, 1, v2
v_lshl_add_u32 v10, v11, 4, v10
ds_write_b128 v22, v[120:123] offset:{L_U + 2048}
ds_write_b128 v10, v[120:123] offset:{L_KF}""")
vm.wait("c")
A(f"""v_lshlrev_b32 v{CC+2}, 16, v{CC+1}
v_and_b32 v{CC+3}, 0xffff0000, v{CC+1}
v_and_b32 v{CC+1}, 0xffff0000, v{CC}
v_lshlrev_b32 v{CC}, 16, v{CC}""")
for i in range(4): A(f"v_mul_f32 v{100+i}, 0xbfb8aa3b, v{CC+i}")
for i in range(4): A(f"v_exp_f32 v{100+i}, v{100+i}")
for i in range(4): A(f"v_add_f32 v{100+i}, 1.0, v{100+i}")
for i in range(4): A(f"v_rcp_f32 v{100+i}, v{100+i}")
for i in range(4): A(f"v_mul_f32 v{CC+i}, v{CC+i}, v{100+i}")
for i in range(0, 4, 2):
    A(f"""v_cvt_pk_bf16_f32 v100, v{CC+i}, v{CC+i+1}
    v_lshlrev_b32 v{CC+i}, 16, v100
    v_and_b32 v{CC+i+1}, 0xffff0000, v100""")
MA = 104
vm.wait("wm")
for i in range(4):
    for j in range(4):
        t = 112 + 2 * (j % 2)
        A(f"v_lshlrev_b32 v{t}, 16, v{WM+4*i+j}\nv_and_b32 v{t+1}, 0xffff0000, v{WM+4*i+j}")
        if i == 0:
            A(f"v_pk_mul_f32 v[{MA+2*j}:{MA+2*j+1}], v[{t}:{t+1}], v[{CC}:{CC+1}] op_sel_hi:[1,0]")
        else:
            sel = "op_sel_hi:[1,0,1]" if i % 2 == 0 else "op_sel:[0,1,0] op_sel_hi:[1,1,1]"
            A(f"v_pk_fma_f32 v[{MA+2*j}:{MA+2*j+1}], v[{t}:{t+1}], v[{CC+(i//2)*2}:{CC+(i//2)*2+1}], v[{MA+2*j}:{MA+2*j+1}] {sel}")
A(f"""v_lshrrev_b32 v11, 4, v0
v_lshlrev_b32 v11, 8, v11
v_and_b32 v10, 7, v0
v_lshl_add_u32 v11, v10, 5, v11""")
for j in range(8):
    A(f"v_add_f32_dpp v{MA+j}, v{MA+j}, v{MA+j} row_shr:8 row_mask:0xf bank_mask:0xf bound_ctrl:0")
A(f"""v_cmp_le_u32 vcc, 8, v3
s_and_saveexec_b64 s[{SX}:{SX+1}], vcc
ds_write_b128 v11, v[{MA}:{MA+3}] offset:{L_MODP}
ds_write_b128 v11, v[{MA+4}:{MA+7}] offset:{L_MODP+16}
s_mov_b64 exec, s[{SX}:{SX+1}]""")
vm.wait("st1", extra="lgkmcnt(0)")
A(f"v_readfirstlane_b32 s{sEP}, v142\ns_barrier\ns_add_u32 s{sEP}, s{sEP}, 0x9e3779b9")
set_flag(0, F1A, f"s_lshl_b32 s{T0}, s{sXG}, 5\ns_add_u32 s{T0}, s{T0}, s{sJ}", 10, 11)
stamp("flag1a")
PKR = 144
for u in range(4):
    A(f"ds_read_b64_tr_b16 v[{PKR+4*u}:{PKR+4*u+1}], v{PA+u}\nds_read_b64_tr_b16 v[{PKR+4*u+2}:{PKR+4*u+3}], v{PA+4+u}")
KFM = 56
A(f"""ds_read_b32 v{KFM}, v9 offset:{L_KF + 28}
ds_read_b32 v{KFM+1}, v9 offset:{L_KF + KFSZ + 28}
s_mov_b32 s47, 0""")
for u in range(4):
    A(f"s_waitcnt lgkmcnt({8-2*u})")
    vm.op(f"buffer_store_dwordx4 v[{PKR+4*u}:{PKR+4*u+3}], v{PD}, {W4}, s47 offen sc1", "st1b")
    if u < 3:
        A(f"s_add_u32 s47, s47, s45")
        if u == 1: A(f"s_add_u32 s47, s47, s46")
A(f"""s_cmp_lg_u32 s{sWAVE}, 1
s_cbranch_scc1 modf_done
v_lshlrev_b32 v11, 2, v2""")
for p in range(16):
    A(f"ds_read_b32 v{160+p}, v11 offset:{L_MODP+256*p}")
A("s_waitcnt lgkmcnt(0)")
for st in (8, 4, 2, 1):
    for p in range(st):
        A(f"v_add_f32 v{160+p}, v{160+p}, v{160+p+st}")
A(f"""v_add_u32 v10, s{sM}, v11
buffer_store_dword v160, v10, {W4}, 0 offen sc1
modf_done:""")
SA = 100
for i in range(4): A(f"v_mov_b32 v{SA+i}, 0")
for j in range(4):
    for rr in range(2):
        A(f"""v_dot2_f32_bf16 v{SA+2*rr}, v{SR+4*rr+j}, s{sONES}, v{SA+2*rr}
        v_dot2_f32_bf16 v{SA+2*rr+1}, v{SR+4*rr+j}, v{SR+4*rr+j}, v{SA+2*rr+1}""")
A("s_waitcnt lgkmcnt(0)")
for c in range(2):
    o = 124 + 4 * c
    A(f"v_alignbit_b32 v{o}, v{KF0+4*c}, v{KFM+c}, 16")
    for j in range(1, 4):
        A(f"v_alignbit_b32 v{o+j}, v{KF0+4*c+j}, v{KF0+4*c+j-1}, 16")
    A(f"ds_write_b128 v9, v[{o}:{o+3}] offset:{L_KF + c*KFSZ + 4128 + 32}")
for ctrl in ("row_shr:1", "row_shr:2", "row_shr:4", "row_shr:8"):
    for j in range(4):
        A(f"v_add_f32_dpp v{SA+j}, v{SA+j}, v{SA+j} {ctrl} row_mask:0xf bank_mask:0xf bound_ctrl:0")
for j in range(4):
    A(f"v_add_f32_dpp v{SA+j}, v{SA+j}, v{SA+j} row_bcast:15 row_mask:0xa bank_mask:0xf")
for j in range(4):
    A(f"v_add_f32_dpp v{SA+j}, v{SA+j}, v{SA+j} row_bcast:31 row_mask:0xc bank_mask:0xf")
a_ = capture(lambda: ln_final(SA, SA + 1, 104, 105)); b_ = capture(lambda: ln_final(SA + 2, SA + 3, 106, 107))
for x, y in zip(a_, b_):
    A(x)
    if y != "s_nop 0": A(y)
A(f"""s_lshl_b32 s{T0}, s2, 6
s_lshl_b32 s{T1}, s{sWAVE}, 4
s_add_u32 s{T0}, s{T0}, s{T1}
s_add_u32 s{T0}, s{T0}, {ST1}
v_mov_b32 v9, s{T0}
s_mov_b32 s{SX}, 0
s_mov_b32 s{SX+1}, 0x80000000
s_mov_b64 exec, s[{SX}:{SX+1}]""")
vm.op(f"buffer_store_dwordx4 v[104:107], v9, {W4}, 0 offen sc1", "st1b")
A("s_mov_b64 exec, -1")
stamp("p1b stores issued")
sCH, sHF = 44, 45
A.srd(SM1, 80, F * 2); A.srd(SM2, 84, 1024)
A(f"""s_lshr_b32 s{sCH}, s{sWAVE}, 1
s_and_b32 s{sHF}, s{sWAVE}, 1
v_min_u32 v12, 31, v2
v_lshlrev_b32 v12, 6, v12
s_lshl_b32 s{T0}, s{sXG}, 11
s_add_u32 s{T0}, s{T0}, {F1A}
v_add_u32 v12, s{T0}, v12
v_lshlrev_b32 v13, 6, v2
v_lshlrev_b32 v5, 4, v0
s_lshl_b32 s{T0}, s{sD0}, 12
v_add_u32 v5, s{T0}, v5
v_add_u32 v6, 4096, v5
v_and_b32 v7, 1, v0
v_mul_u32_u24 v7, {OSZ}, v7
v_lshrrev_b32 v8, 1, v0
v_lshl_add_u32 v7, v8, 4, v7
v_lshlrev_b32 v15, 1, v4
v_sub_u32 v15, v15, v3
v_lshlrev_b32 v15, 4, v15
s_mul_i32 s{T0}, s{sCH}, {USZ}
s_lshl_b32 s{T1}, s{sHF}, 7
s_add_u32 s{T0}, s{T0}, s{T1}
s_add_u32 s{T0}, s{T0}, {L_U + 240}
v_add_u32 v15, s{T0}, v15
v_and_b32 v8, 1, v3
v_mul_u32_u24 v8, 4130, v8
v_lshlrev_b32 v16, 6, v4
v_lshl_add_u32 v16, v3, 1, v16
v_sub_u32 v16, v16, v8
s_mul_i32 s{T0}, s{sCH}, {KFSZ}
s_lshl_b32 s{T1}, s{sHF}, 8
s_add_u32 s{T0}, s{T0}, s{T1}
s_add_u32 s{T0}, s{T0}, {L_KF + 4132}
v_add_u32 v16, s{T0}, v16
v_add_u32 v17, 1024, v16
v_add_u32 v18, 2048, v16
v_add_u32 v19, 3072, v16
v_lshlrev_b32 v20, 16, v{DD}
v_and_b32 v21, 0xffff0000, v{DD}
v_lshlrev_b32 v8, 6, v3
v_lshl_add_u32 v8, v4, 4, v8          ; 64a' + 16g
s_lshl_b32 s{T0}, s{sD0}, 12
s_lshl_b32 s{T1}, s{sWAVE}, 11
s_add_u32 s{T0}, s{T0}, s{T1}
v_add_u32 v14, s{T0}, v8
v_lshlrev_b32 v63, 1, v8
s_lshl_b32 s{T0}, s{sWAVE}, 12
s_add_u32 s{T0}, s{T0}, {ST1}
v_add_u32 v63, s{T0}, v63
v_lshrrev_b32 v9, 2, v3
v_cmp_eq_u32 vcc, 3, v9
v_lshlrev_b32 v23, 11, v9
v_and_b32 v10, 3, v3
v_cndmask_b32 v11, 0, 1, vcc
v_lshl_add_u32 v23, v11, 11, v23
v_mul_u32_u24 v10, 12288, v10
s_lshl_b32 s{T0}, s{sD0}, 2
s_add_u32 s{T0}, s{T0}, {MODF}
v_add3_u32 v23, v23, v10, s{T0}
v_and_b32 v9, 1, v9
v_cvt_f32_u32 v62, v9
v_lshlrev_b32 v10, 4, v2
s_mul_i32 s{T0}, s{sFG}, 11
s_add_u32 s46, s{T0}, s{sWAVE}         ; F0
s_lshl_b32 s{T0}, s46, 14
s_add_u32 s{T0}, s{T0}, {W1P}
v_add_u32 v248, s{T0}, v10
v_add_u32 v249, 0x10000, v248
v_add_u32 v250, 0x20000, v248
s_add_u32 s{T0}, s46, 8
s_cmp_ge_u32 s{T0}, 86
s_cselect_b32 s47, {OOB}, 0
s_cmp_eq_u32 s{sWAVE}, 3
s_cselect_b32 s47, {OOB}, s47
v_add_u32 v250, s47, v250
""")
vm.wait("st1b", extra="lgkmcnt(0)")
A("s_barrier")
set_flag(1, F1B, f"s_mov_b32 s{T0}, s2", 10, 11, pre="s_waitcnt vmcnt(0)")
stamp("flag1b")
ACC = 24
AB = [64, 96]; BB_ = [144, 176]
UL, QE, SE, ME = 208, 216, 224, 240
def aload(o, st):
    for q in range(8):
        r = AB[st] + 4 * q; base = 128 * (q & 1) + 4 * o
        A(f"ds_read2_b32 v[{r}:{r+1}], v{16+(q>>1)} offset0:{base} offset1:{base+1}")
        A(f"ds_read2_b32 v[{r+2}:{r+3}], v{16+(q>>1)} offset0:{base+2} offset1:{base+3}")
def bload(o, st):
    for dl in range(8):
        r = BB_[st] + 4 * dl
        A(f"ds_read_b128 v[{r}:{r+3}], v15 offset:{(o&1)*OSZ + 16*(112-16*dl+(o>>1))}")
aload(0, 0)
for i in range(32): A(f"v_mov_b32 v{ACC+i}, 0")
sal = []
sal += [f"s_lshr_b32 s{T4}, s{sJ}, 3", f"s_lshl_b32 s{sROT1}, s{T4}, 1", f"s_add_u32 s{sROT1}, s{sROT1}, s{sFG}",
        f"s_lshl_b32 s{sROT1}, s{sROT1}, 1", f"s_and_b32 s{sROT1}, s{sROT1}, 15"]
for t in range(16):
    sal += [f"s_add_u32 s{ROT1[t]}, s{sROT1}, {t}", f"s_and_b32 s{ROT1[t]}, s{ROT1[t]}, 15", f"s_lshl_b32 s{ROT1[t]}, s{ROT1[t]}, 10"]
sal += [f"s_mul_i32 s{T4}, s{T4}, 11", f"s_lshr_b32 s{T4}, s{T4}, 1", f"s_mul_i32 s{T5}, s{sFG}, 3", f"s_add_u32 s{T4}, s{T4}, s{T5}",
        f"s_cmp_ge_u32 s{sWAVE}, 2", f"s_cselect_b32 s{T5}, 21, 99",
        f"s_cmp_ge_u32 s{T4}, 22", f"s_cselect_b32 s15, 22, 0", f"s_sub_u32 s{T4}, s{T4}, s15"]
for i in range(22):
    r = ROT2[i]
    sal += [(f"s_lshl_b32 s{r}, s{T4}, 12", f"s_cmp_eq_u32 s{T4}, s{T5}", f"s_cselect_b32 s{r}, {OOB}, s{r}"),
            (f"s_add_u32 s{T4}, s{T4}, 1", f"s_cmp_eq_u32 s{T4}, 22", f"s_cselect_b32 s{T4}, 0, s{T4}")]
for x in sal: A(x if isinstance(x, str) else "\n".join(x))
sal = []
poll(12, 1, 0, 22, "p1a")
A("s_barrier")
stamp("poll1a done")
vm.op(f"buffer_load_dwordx4 v[{UL}:{UL+3}], v5, {W4}, 0 offen sc1", "u")
vm.op(f"buffer_load_dwordx4 v[{UL+4}:{UL+7}], v6, {W4}, 0 offen sc1", "u")
A(f"s_mov_b32 s{T2}, {QP}")
for jn in range(2):
    vm.op(f"buffer_load_dwordx4 v[{QE+4*jn}:{QE+4*jn+3}], v14, {W4}, s{T2} offen offset:{1024*jn} sc1", "qe")
for k in range(4):
    A(f"s_mov_b32 s{T1}, {F1B + 4096*k}")
    vm.op(f"buffer_load_dword v{56+k}, v13, {W4}, s{T1} offen sc1", "f1b")
vm.wait("u")
A(f"""ds_write_b128 v7, v[{UL}:{UL+3}] offset:{L_U}
ds_write_b128 v7, v[{UL+4}:{UL+7}] offset:{L_U+USZ}
s_waitcnt lgkmcnt(0)
s_barrier""")
bload(0, 0)
stamp("u in lds")
w1q = [(t, j) for t in range(16) for j in range(3)]
def w1_issue(n):
    for _ in range(n):
        if not w1q: return
        t, j = w1q.pop(0)
        vm.op(f"buffer_load_dwordx4 a[{(t*3+j)*4}:{(t*3+j)*4+3}], v{248+j}, {W4}, s{ROT1[t]} offen sc1", f"w1_{t}")
def me_final():
    vm.wait("me")
    for sh in (1, 2):
        A("s_nop 1")
        for k in range(2):
            A(f"v_add_f32_dpp v{UL+k}, v{UL+k}, v{UL+k} row_shr:{sh} row_mask:0xf bank_mask:0xf bound_ctrl:0")
    A(f"""v_cvt_pk_bf16_f32 v{UL+2}, v{UL}, v{UL+1}
    v_lshlrev_b32 v{UL}, 16, v{UL+2}
    v_and_b32 v{UL+1}, 0xffff0000, v{UL+2}
    v_add_f32 v{UL}, v{UL}, v62
    v_add_f32 v{UL+1}, v{UL+1}, v62
    v_cvt_pk_bf16_f32 v{UL+2}, v{UL}, v{UL+1}
    v_lshlrev_b32 v{UL}, 16, v{UL+2}
    v_and_b32 v{UL+1}, 0xffff0000, v{UL+2}
    s_nop 1""")
    for i in range(4):
        for k in range(2):
            A(f"v_mov_b32_dpp v{ME+2*i+k}, v{UL+k} row_newbcast:{4*i+3} row_mask:0xf bank_mask:0xf")
for o in range(4):
    st = o & 1
    A("s_waitcnt lgkmcnt(0)")
    lds = []
    if o + 1 < 4:
        lds = capture(lambda: (bload(o + 1, st ^ 1), aload(o + 1, st ^ 1)))
    side = []; cnt = 0
    if o == 3: side = capture(me_final)
    for dl in range(8):
        for q in range(8 - dl):
            n = q + dl
            A(f"v_mfma_f32_16x16x32_bf16 v[{ACC+4*n}:{ACC+4*n+3}], v[{AB[st]+4*q}:{AB[st]+4*q+3}], v[{BB_[st]+4*dl}:{BB_[st]+4*dl+3}], v[{ACC+4*n}:{ACC+4*n+3}]")
            cnt += 1
            if lds: A(lds.pop(0))
            if o > P("F1B_O", 0) and o >= P("W1_O0", 1) and cnt % P("W1_EVERY", 6) == 0: w1_issue(1)
            for _ in range(2 if o == 0 else 1):
                if sal:
                    x = sal.pop(0)
                    A(x if isinstance(x, str) else "\n".join(x))
            if side: A(side.pop(0))
    for x in side: A(x)
    if o == P("F1B_O", 0):
        vm.wait("f1b")
        A(f"""v_xor_b32 v56, s{sEP}, v56
        v_xor_b32 v57, s{sEP}, v57
        v_xor_b32 v58, s{sEP}, v58
        v_xor_b32 v59, s{sEP}, v59
        v_or3_b32 v56, v56, v57, v58
        v_or_b32 v56, v56, v59
        v_cmp_ne_u32 vcc, 0, v56
        s_nop 1
        s_cbranch_vccz p1b_done
        v_add_u32 v22, {F1B}, v13""")
        poll(22, 4, 4096, 56, "p1b", only_wave0=False)
        vm.op(f"buffer_load_dwordx2 v[{UL}:{UL+1}], v23, {W4}, 0 offen sc1", "me")
        for jn in range(2):
            for hh in range(2):
                vm.op(f"buffer_load_dwordx4 v[{SE+8*jn+4*hh}:{SE+8*jn+4*hh+3}], v63, {W4}, 0 offen offset:{2048*jn+16*hh} sc1", "se")
        if P("WTOUCH", 0):
            A(f"""s_mul_i32 s{T0}, s{sJ}, 44032
            v_lshlrev_b32 v22, 7, v0
            v_add_u32 v22, s{T0}, v22
            v_add_u32 v60, 32768, v22
            v_cmp_gt_u32 vcc, 88, v0
            v_mov_b32 v61, {OOB}
            s_mov_b32 s{T0}, {W1P}
            s_mov_b32 s{T1}, {W2P}
            v_cndmask_b32 v60, v61, v60, vcc""")
            for (ad, so) in ((22, T0), (60, T0), (22, T1), (60, T1)):
                vm.op(f"buffer_load_dword v61, v{ad}, {W4}, s{so} offen sc1", "touch")
        A(f"""v_lshlrev_b32 v128, 3, v0
        v_add_u32 v128, {MODF + 3*2048}, v128
        v_lshlrev_b32 v129, 3, v4
        s_lshl_b32 s{T0}, s46, 5
        v_add_u32 v129, s{T0}, v129
        v_lshlrev_b32 v130, 3, v3
        s_lshl_b32 s{T0}, s{sR}, 9
        s_lshl_b32 s{T1}, s{sWAVE}, 7
        s_add_u32 s{T0}, s{T0}, s{T1}
        s_add_u32 s{T0}, s{T0}, {ST1 + 4}
        v_add_u32 v130, s{T0}, v130""")
        for ks in range(4):
            A(f"s_mov_b32 s{T1}, {12288*ks}\ns_mov_b32 s{T0}, {12288*ks+4096}")
            for sec in range(3):
                so, off = (T1, 2048 * sec) if sec < 2 else (T0, 0)
                vm.op(f"buffer_load_dwordx2 a[{192+8*sec+2*ks}:{192+8*sec+2*ks+1}], v128, {W4}, s{so} offen offset:{off} sc1", "tp")
        for j in range(3):
            vm.op(f"buffer_load_dwordx2 a[{216+2*j}:{217+2*j}], v129, s[{SM1}:{SM1+3}], 0 offen offset:{128*j}", "tp")
        vm.op(f"buffer_load_dword v140, v130, {W4}, 0 offen sc1", "tp")
        stamp("flag1b all seen")
assert not sal
stamp("conv mfma done")
A(f"""v_lshlrev_b32 v9, 4, v2
s_lshl_b32 s{T0}, s{sWAVE}, 13
s_add_u32 s{T0}, s{T0}, {L_RED}
v_add_u32 v10, s{T0}, v9
s_lshl_b32 s{T0}, s{sWAVE}, 11
s_add_u32 s{T0}, s{T0}, {L_RED}
v_add_u32 v11, s{T0}, v9
v_lshrrev_b32 v5, 1, v4
v_sub_u32 v5, 1, v5
v_mul_u32_u24 v5, {OSZ}, v5
v_lshlrev_b32 v6, 4, v3
v_sub_u32 v5, v5, v6
v_and_b32 v6, 1, v4
v_lshlrev_b32 v6, 3, v6
v_sub_u32 v5, v5, v6
s_lshl_b32 s{T0}, s{sWAVE}, 9
s_sub_u32 s{T0}, {L_U + 16*(127-16) + 8}, s{T0}
v_add_u32 v5, s{T0}, v5""")
for n in range(8):
    A(f"ds_write_b128 v10, v[{ACC+4*n}:{ACC+4*n+3}] offset:{1024*n}")
UE = 128
for jn in range(2):
    for c in range(2):
        A(f"ds_read_b64 v[{UE+4*jn+2*c}:{UE+4*jn+2*c+1}], v5 offset:{256*(1-jn) + c*USZ}")
A("s_waitcnt lgkmcnt(0)\ns_barrier")
RR = 64
for jn in range(2):
    for src in range(4):
        r = RR + 16 * jn + 4 * src
        A(f"ds_read_b128 v[{r}:{r+3}], v11 offset:{8192*src + 1024*jn}")
vm.wait("qe", "se", "me")
XO, XS = 112, 120
SAp, C1p, GAp, C2p = ME, ME + 2, ME + 4, ME + 6
A(f"s_mov_b32 s{T2}, {X1S}\ns_mov_b32 s{T3}, {X1P}")
for jn in range(2):
    A(f"s_waitcnt lgkmcnt({4*(1-jn)})")
    seqs = []
    for r in range(4):
        Y, QF, QC, H, X = [24 + 10 * r + 2 * k for k in range(5)]
        b = RR + 16 * jn
        dw = 1 if r < 2 else 0
        sq = []
        for c in range(2):
            src = UE + 4 * jn + 2 * c + dw
            sq.append(f"v_and_b32 v{X+c}, 0xffff0000, v{src}" if r % 2 == 0 else f"v_lshlrev_b32 v{X+c}, 16, v{src}")
        st = SE + 8 * jn + 2 * r
        sq += f"""v_add_f32 v{Y}, v{b+r}, v{b+4+r}
        v_add_f32 v{Y+1}, v{b+8+r}, v{b+12+r}
        v_lshlrev_b32 v{QF}, 16, v{QE+4*jn+r}
        v_and_b32 v{QF+1}, 0xffff0000, v{QE+4*jn+r}
        v_pk_fma_f32 v[{Y}:{Y+1}], v[{X}:{X+1}], v[20:21], v[{Y}:{Y+1}]
        v_pk_add_f32 v[{QC}:{QC+1}], v[{QF}:{QF+1}], v[{st}:{st+1}] op_sel:[0,1] op_sel_hi:[1,1] neg_lo:[0,1] neg_hi:[0,1]
        v_pk_mul_f32 v[{H}:{H+1}], v[{QC}:{QC+1}], v[{st}:{st+1}] op_sel_hi:[1,0]
        v_pk_fma_f32 v[{H}:{H+1}], v[{H}:{H+1}], v[{C1p}:{C1p+1}], v[{SAp}:{SAp+1}]
        v_pk_mul_f32 v[{H}:{H+1}], v[{H}:{H+1}], v[{Y}:{Y+1}]
        v_pk_fma_f32 v[{QC}:{QC+1}], v[{H}:{H+1}], v[{GAp}:{GAp+1}], v[{QC}:{QC+1}]
        v_pk_fma_f32 v[{QF}:{QF+1}], v[{H}:{H+1}], v[{GAp}:{GAp+1}], v[{QF}:{QF+1}]
        v_pk_mul_f32 v[{QC}:{QC+1}], v[{QC}:{QC+1}], v[{C2p}:{C2p+1}]
        v_cvt_pk_bf16_f32 v{XO+4*jn+r}, v{QF}, v{QF+1}
        v_cvt_pk_bf16_f32 v{XS+4*jn+r}, v{QC}, v{QC+1}""".split("\n")
        seqs.append(sq)
    for gi, grp in enumerate(zip(*seqs)):
        for x in grp: A(x)
        if gi < P("W1_EPI", 8): w1_issue(1)
    vm.op(f"buffer_store_dwordx4 v[{XS+4*jn}:{XS+4*jn+3}], v14, {W4}, s{T2} offen offset:{1024*jn} sc1", "st2")
    vm.op(f"buffer_store_dwordx4 v[{XO+4*jn}:{XO+4*jn+3}], v14, {W4}, s{T3} offen offset:{1024*jn} sc1", "st2")
stamp("st2 issued")
w1_issue(99)
TP, B1R, M1R = 144, 208, 140
vm.wait("tp")
for i in range(24): A(f"v_accvgpr_read_b32 v{TP+i}, a{192+i}")
for i in range(6): A(f"v_accvgpr_read_b32 v{B1R+i}, a{216+i}")
for sec in range(3):
    b = TP + 8 * sec
    A(f"""v_pk_add_f32 v[{b}:{b+1}], v[{b}:{b+1}], v[{b+2}:{b+3}]
    v_pk_add_f32 v[{b+4}:{b+5}], v[{b+4}:{b+5}], v[{b+6}:{b+7}]""")
for sec in range(3):
    b = TP + 8 * sec
    A(f"""v_pk_add_f32 v[{b}:{b+1}], v[{b}:{b+1}], v[{b+4}:{b+5}]
    v_cvt_pk_bf16_f32 v{b+2}, v{b}, v{b+1}""")
A(f"""v_lshlrev_b32 v{TP+8}, 16, v{TP+10}
v_and_b32 v{TP+9}, 0xffff0000, v{TP+10}
v_lshlrev_b32 v{TP+16}, 16, v{TP+18}
v_and_b32 v{TP+17}, 0xffff0000, v{TP+18}
v_add_f32 v{TP+8}, 1.0, v{TP+8}
v_add_f32 v{TP+9}, 1.0, v{TP+9}
v_cvt_pk_bf16_f32 v{TP+10}, v{TP+8}, v{TP+9}
v_lshlrev_b32 v9, 2, v0
v_add_u32 v9, {L_TB}, v9
v_lshlrev_b32 v10, 3, v0
v_add_u32 v10, {L_TGB}, v10
ds_write_b32 v9, v{TP+2}
ds_write_b32 v9, v{TP+2} offset:1024
ds_write_b32 v9, v{TP+10} offset:{L_TC2-L_TB}
ds_write_b32 v9, v{TP+10} offset:{L_TC2-L_TB+1024}
ds_write_b64 v10, v[{TP+16}:{TP+17}]
v_and_b32 v9, 1, v3
v_mul_u32_u24 v9, {L_TC2-L_TB}, v9
v_lshl_add_u32 v9, v4, 4, v9
s_lshl_b32 s{T0}, s{sROT1}, 6
s_add_u32 s{T0}, s{T0}, {L_TB}
v_add_u32 v9, s{T0}, v9""")
A(f"""v_lshlrev_b32 v5, 13, v4
s_lshl_b32 s{T0}, s{sWAVE}, 15
s_lshl_b32 s{T1}, s{sR}, 8
s_add_u32 s{T0}, s{T0}, s{T1}
v_add_u32 v5, s{T0}, v5
s_and_b32 s{T1}, s{sWAVE}, 1
s_lshl_b32 s{T1}, s{T1}, 2
v_xor_b32 v7, s{T1}, v3
v_lshl_add_u32 v5, v7, 4, v5
v_add_u32 v6, {X1P}, v5
v_add_u32 v5, {X1S}, v5
v_and_b32 v7, 1, v4
v_lshlrev_b32 v8, 10, v4
v_lshl_add_u32 v8, v3, 2, v8
v_add_u32 v8, {L_X}, v8""")
for sg in range(4):
    A(f"v_xor_b32 v10, {sg}, v7\nv_lshl_add_u32 v{16+sg}, v10, 6, v8")
A(f"v_xor_b32 v10, s{sWAVE}, v7\nv_lshl_add_u32 v141, v10, 6, v8\nv_subrev_u32 v141, {L_X-L_XP}, v141")
A(f"""v_lshlrev_b32 v10, 4, v2
s_lshl_b32 s{T0}, s{sWAVE}, 10
v_add_u32 v11, s{T0}, v10
s_mul_i32 s{T0}, s{sFG}, {2*86*1024}
s_add_u32 s{T0}, s{T0}, {W2P}
v_add_u32 v20, s{T0}, v11
v_add_u32 v21, {86*1024}, v20
s_mul_i32 s{T0}, s{sR}, {2*86*1024}
s_add_u32 s{T0}, s{T0}, {HID}
v_add_u32 v22, s{T0}, v11
v_add_u32 v23, {86*1024}, v22
v_add_u32 v12, {F2}, v13
s_mul_i32 s{T0}, s{sWAVE}, 384
s_add_u32 s{T0}, s{T0}, {L_BB}
v_lshl_add_u32 v14, v4, 4, s{T0}
""")
vm.wait("st2", extra="lgkmcnt(0)")
A("s_barrier")
set_flag(0, F2, f"s_mov_b32 s{T0}, s2", 10, 11)
stamp("flag2")
MBF = 64
for t in range(16):
    A(f"ds_read_b128 v[{MBF+4*t}:{MBF+4*t+3}], v9 offset:{64*t}")
MD = 24
for i in range(12): A(f"v_mov_b32 v{MD+i}, 0")
A("s_waitcnt lgkmcnt(0)")
for t in range(16):
    vm.wait(f"w1_{t}")
    for j in range(3):
        A(f"v_mfma_f32_16x16x32_bf16 v[{MD+4*j}:{MD+4*j+3}], a[{(t*3+j)*4}:{(t*3+j)*4+3}], v[{MBF+4*t}:{MBF+4*t+3}], v[{MD+4*j}:{MD+4*j+3}]")
stamp("MB pass done")
def w2reg(i, cb):
    k = 2 * i + cb
    return f"a[{192+4*k}:{195+4*k}]" if k < 16 else f"v[{252-4*(k-16)}:{255-4*(k-16)}]"
w2q = [(i, cb) for i in range(22) for cb in range(2)]
def w2_issue(n):
    for _ in range(n):
        if not w2q: return
        i, cb = w2q.pop(0)
        vm.op(f"buffer_load_dwordx4 {w2reg(i,cb)}, v{20+cb}, {W4}, s{ROT2[i]} offen sc1", "w2")
A("s_nop 7\ns_nop 1")
Bq = 36
for j in range(3):
    for r in range(4):
        A(f"v_mov_b32_dpp v{Bq+4*j+r}, v{MD+4*j+r} row_newbcast:0 row_mask:0xf bank_mask:0xf")
        A(f"v_mov_b32_dpp v{Bq+12+4*j+r}, v{MD+4*j+r} row_newbcast:1 row_mask:0xf bank_mask:0xf")
for j in range(3):
    A(f"""v_lshlrev_b32 v60, 16, v{B1R+2*j}
    v_and_b32 v61, 0xffff0000, v{B1R+2*j}
    v_lshlrev_b32 v62, 16, v{B1R+2*j+1}
    v_and_b32 v63, 0xffff0000, v{B1R+2*j+1}
    v_pk_add_f32 v[{Bq+4*j}:{Bq+4*j+1}], v[{Bq+4*j}:{Bq+4*j+1}], v[60:61]
    v_pk_add_f32 v[{Bq+4*j+2}:{Bq+4*j+3}], v[{Bq+4*j+2}:{Bq+4*j+3}], v[62:63]""")
A(f"s_mov_b32 s{SX}, 0x00010001\ns_mov_b32 s{SX+1}, 0x00010001\ns_mov_b64 exec, s[{SX}:{SX+1}]")
for i in range(6):
    A(f"ds_write_b128 v14, v[{Bq+4*i}:{Bq+4*i+3}] offset:{64*i}")
A("s_mov_b64 exec, -1")
G1 = 24; SAC = 128
A("s_waitcnt lgkmcnt(0)")
for i in range(48): A(f"v_mov_b32 v{G1+i}, 0")
stamp("pre poll2")
w2e = capture(lambda: w2_issue(P("W2_EARLY", 0)))
A(f"s_cmp_eq_u32 s{sWAVE}, 0\ns_cbranch_scc1 p2w0")
for x in w2e: A(x)
A("s_branch p2join\np2w0:")
poll(12, 4, 4096, 136, "p2")
for x in w2e: A(x)
A("p2join:")
A(f"""s_cmp_lg_u32 s2, 0
s_cbranch_scc1 noep
s_cmp_lg_u32 s{sWAVE}, 0
s_cbranch_scc1 noep
v_mov_b32 v10, {EPOCH}
v_mov_b32 v11, s{sEP}
s_mov_b64 exec, 1
buffer_store_dword v11, v10, {W4}, 0 offen sc1
s_mov_b64 exec, -1
noep:
s_barrier""")
stamp("poll2 done")
A(f"s_lshl_b32 s{T5}, s{sWAVE}, 10\ns_add_u32 s{T5}, s{T5}, {L_X}")
for c in range(16):
    A(f"""s_add_u32 s{T0}, s{T5}, {4096*c}
    s_mov_b32 m0, s{T0}
    s_lshl_b32 s{T1}, s{ROT1[c]}, 7""")
    vm.op(f"buffer_load_dwordx4 v5, {W4}, s{T1} offen sc1 lds", f"x{c//4}")
A(f"s_sub_u32 s{T5}, s{T5}, {L_X - L_XP}")
def xp_issue(c):
    A(f"""s_add_u32 s{T0}, s{T5}, {4096*c}
    s_mov_b32 m0, s{T0}
    s_lshl_b32 s{T1}, s{ROT1[c]}, 7""")
    vm.op(f"buffer_load_dwordx4 v6, {W4}, s{T1} offen sc1 lds", f"p{c//4}")
BF = [72, 88]; PF = [104, 112]; ONE = 120; D1 = 136; D2 = 128
def bl(t, st):
    for sg in range(4):
        r = BF[st] + 4 * sg
        A(f"ds_read2st64_b32 v[{r}:{r+1}], v{16+sg} offset0:{16*t} offset1:{16*t+1}")
        A(f"ds_read2st64_b32 v[{r+2}:{r+3}], v{16+sg} offset0:{16*t+2} offset1:{16*t+3}")
def pl(u, r):
    A(f"ds_read2st64_b32 v[{r}:{r+1}], v141 offset0:{16*u} offset1:{16*u+1}")
    A(f"ds_read2st64_b32 v[{r+2}:{r+3}], v141 offset0:{16*u+2} offset1:{16*u+3}")
for i in range(4): A(f"v_mov_b32 v{ONE+i}, s{sONES}\nv_mov_b32 v{D1+i}, 0\nv_mov_b32 v{D2+i}, 0")
vm.wait("x0"); A("s_barrier")
stamp("x chunk0")
W2_T0, W2_EVERY = P("W2_T0", 1), P("W2_EVERY", 3)
xpq = list(range(16))
SAC = 128
BFP = [72, 80]
PFX = [[88, 92], [96, 100]]
def blp(p, t, st):
    for k in range(2):
        sg = 2 * p + k; r = BFP[st] + 4 * k
        A(f"ds_read2st64_b32 v[{r}:{r+1}], v{16+sg} offset0:{16*t} offset1:{16*t+1}")
        A(f"ds_read2st64_b32 v[{r+2}:{r+3}], v{16+sg} offset0:{16*t+2} offset1:{16*t+3}")
A(f"""v_lshrrev_b32 v5, 1, v4
v_lshlrev_b32 v5, 9, v5
v_lshl_add_u32 v5, v3, 4, v5
v_and_b32 v7, 1, v4
v_lshl_add_u32 v5, v7, 3, v5
s_mul_i32 s{T0}, s{sR}, {2*86*1024}
s_lshl_b32 s{T1}, s46, 10
s_add_u32 s{T0}, s{T0}, s{T1}
s_add_u32 s{T0}, s{T0}, {HID}
v_add_u32 v8, s{T0}, v5
v_add_u32 v9, 4096, v8
v_add_u32 v10, 8192, v8
v_add_u32 v10, s47, v10
v_min_u32 v15, 7, v2
v_lshlrev_b32 v15, 6, v15
s_lshl_b32 s{T0}, s{sR}, 9
v_add_u32 v15, s{T0}, v15""")
def epi(p):
    BBr, CSr = 104, 116
    for j in range(3):
        seqs = []
        for k in range(2):
            sg = 2 * p + k
            c = G1 + (j * 4 + sg) * 4
            sp = SAC + 2 * sg
            TT = 72 + 4 * k
            sq = []
            for hh in range(2):
                sq.append(f"v_pk_fma_f32 v[{TT+2*hh}:{TT+2*hh+1}], v[{CSr+4*j+2*hh}:{CSr+4*j+2*hh+1}], v[{sp}:{sp+1}], v[{BBr+4*j+2*hh}:{BBr+4*j+2*hh+1}] op_sel:[0,1,0] op_sel_hi:[1,1,1] neg_lo:[0,1,0] neg_hi:[0,1,0]")
            for hh in range(2):
                sq.append(f"v_pk_fma_f32 v[{c+2*hh}:{c+2*hh+1}], v[{c+2*hh}:{c+2*hh+1}], v[{sp}:{sp+1}], v[{TT+2*hh}:{TT+2*hh+1}] op_sel_hi:[1,0,1]")
            for r in range(4): sq.append(f"v_max_f32 v{c+r}, 0, v{c+r}")
            sq += [f"v_pk_mul_f32 v[{c}:{c+1}], v[{c}:{c+1}], v[{c}:{c+1}]",
                   f"v_pk_mul_f32 v[{c+2}:{c+3}], v[{c+2}:{c+3}], v[{c+2}:{c+3}]",
                   f"v_cvt_pk_bf16_f32 v{c}, v{c}, v{c+1}",
                   f"v_cvt_pk_bf16_f32 v{c+1}, v{c+2}, v{c+3}"]
            seqs.append(sq)
        for grp in zip(*seqs):
            for x in grp: A(x)
        for k in range(2):
            c = G1 + (j * 4 + 2 * p + k) * 4
            vm.op(f"buffer_store_dwordx2 v[{c}:{c+1}], v{8+j}, {W4}, {'s%d'%T3 if p else '0'} offen offset:{256*k} sc1", f"st3{p}")
fidx = f"s_lshl_b32 s{T0}, s{sR}, 3\ns_add_u32 s{T0}, s{T0}, s{sFG}"
for p in range(2):
    blp(p, 0, 0)
    for t in range(16):
        st = t & 1
        lds = []
        if p == 0 and t in (3, 7, 11):
            vm.wait(*{3: ["x1"], 7: ["x2", "p1"], 11: ["x3", "p3"]}[t]); A("s_barrier")
        if p == 1 and t == P("F3A_T", 5):
            vm.wait("st30"); A("s_barrier")
            set_flag(0, F3, fidx, 92, 93)
        if t + 1 < 16: lds += capture(lambda: blp(p, t + 1, st ^ 1))
        if p == 0 and 8 <= t + 1 < 16:
            for k in range(2): lds += capture(lambda: pl(2 * (t + 1 - 8) + k, PFX[st ^ 1][k]))
        A("s_waitcnt lgkmcnt(0)")
        mfs = []
        for j in range(3):
            for k in range(2):
                c = G1 + (j * 4 + 2 * p + k) * 4
                mfs.append(f"v_mfma_f32_16x16x32_bf16 v[{c}:{c+3}], a[{(t*3+j)*4}:{(t*3+j)*4+3}], v[{BFP[st]+4*k}:{BFP[st]+4*k+3}], v[{c}:{c+3}]")
        if p == 0 and t >= 8:
            for k in range(2):
                q_ = PFX[st][k]
                mfs.insert(0, f"v_mfma_f32_16x16x32_bf16 v[{D1}:{D1+3}], v[{ONE}:{ONE+3}], v[{q_}:{q_+3}], v[{D1}:{D1+3}]")
                mfs.insert(0, f"v_mfma_f32_16x16x32_bf16 v[{D2}:{D2+3}], v[{q_}:{q_+3}], v[{q_}:{q_+3}], v[{D2}:{D2+3}]")
        for mf, x in enumerate(mfs, 1):
            A(x)
            for _ in range(2):
                if lds: A(lds.pop(0))
            if mf % 2 == 0 and xpq: xp_issue(xpq.pop(0))
            elif (p == 1 or t >= W2_T0) and mf % W2_EVERY == 0: w2_issue(1)
        assert not lds
    if p == 0:
        A(f"""v_and_b32 v124, 3, v3
        v_lshrrev_b32 v125, 2, v3
        v_cmp_eq_u32 s[{SX}:{SX+1}], v125, v4
        v_lshlrev_b32 v90, 3, v3
        s_lshl_b32 s{T0}, s{sWAVE}, 7
        s_add_u32 s{T0}, s{T0}, {L_ST}
        v_add_u32 v91, s{T0}, v90
        v_add_u32 v90, {L_ST}, v90
        v_cmp_eq_u32 vcc, 1, v124
        s_nop 1
        v_cndmask_b32 v{D2}, v{D2}, v{D2+1}, vcc
        v_cmp_eq_u32 vcc, 2, v124
        s_nop 1
        v_cndmask_b32 v{D2}, v{D2}, v{D2+2}, vcc
        v_cmp_eq_u32 vcc, 3, v124
        s_nop 1
        v_cndmask_b32 v{D2}, v{D2}, v{D2+3}, vcc""")
        ln_final(D1, D2, 88, 89)
        A(f"""v_sub_f32 v89, v89, v{M1R}
        v_mul_f32 v89, v89, v88
        s_mov_b64 exec, s[{SX}:{SX+1}]
        ds_write_b64 v91, v[88:89]
        s_mov_b64 exec, -1""")
        for i in range(6):
            A(f"ds_read_b128 v[{104+4*i}:{107+4*i}], v14 offset:{64*i}")
        A(f"s_mov_b32 s{T3}, {86*1024}\ns_waitcnt lgkmcnt(0)\ns_barrier")
        for sg in range(4):
            A(f"ds_read_b64 v[{SAC+2*sg}:{SAC+2*sg+1}], v90 offset:{128*sg}")
        A("s_waitcnt lgkmcnt(0)")
        stamp("gemm1 pass A done")
    else:
        A("s_nop 7")
        stamp("gemm1 pass B done")
    epi(p)
stamp("st3 issued")
XR, BR, GR = 96, 104, 112
A(f"""v_and_b32 v8, 31, v2
v_lshrrev_b32 v9, 5, v2
s_lshr_b32 s{T0}, s{sWAVE}, 1
s_and_b32 s{T1}, s{sWAVE}, 1
s_lshl_b32 s{T2}, s{sFG}, 7
s_lshl_b32 s{T4}, s{T1}, 6
s_add_u32 s{T2}, s{T2}, s{T4}
v_lshlrev_b32 v10, 3, v9
v_add_u32 v10, s{T2}, v10
v_lshlrev_b32 v11, 1, v10
v_add_u32 v11, {L_TGB}, v11
s_lshl_b32 s{T4}, s{sR}, 6
s_lshl_b32 s{T5}, s{T0}, 5
s_add_u32 s{T4}, s{T4}, s{T5}
v_add_u32 v12, s{T4}, v8
v_lshlrev_b32 v19, 11, v10
v_lshl_add_u32 v19, v12, 2, v19
v_add_u32 v19, {X1P}, v19
v_lshl_add_u32 v12, v12, 10, v10
v_add_u32 v16, {F3}, v15
v_add_u32 v17, {F3B}, v15""")
vm.op(f"buffer_load_dword v18, v16, {W4}, 0 offen sc1", "f3a")
w2_issue(99)
vm.wait("st31")
A("s_barrier")
set_flag(0, F3B, fidx, 92, 93)
stamp("flag3")
G2 = 24
for i in range(64): A(f"v_mov_b32 v{G2+i}, 0")
def fcheck(tag, reg, addr, lab):
    vm.wait(tag)
    A(f"""v_cmp_ne_u32 vcc, s{sEP}, v{reg}
    s_nop 1
    s_cbranch_vccz {lab}_done""")
    poll(addr, 1, 0, reg, lab, only_wave0=False)
fcheck("f3a", 18, 16, "p3a")
stamp("poll3 done")
HD = P("HD", 6)
hq = [(sb, i) for sb in range(2) for i in range(22)]
def h_issue():
    sb, i = hq.pop(0)
    vm.op(f"buffer_load_dwordx4 a[{(22*sb+i)*4}:{(22*sb+i)*4+3}], v{22+sb}, {W4}, s{ROT2[i]} offen sc1", f"h{sb}_{i}")
for _ in range(HD): h_issue()
for q in range(4):
    A(f"ds_read_b128 v[{GR+4*q}:{GR+4*q+3}], v11 offset:{32*q}")
F3B_I = P("F3B_I", 12)
for sb in range(2):
    for i in range(22):
        vm.wait(f"h{sb}_{i}")
        for cb in range(2):
            c = G2 + 16 * (2 * sb + cb)
            A(f"v_mfma_f32_32x32x16_bf16 v[{c}:{c+15}], {w2reg(i,cb)}, a[{(22*sb+i)*4}:{(22*sb+i)*4+3}], v[{c}:{c+15}]")
        if sb == 0 and i == F3B_I: vm.op(f"buffer_load_dword v18, v17, {W4}, 0 offen sc1", "f3b")
        if hq and hq[0] == (1, 0): fcheck("f3b", 18, 17, "p3b")
        if hq: h_issue()
        if sb == 1 and i == 2:
            for q in range(4):
                for pp in range(2):
                    A(f"s_mov_b32 s{T1}, {8192*(4*q+pp)}")
                    vm.op(f"buffer_load_dword v{XR+2*q+pp}, v19, {W4}, s{T1} offen sc1", "xr")
            for q in range(4):
                vm.op(f"buffer_load_dwordx2 v[{BR+2*q}:{BR+2*q+1}], v10, s[{SM2}:{SM2+3}], 0 offen offset:{16*q}", "xr")
vm.wait("xr")
stamp("gemm2 mfma done")
A(f"""s_nop 7
s_nop 3
v_lshlrev_b32 v13, 4, v2""")
for T in range(4):
    lab = A.label("skip")
    A(f"""s_cmp_eq_u32 s{sWAVE}, {T}
    s_cbranch_scc1 {lab}
    s_sub_u32 s{T0}, s{sWAVE}, {T+1}
    s_and_b32 s{T0}, s{T0}, 3
    s_lshl_b32 s{T0}, s{T0}, 12
    s_add_u32 s{T0}, s{T0}, {L_RED + T*12288}
    v_add_u32 v14, s{T0}, v13""")
    for q in range(4):
        A(f"ds_write_b128 v14, v[{G2+16*T+4*q}:{G2+16*T+4*q+3}] offset:{1024*q}")
    A(f"{lab}:")
OWN = 144
for T in range(4):
    lab = A.label("mv")
    A(f"s_cmp_lg_u32 s{sWAVE}, {T}\ns_cbranch_scc1 {lab}")
    for i in range(16): A(f"v_mov_b32 v{OWN+i}, v{G2+16*T+i}")
    A(f"{lab}:")
A(f"""s_mul_i32 s{T0}, s{sWAVE}, 12288
s_add_u32 s{T0}, s{T0}, {L_RED}
v_add_u32 v14, s{T0}, v13
s_waitcnt lgkmcnt(0)
s_barrier""")
for q in range(4):
    for sl in range(3):
        A(f"ds_read_b128 v[{G2+16*sl+4*q}:{G2+16*sl+4*q+3}], v14 offset:{4096*sl+1024*q}")
U = 160
for q in range(4):
    c = OWN + 4 * q
    A(f"""v_lshlrev_b32 v{U}, 16, v{BR+2*q}
    v_and_b32 v{U+1}, 0xffff0000, v{BR+2*q}
    v_lshlrev_b32 v{U+2}, 16, v{BR+2*q+1}
    v_and_b32 v{U+3}, 0xffff0000, v{BR+2*q+1}
    v_pk_add_f32 v[{c}:{c+1}], v[{c}:{c+1}], v[{U}:{U+1}]
    v_pk_add_f32 v[{c+2}:{c+3}], v[{c+2}:{c+3}], v[{U+2}:{U+3}]
    v_lshlrev_b32 v{U}, 16, v{XR+2*q}
    v_and_b32 v{U+1}, 0xffff0000, v{XR+2*q}
    v_lshlrev_b32 v{U+2}, 16, v{XR+2*q+1}
    v_and_b32 v{U+3}, 0xffff0000, v{XR+2*q+1}
    s_waitcnt lgkmcnt({3*(3-q)})""")
    for sl in range(3):
        for hh in range(2):
            A(f"v_pk_add_f32 v[{c+2*hh}:{c+2*hh+1}], v[{c+2*hh}:{c+2*hh+1}], v[{G2+16*sl+4*q+2*hh}:{G2+16*sl+4*q+2*hh+1}]")
    A(f"""v_pk_fma_f32 v[{c}:{c+1}], v[{c}:{c+1}], v[{GR+4*q}:{GR+4*q+1}], v[{U}:{U+1}]
    v_pk_fma_f32 v[{c+2}:{c+3}], v[{c+2}:{c+3}], v[{GR+4*q+2}:{GR+4*q+3}], v[{U+2}:{U+3}]
    v_cvt_pk_bf16_f32 v{c}, v{c}, v{c+1}
    v_cvt_pk_bf16_f32 v{c+1}, v{c+2}, v{c+3}
    buffer_store_dwordx2 v[{c}:{c+1}], v12, s[{SOUT}:{SOUT+3}], 0 offen offset:{16*q}""")
if STAMP:
    stamp("out issued")
    A("s_waitcnt vmcnt(0)")
    stamp("end")
    A("s_memtime s[100:101]\ns_waitcnt lgkmcnt(0)\nv_writelane_b32 v143, s100, 63")
    A(f"""v_lshlrev_b32 v1, 2, v2
    s_lshl_b32 s{T0}, s2, 10
    s_lshl_b32 s{T1}, s{sWAVE}, 8
    s_add_u32 s{T0}, s{T0}, s{T1}
    s_add_u32 s{T0}, s{T0}, {TS}
    v_add_u32 v1, s{T0}, v1
    buffer_store_dword v143, v1, {W4}, 0 offen""")
A("k_done:\ns_endpgm\nk_end:")

hdr = f"; @launch grid=(256,1,1) block=(256,1,1) lds={LDS_SZ}\n.amdgcn_target \"amdgcn-amd-amdhsa--gfx950\"\n.text\n"
out = hdr + A.text() + '.section .rodata,"a"\n' + A.kd(name, 256, 102, accum=256, agpr=256)
open(sys.argv[1], "w").write(out)
print("stamps", nst[0], "lds", LDS_SZ, file=sys.stderr)
```

```python
import sys, os
from asmlib import *

STAMP = os.environ.get("STAMP") == "1"
def P(n, d): return int(os.environ.get(n, d))
S, D, F = 2048, 512, 1376
UR, QP, X1P, X1S, HID, W1P, W2P = 0x0, 0x200000, 0x400000, 0x600000, 0x800000, 0xE00000, 0x1000000
MODF, ST1 = 0x1200000, 0x1210000
F1A, F1B, F2, F3, EPOCH, F3B = 0x1300000, 0x1304000, 0x1308000, 0x130C000, 0x1310000, 0x1314000
TS = 0x1400000
WS_SZ = 0x1500000
OOB = 0x40000000
SZ_SD = S * D * 2
SZ_W = D * F * 2
POLL_MAX = 200000

OSZ = 2368; USZ = 2 * OSZ
L_U = 0
L_KF = 9472; KFSZ = 8256
L_MODP = L_KF + 2 * KFSZ
L_XP = 0
L_X = 65536
L_RED = L_X
L_TB = 131072
L_TC2 = L_TB + 2048 + 64
L_TGB = L_TC2 + 2048 + 64
L_BB = L_TGB + 2048
L_ST = L_BB + 4 * 384
LDS_SZ = L_ST + 512
assert LDS_SZ <= 160 * 1024 and L_MODP + 4096 <= 65536

WS, SK, SV, SQ, SM1, SKF, SM2, SC, SWM, SPK, SOUT = 4, 8, 12, 16, 20, 24, 28, 32, 36, 40, 48
sWAVE, sXG, sJ, sEP = 52, 53, 54, 55
sR, sFG, sD0, sONES, sM = 96, 97, 98, 99, 3
T0, T1, T2, T3, T4, T5 = 56, 57, 58, 59, 60, 61
SX = 62
ROT1 = [64 + i for i in range(16)]
ROT2 = [80 + i for i in range(16)] + [8 + i for i in range(6)]
sROT1 = 14

A = Asm()
name = "adaLN_cond__ssm_conv_h3__dense_activation_squared_relu__prompt_kernel"
W4 = f"s[{WS}:{WS+3}]"

class VM:
    def __init__(self): self.q = []
    def op(self, text, tag):
        A(text); self.q.append(tag)
    def wait(self, *tags, extra=""):
        last = max((i for i, t in enumerate(self.q) if t in tags), default=-1)
        n = len(self.q) - 1 - last
        if last >= 0:
            assert n <= 63, (tags, n)
            A(f"s_waitcnt vmcnt({n}) {extra}".rstrip())
            self.q = self.q[last + 1:]
        elif extra:
            A(f"s_waitcnt {extra}")
vm = VM()

nst = [0]
def stamp(label=""):
    if not STAMP: return
    i = nst[0]; nst[0] += 1
    print(f"stamp {i}: {label}", file=sys.stderr)
    A(f"""s_memrealtime s[100:101]
    s_waitcnt lgkmcnt(0)
    v_writelane_b32 v143, s100, {i}""")

def rnd1(r):
    A(f"v_cvt_pk_bf16_f32 v{r}, v{r}, v{r}\nv_lshlrev_b32 v{r}, 16, v{r}")
def capture(fn):
    save = A.lines; A.lines = []
    fn()
    tmp = [x.strip() for x in A.lines]; A.lines = save
    return tmp

def poll(addr_v, nloads, stride_imm, dst, lab, only_wave0=True):
    if only_wave0:
        A(f"s_cmp_lg_u32 s{sWAVE}, 0\ns_cbranch_scc1 {lab}_done")
    A(f"s_mov_b32 s{T0}, 0\n{lab}:")
    for k in range(nloads):
        A(f"s_mov_b32 s{T1}, {k*stride_imm}\nbuffer_load_dword v{dst+k}, v{addr_v}, {W4}, s{T1} offen sc1")
    A("s_waitcnt vmcnt(0)")
    for k in range(nloads):
        A(f"v_xor_b32 v{dst+k}, s{sEP}, v{dst+k}")
    for k in range(1, nloads):
        A(f"v_or_b32 v{dst}, v{dst}, v{dst+k}")
    A(f"""v_cmp_ne_u32 vcc, 0, v{dst}
    s_add_u32 s{T0}, s{T0}, 1
    s_cmp_ge_u32 s{T0}, {POLL_MAX}
    s_cbranch_scc1 {lab}_done
    s_cbranch_vccz {lab}_done
    s_mov_b64 exec, vcc
    s_sleep {P("PSLEEP", 2)}
    s_branch {lab}
    {lab}_done:
    s_mov_b64 exec, -1""")

def set_flag(wave, base, idx_code, va, vd, pre=""):
    lab = A.label("fl")
    A(f"""s_cmp_lg_u32 s{sWAVE}, {wave}
    s_cbranch_scc1 {lab}
    {pre}
    {idx_code}
    s_lshl_b32 s{T0}, s{T0}, 6
    s_add_u32 s{T0}, s{T0}, {base}
    v_mov_b32 v{va}, s{T0}
    v_mov_b32 v{vd}, s{sEP}
    s_mov_b64 exec, 1
    buffer_store_dword v{vd}, v{va}, {W4}, 0 offen sc1
    s_mov_b64 exec, -1
    {lab}:""".replace("    \n", ""))

def ln_final(sm, sq, rs_out, m_out):
    A(f"""v_mul_f32 v{m_out}, 0x3b000000, v{sm}
    v_mul_f32 v{rs_out}, 0x3b000000, v{sq}
    v_fma_f32 v{rs_out}, -v{m_out}, v{m_out}, v{rs_out}
    v_max_f32 v{rs_out}, 0, v{rs_out}""")
    rnd1(rs_out); rnd1(m_out)
    A(f"v_add_f32 v{rs_out}, 0x3727c5ac, v{rs_out}")
    rnd1(rs_out)
    A(f"v_sqrt_f32 v{rs_out}, v{rs_out}\ns_nop 0")
    rnd1(rs_out)
    A(f"v_rcp_f32 v{rs_out}, v{rs_out}\ns_nop 0")

A.kernel_begin(name)
NCP = P("NCP", 6)
A(f"""s_cmp_ge_u32 s2, 256
s_cbranch_scc1 k_done
s_load_dwordx16 s[64:79], s[0:1], 0
s_load_dwordx16 s[80:95], s[0:1], 64
s_getpc_b64 s[48:49]
k_pc:""")
A(f"""
v_lshrrev_b32 v1, 6, v0
v_and_b32 v2, 63, v0
v_readfirstlane_b32 s{sWAVE}, v1
s_and_b32 s{sXG}, s2, 7
s_lshr_b32 s{sJ}, s2, 3
v_and_b32 v3, 15, v2
v_lshrrev_b32 v4, 4, v2
s_lshr_b32 s{T0}, s{sJ}, 3
s_lshl_b32 s{T0}, s{T0}, 3
s_add_u32 s{sR}, s{sXG}, s{T0}
s_and_b32 s{sFG}, s{sJ}, 7
s_lshl_b32 s{sD0}, s{sXG}, 6
s_lshl_b32 s{T0}, s{sJ}, 1
s_add_u32 s{sD0}, s{sD0}, s{T0}
s_mov_b32 s{sONES}, 0x3f803f80""")
stamp("start")
if STAMP: A("s_memtime s[100:101]\ns_waitcnt lgkmcnt(0)\nv_writelane_b32 v143, s100, 62")
KT, VT, QT, US, QS, PKT = L_X, L_X + 9216, L_X + 17408, L_X + 25600, L_X + 33792, L_X + 41984
A(f"""v_lshrrev_b32 v5, 3, v2
v_lshlrev_b32 v5, 10, v5
v_and_b32 v6, 7, v2
v_lshl_add_u32 v5, v6, 4, v5          ; (l>>3)*1024 + (l&7)*16
s_lshl_b32 s{T0}, s{sJ}, 16
s_lshl_b32 s{T1}, s{sXG}, 7
s_add_u32 s{T0}, s{T0}, s{T1}
v_add_u32 v7, s{T0}, v5
v_subrev_u32 v7, 8192, v7
s_lshl_b32 s{T1}, s{sWAVE}, 14
s_add_u32 s{T0}, s{T0}, s{T1}
v_add_u32 v5, s{T0}, v5
v_and_b32 v12, 31, v0                 ; cp
v_lshrrev_b32 v13, 5, v0              ; rg
v_lshlrev_b32 v8, 4, v12
s_lshl_b32 s{T0}, s{sXG}, 9
v_add_u32 v8, s{T0}, v8
s_lshl_b32 s{T4}, s{sWAVE}, 11         ; 2048*w
s_movk_i32 s{T5}, 8192
s_waitcnt lgkmcnt(0)""")
if P("TLBT", 0):
    for p in (66, 68, 64, 70, 72, 74, 86, 88, 78, 82, 80, 84, 90):
        A(f"s_load_dword s0, s[{p}:{p+1}], 0")
    A(f"s_add_u32 s76, s88, 0x200000\ns_addc_u32 s77, s89, 0\ns_load_dword s0, s[76:77], 0")
    A(f"s_mov_b32 s76, s94\ns_mov_b32 s77, s95")
    for pg in range(10):
        A(f"s_load_dword s0, s[76:77], 0")
        if pg < 9: A(f"s_add_u32 s76, s76, 0x200000\ns_addc_u32 s77, s77, 0")
A.srd(SK, 66, SZ_SD); A.srd(SV, 68, SZ_SD); A.srd(SM1, 70, 4096); A.srd(SQ, 64, SZ_SD)
A(f"""s_cmp_lg_u32 s{sWAVE}, 3
s_cbranch_scc1 nohalo
s_mov_b32 m0, {KT}
s_nop 0
buffer_load_dwordx4 v7, s[{SK}:{SK+3}], 0 offen lds
nohalo:""")
W = 44
NTQ = lambda srd: ' nt' if (P('NT', 1) and (srd != SQ or P('NTQ', 1))) else ''
for (base, srd, tag) in ((KT + 1024, SK, "k"), (VT, SV, "k"), (QT, SQ, "k")):
    for i in range(2):
        A(f"s_add_u32 s{T0}, s{T4}, {base + 1024*i}\ns_mov_b32 m0, s{T0}\ns_nop 0")
        vm.op(f"buffer_load_dwordx4 v5, s[{srd}:{srd+3}], {'s%d'%T5 if i else '0'} offen{NTQ(srd)} lds", tag)
vm.op(f"buffer_load_dwordx4 v[{W}:{W+3}], v8, s[{SM1}:{SM1+3}], 0 offen", "k")
A(f"""s_mul_i32 s{T0}, s{sJ}, 43
s_lshr_b32 s{T0}, s{T0}, 8              ; j/6
s_mul_i32 s{T0}, s{T0}, 6
s_sub_u32 s{T0}, s{sJ}, s{T0}           ; j%6
s_lshl_b32 s{T0}, s{T0}, 12
v_lshl_add_u32 v9, v0, 4, s{T0}
v_min_u32 v9, k_end-k_pc-16, v9""")
vm.op(f"global_load_dwordx4 a[0:3], v9, s[48:49]", "code")
A.srd(WS, 94, WS_SZ); A.srd(SKF, 72, SZ_SD); A.srd(SM2, 74, 1024); A.srd(SC, 86, 1024); A.srd(SWM, 88, 512 * 3072 * 2)
A.srd(SOUT, 90, SZ_SD)
A(f"v_mov_b32 v142, {EPOCH}")
vm.op(f"buffer_load_dword v142, v142, {W4}, 0 offen sc1", "ep")
KF0, DD, SR, CC, WM = 48, 58, 60, 68, 72
A(f"""v_lshlrev_b32 v9, 4, v0
s_lshl_b32 s{T0}, s{sD0}, 12
v_add_u32 v9, s{T0}, v9
s_movk_i32 s{T1}, 4096""")
vm.op(f"buffer_load_dwordx4 v[{KF0}:{KF0+3}], v9, s[{SKF}:{SKF+3}], 0 offen{' nt' if P('NT',1) else ''}", "kf")
vm.op(f"buffer_load_dwordx4 v[{KF0+4}:{KF0+7}], v9, s[{SKF}:{SKF+3}], s{T1} offen{' nt' if P('NT',1) else ''}", "kf")
A(f"s_lshl_b32 s{T0}, s{sD0}, 1\nv_mov_b32 v9, s{T0}")
vm.op(f"buffer_load_dword v{DD}, v9, s[{SM2}:{SM2+3}], 0 offen", "D")
PS, PA, PD = 88, 92, 90
A(f"""s_sub_u32 s{T0}, s2, 74
v_lshlrev_b32 v{PD}, 4, v2
v_bfe_u32 v9, v2, 2, 2                ; r
v_and_b32 v10, 3, v2                  ; c
s_cmp_lt_u32 s{T0}, 96
s_cbranch_scc0 pk_w2""")
A.srd(SPK, 78, SZ_W)
A(f"""s_and_b32 s{T1}, s{T0}, 15              ; t
s_lshr_b32 s{T2}, s{T0}, 4              ; Fgb
v_lshrrev_b32 v11, 5, v2
v_bfe_u32 v14, v2, 1, 4
s_and_b32 s{T3}, s{sWAVE}, 1
s_lshl_b32 s{T3}, s{T3}, 2
v_or_b32 v15, s{T3}, v11
v_xor_b32 v14, v14, v15               ; i' even
v_xor_b32 v15, 2, v14                 ; i' odd
v_mul_u32_u24 v11, 2752, v11
v_and_b32 v16, 1, v2
v_lshl_add_u32 v11, v16, 4, v11
s_mul_i32 s{T3}, s{T1}, {32*2752}
s_mul_i32 s{T4}, s{sWAVE}, {8*2752}
s_add_u32 s{T3}, s{T3}, s{T4}
s_lshl_b32 s{T4}, s{T2}, 9
s_add_u32 s{T3}, s{T3}, s{T4}
v_add_u32 v11, s{T3}, v11
v_lshl_add_u32 v{PS}, v14, 5, v11
v_lshl_add_u32 v{PS+1}, v15, 5, v11
s_movk_i32 s44, 5504
v_and_b32 v14, 1, v4
v_lshl_or_b32 v14, v14, 2, v9
v_lshl_add_u32 v15, v4, 3, v9
v_lshlrev_b32 v15, 9, v15
v_lshl_add_u32 v15, v10, 3, v15
v_add_u32 v15, {PKT}, v15
s_lshl_b32 s{T3}, s{sWAVE}, 2
v_xor_b32 v14, s{T3}, v14""")
for u in range(4):
    A(f"""v_xor_b32 v16, {u}, v14
    v_lshl_add_u32 v{PA+u}, v16, 5, v15
    v_add_u32 v{PA+4+u}, 2048, v{PA+u}""")
A(f"""s_lshl_b32 s{T2}, s{T2}, 2
s_add_u32 s{T2}, s{T2}, s{sWAVE}        ; Fg
s_lshl_b32 s{T3}, s{T2}, 16
s_lshl_b32 s{T4}, s{T1}, 10
s_add_u32 s{T3}, s{T3}, s{T4}
s_add_u32 s{T3}, s{T3}, {W1P}
s_cmp_ge_u32 s{T2}, 22
s_cselect_b32 s{T3}, {OOB}, s{T3}
v_add_u32 v{PD}, s{T3}, v{PD}
s_movk_i32 s45, 16384
s_cmp_eq_u32 s{T2}, 21
s_cselect_b32 s46, {OOB}, 0
s_branch pk_go
pk_w2:""")
A.srd(SPK, 82, SZ_W)
A(f"""s_sub_u32 s{T1}, s2, 170                ; F
v_bfe_u32 v14, v2, 2, 2
v_xor_b32 v14, v14, v4
v_lshlrev_b32 v11, 10, v4
v_lshl_add_u32 v11, v14, 6, v11
v_lshl_add_u32 v11, v10, 4, v11
s_lshl_b32 s{T3}, s{T1}, 14
s_lshl_b32 s{T4}, s{sWAVE}, 8
s_add_u32 s{T3}, s{T3}, s{T4}
s_cmp_ge_u32 s{T1}, 86
s_cselect_b32 s{T3}, {OOB}, s{T3}
v_add_u32 v{PS}, s{T3}, v11
v_mov_b32 v{PS+1}, v{PS}
s_movk_i32 s44, 4096
v_lshrrev_b32 v14, 1, v4
v_lshl_add_u32 v14, v14, 3, v9
v_lshlrev_b32 v14, 8, v14
v_and_b32 v15, 1, v4
v_lshl_add_u32 v14, v15, 5, v14
v_lshl_add_u32 v14, v10, 3, v14
s_lshl_b32 s{T3}, s{sWAVE}, 12
s_add_u32 s{T3}, s{T3}, {PKT}
v_add_u32 v14, s{T3}, v14""")
for u in range(4):
    A(f"""v_xor_b32 v16, {u}, v9
    v_lshl_add_u32 v{PA+u}, v16, 6, v14
    v_add_u32 v{PA+4+u}, 1024, v{PA+u}""")
A(f"""s_mul_i32 s{T3}, s{sWAVE}, {4*86*1024}
s_lshl_b32 s{T4}, s{T1}, 10
s_add_u32 s{T3}, s{T3}, s{T4}
s_add_u32 s{T3}, s{T3}, {W2P}
s_cmp_ge_u32 s{T1}, 86
s_cselect_b32 s{T3}, {OOB}, s{T3}
v_add_u32 v{PD}, s{T3}, v{PD}
s_mov_b32 s45, {86*1024}
s_mov_b32 s46, 0
pk_go:
s_lshl_b32 s{T4}, s{sWAVE}, 12
s_mov_b32 s47, 0""")
for i in range(4):
    A(f"s_add_u32 s{T0}, s{T4}, {PKT + 1024*i}\ns_mov_b32 m0, s{T0}\ns_nop 0")
    vm.op(f"buffer_load_dwordx4 v{PS+(i&1)}, s[{SPK}:{SPK+3}], s47 offen{' nt' if P('NT',1) else ''} lds", "pk")
    if i < 3: A(f"s_add_u32 s47, s47, s44")
A(f"""v_lshlrev_b32 v5, 10, v13
v_lshl_add_u32 v5, v12, 2, v5
v_add_u32 v6, {KT + 5*128 + 1024}, v5
v_add_u32 v5, {KT + 5*128}, v5
v_subrev_u32 v7, {KT + 5*128 - VT}, v5
v_add_u32 v8, {QT - VT}, v7
v_and_b32 v9, 7, v12
v_sub_u32 v10, 7, v13
v_xor_b32 v10, v10, v9
v_lshlrev_b32 v14, 8, v12
v_lshl_add_u32 v15, v10, 4, v14
v_add_u32 v15, {US}, v15
v_lshlrev_b32 v10, 1, v13
v_xor_b32 v10, v10, v9
v_lshl_add_u32 v16, v10, 4, v14
v_add_u32 v16, {QS}, v16
v_xor_b32 v17, 16, v16
v_lshrrev_b32 v9, 3, v0               ; ch
v_and_b32 v10, 7, v0
v_bfe_u32 v11, v0, 4, 3
v_xor_b32 v11, v11, v10
v_lshlrev_b32 v18, 7, v9
v_lshl_add_u32 v18, v11, 4, v18
v_add_u32 v18, {US}, v18
v_lshlrev_b32 v19, 12, v9
v_lshl_add_u32 v19, v10, 4, v19
s_lshl_b32 s{T0}, s{sXG}, 18
s_lshl_b32 s{T1}, s{sJ}, 7
s_sub_u32 s{T0}, s{T0}, s{T1}
s_add_u32 s{T0}, s{T0}, 3968
v_add_u32 v19, s{T0}, v19
v_lshrrev_b32 v9, 4, v0
v_and_b32 v11, 7, v9
v_xor_b32 v11, v11, v3
v_lshlrev_b32 v20, 8, v9
v_lshl_add_u32 v20, v11, 4, v20
v_add_u32 v20, {QS}, v20
v_lshlrev_b32 v21, 13, v9
v_lshl_add_u32 v21, v3, 4, v21
s_lshl_b32 s{T0}, s{sXG}, 18
s_lshl_b32 s{T1}, s{sJ}, 8
s_add_u32 s{T0}, s{T0}, s{T1}
s_add_u32 s{T0}, s{T0}, {QP}
v_add_u32 v21, s{T0}, v21""")
stamp("issued")
vm.wait("k")
A("s_barrier")
stamp("kvq in lds")
KR, VR, QR = 144, 156, 164
for j in range(0, 8, 2):
    A(f"ds_read2_b32 v[{KR+j}:{KR+j+1}], v5 offset0:{32*j} offset1:{32*j+32}")
A(f"ds_read2_b32 v[{KR+8}:{KR+9}], v6 offset0:0 offset1:32\nds_read_b32 v{KR+10}, v6 offset:256")
for j in range(0, 8, 2):
    A(f"ds_read2_b32 v[{VR+j}:{VR+j+1}], v7 offset0:{32*j} offset1:{32*j+32}")
for j in range(0, 8, 2):
    A(f"ds_read2_b32 v[{QR+j}:{QR+j+1}], v8 offset0:{32*j} offset1:{32*j+32}")
A(f"""s_mul_i32 s{T0}, s2, 1366
s_lshr_b32 s{T0}, s{T0}, 16
s_mul_i32 s{T1}, s{T0}, 48
s_sub_u32 s{T1}, s2, s{T1}
s_mul_i32 s{sM}, s{T0}, 12288
s_lshl_b32 s{T2}, s{T1}, 8
s_add_u32 s{sM}, s{sM}, s{T2}
s_add_u32 s{sM}, s{sM}, {MODF}
s_cmp_ge_u32 s2, 192
s_cselect_b32 s{sM}, {OOB}, s{sM}
s_mul_i32 s{T2}, s{T0}, {128*6144}
s_lshl_b32 s{T3}, s{T1}, 7
s_add_u32 s{T2}, s{T2}, s{T3}
s_cmp_ge_u32 s2, 192
s_cselect_b32 s{T2}, {OOB}, s{T2}
v_and_b32 v22, 7, v0
v_lshrrev_b32 v23, 3, v0
v_mul_u32_u24 v24, {4*6144}, v23
v_lshl_add_u32 v24, v22, 4, v24
v_add_u32 v24, s{T2}, v24
v_lshlrev_b32 v23, 3, v23
s_lshl_b32 s{T0}, s{T0}, 8
v_add_u32 v23, s{T0}, v23""")
vm.op(f"buffer_load_dwordx2 v[{CC}:{CC+1}], v23, s[{SC}:{SC+3}], 0 offen", "c")
for i in range(4):
    A(f"s_mov_b32 s{T0}, {6144*i}")
    vm.op(f"buffer_load_dwordx4 v[{WM+4*i}:{WM+4*i+3}], v24, s[{SWM}:{SWM+3}], s{T0} offen{' nt' if P('NT',1) else ''}", "wm")
A(f"""v_lshlrev_b32 v22, 4, v2
s_lshl_b32 s{T0}, s2, 13
s_lshl_b32 s{T1}, s{sWAVE}, 11
s_add_u32 s{T0}, s{T0}, s{T1}
v_add_u32 v22, s{T0}, v22""")
vm.op(f"buffer_load_dwordx4 v[{SR}:{SR+3}], v22, s[{SQ}:{SQ+3}], 0 offen{' nt' if P('NTS',1) else ''}", "sr")
vm.op(f"buffer_load_dwordx4 v[{SR+4}:{SR+7}], v22, s[{SQ}:{SQ+3}], 0 offen offset:1024{' nt' if P('NTS',1) else ''}", "sr")
WF, KFF, O = 100, 108, 172
KV = [180 + 2 * r for r in range(8)]
A(f"""v_lshlrev_b32 v{WF+0}, 16, v{W+0}
v_lshlrev_b32 v{WF+1}, 16, v{W+2}
v_and_b32 v{WF+2}, 0xffff0000, v{W+0}
v_and_b32 v{WF+3}, 0xffff0000, v{W+2}
v_lshlrev_b32 v{WF+4}, 16, v{W+1}
v_lshlrev_b32 v{WF+5}, 16, v{W+3}
v_and_b32 v{WF+6}, 0xffff0000, v{W+1}
v_and_b32 v{WF+7}, 0xffff0000, v{W+3}
s_waitcnt lgkmcnt(8)""")
for j in range(11):
    A(f"v_lshlrev_b32 v{KFF+2*j}, 16, v{KR+j}\nv_and_b32 v{KFF+2*j+1}, 0xffff0000, v{KR+j}")
A(f"""s_waitcnt lgkmcnt(0)
ds_write_b128 v16, v[{QR}:{QR+3}]
ds_write_b128 v17, v[{QR+4}:{QR+7}]""")
for r in range(8):
    A(f"v_pk_mul_f32 v[{KV[r]}:{KV[r]+1}], v[{KFF+2*r}:{KFF+2*r+1}], v[{WF+6}:{WF+7}]")
for t in range(1, 4):
    for r in range(8):
        A(f"v_pk_fma_f32 v[{KV[r]}:{KV[r]+1}], v[{KFF+2*(r+t)}:{KFF+2*(r+t)+1}], v[{WF+2*(3-t)}:{WF+2*(3-t)+1}], v[{KV[r]}:{KV[r]+1}]")
for r in range(8):
    A(f"v_lshlrev_b32 v{KFF+2*r}, 16, v{VR+r}\nv_and_b32 v{KFF+2*r+1}, 0xffff0000, v{VR+r}")
for r in range(8):
    A(f"v_pk_mul_f32 v[{KV[r]}:{KV[r]+1}], v[{KV[r]}:{KV[r]+1}], v[{KFF+2*r}:{KFF+2*r+1}]")
for e in range(2):
    for j in range(4):
        A(f"v_cvt_pk_bf16_f32 v{O+4*e+j}, v{KV[7-2*j]+e}, v{KV[6-2*j]+e}")
    A(f"ds_write_b128 v15, v[{O+4*e}:{O+4*e+3}] offset:{128*e}")
A(f"""s_mov_b32 s{T1}, 131072
s_waitcnt lgkmcnt(0)
s_barrier
ds_read_b128 v[144:147], v18
ds_read_b128 v[148:151], v18 offset:4096
ds_read_b128 v[152:155], v20
ds_read_b128 v[156:159], v20 offset:4096
s_waitcnt lgkmcnt(3)""")
vm.op(f"buffer_store_dwordx4 v[144:147], v19, {W4}, 0 offen {'' if P('PLAIN_UQ',0) else 'sc1'} {os.environ.get('F_ST1', '')}", "st1")
A("s_waitcnt lgkmcnt(2)")
vm.op(f"buffer_store_dwordx4 v[148:151], v19, {W4}, s{T1} offen {'' if P('PLAIN_UQ',0) else 'sc1'} {os.environ.get('F_ST1', '')}", "st1")
A("s_waitcnt lgkmcnt(1)")
vm.op(f"buffer_store_dwordx4 v[152:155], v21, {W4}, 0 offen {'' if P('PLAIN_UQ',0) else 'sc1'} {os.environ.get('F_ST1', '')}", "st1")
A("s_waitcnt lgkmcnt(0)")
vm.op(f"buffer_store_dwordx4 v[156:159], v21, {W4}, s{T1} offen {'' if P('PLAIN_UQ',0) else 'sc1'} {os.environ.get('F_ST1', '')}", "st1")
stamp("st1 issued")
vm.wait("kf", "D")
A(f"""v_lshlrev_b32 v9, 4, v0
v_mov_b32 v120, 0
v_mov_b32 v121, 0
v_mov_b32 v122, 0
v_mov_b32 v123, 0
ds_write_b128 v9, v[{KF0}:{KF0+3}] offset:{L_KF + 32}
ds_write_b128 v9, v[{KF0+4}:{KF0+7}] offset:{L_KF + KFSZ + 32}
v_mul_u32_u24 v22, {OSZ}, v4
v_lshl_add_u32 v22, v3, 4, v22
v_lshrrev_b32 v10, 1, v2
v_and_b32 v10, 3, v10
v_mul_u32_u24 v10, 4128, v10
v_and_b32 v11, 1, v2
v_lshl_add_u32 v10, v11, 4, v10
ds_write_b128 v22, v[120:123] offset:{L_U + 2048}
ds_write_b128 v10, v[120:123] offset:{L_KF}""")
vm.wait("c")
A(f"""v_lshlrev_b32 v{CC+2}, 16, v{CC+1}
v_and_b32 v{CC+3}, 0xffff0000, v{CC+1}
v_and_b32 v{CC+1}, 0xffff0000, v{CC}
v_lshlrev_b32 v{CC}, 16, v{CC}""")
for i in range(4): A(f"v_mul_f32 v{100+i}, 0xbfb8aa3b, v{CC+i}")
for i in range(4): A(f"v_exp_f32 v{100+i}, v{100+i}")
for i in range(4): A(f"v_add_f32 v{100+i}, 1.0, v{100+i}")
for i in range(4): A(f"v_rcp_f32 v{100+i}, v{100+i}")
for i in range(4): A(f"v_mul_f32 v{CC+i}, v{CC+i}, v{100+i}")
for i in range(0, 4, 2):
    A(f"""v_cvt_pk_bf16_f32 v100, v{CC+i}, v{CC+i+1}
    v_lshlrev_b32 v{CC+i}, 16, v100
    v_and_b32 v{CC+i+1}, 0xffff0000, v100""")
MA = 104
vm.wait("wm")
for i in range(4):
    for j in range(4):
        t = 112 + 2 * (j % 2)
        A(f"v_lshlrev_b32 v{t}, 16, v{WM+4*i+j}\nv_and_b32 v{t+1}, 0xffff0000, v{WM+4*i+j}")
        if i == 0:
            A(f"v_pk_mul_f32 v[{MA+2*j}:{MA+2*j+1}], v[{t}:{t+1}], v[{CC}:{CC+1}] op_sel_hi:[1,0]")
        else:
            sel = "op_sel_hi:[1,0,1]" if i % 2 == 0 else "op_sel:[0,1,0] op_sel_hi:[1,1,1]"
            A(f"v_pk_fma_f32 v[{MA+2*j}:{MA+2*j+1}], v[{t}:{t+1}], v[{CC+(i//2)*2}:{CC+(i//2)*2+1}], v[{MA+2*j}:{MA+2*j+1}] {sel}")
A(f"""v_lshrrev_b32 v11, 4, v0
v_lshlrev_b32 v11, 8, v11
v_and_b32 v10, 7, v0
v_lshl_add_u32 v11, v10, 5, v11""")
for j in range(8):
    A(f"v_add_f32_dpp v{MA+j}, v{MA+j}, v{MA+j} row_shr:8 row_mask:0xf bank_mask:0xf bound_ctrl:0")
A(f"""v_cmp_le_u32 vcc, 8, v3
s_and_saveexec_b64 s[{SX}:{SX+1}], vcc
ds_write_b128 v11, v[{MA}:{MA+3}] offset:{L_MODP}
ds_write_b128 v11, v[{MA+4}:{MA+7}] offset:{L_MODP+16}
s_mov_b64 exec, s[{SX}:{SX+1}]""")
vm.wait("st1", extra="lgkmcnt(0)")
A(f"v_readfirstlane_b32 s{sEP}, v142\ns_barrier\ns_add_u32 s{sEP}, s{sEP}, 0x9e3779b9")
set_flag(0, F1A, f"s_lshl_b32 s{T0}, s{sXG}, 5\ns_add_u32 s{T0}, s{T0}, s{sJ}", 10, 11)
stamp("flag1a")
PKR = 144
for u in range(4):
    A(f"ds_read_b64_tr_b16 v[{PKR+4*u}:{PKR+4*u+1}], v{PA+u}\nds_read_b64_tr_b16 v[{PKR+4*u+2}:{PKR+4*u+3}], v{PA+4+u}")
KFM = 56
A(f"""ds_read_b32 v{KFM}, v9 offset:{L_KF + 28}
ds_read_b32 v{KFM+1}, v9 offset:{L_KF + KFSZ + 28}
s_mov_b32 s47, 0""")
for u in range(4):
    A(f"s_waitcnt lgkmcnt({8-2*u})")
    vm.op(f"buffer_store_dwordx4 v[{PKR+4*u}:{PKR+4*u+3}], v{PD}, {W4}, s47 offen sc1 {os.environ.get('F_ST1B', '')}", "st1b")
    if u < 3:
        A(f"s_add_u32 s47, s47, s45")
        if u == 1: A(f"s_add_u32 s47, s47, s46")
A(f"""s_cmp_lg_u32 s{sWAVE}, 1
s_cbranch_scc1 modf_done
v_lshlrev_b32 v11, 2, v2""")
for p in range(16):
    A(f"ds_read_b32 v{160+p}, v11 offset:{L_MODP+256*p}")
A("s_waitcnt lgkmcnt(0)")
for st in (8, 4, 2, 1):
    for p in range(st):
        A(f"v_add_f32 v{160+p}, v{160+p}, v{160+p+st}")
A(f"""v_add_u32 v10, s{sM}, v11
buffer_store_dword v160, v10, {W4}, 0 offen sc1
modf_done:""")
SA = 100
for i in range(4): A(f"v_mov_b32 v{SA+i}, 0")
for j in range(4):
    for rr in range(2):
        A(f"""v_dot2_f32_bf16 v{SA+2*rr}, v{SR+4*rr+j}, s{sONES}, v{SA+2*rr}
        v_dot2_f32_bf16 v{SA+2*rr+1}, v{SR+4*rr+j}, v{SR+4*rr+j}, v{SA+2*rr+1}""")
A("s_waitcnt lgkmcnt(0)")
for c in range(2):
    o = 124 + 4 * c
    A(f"v_alignbit_b32 v{o}, v{KF0+4*c}, v{KFM+c}, 16")
    for j in range(1, 4):
        A(f"v_alignbit_b32 v{o+j}, v{KF0+4*c+j}, v{KF0+4*c+j-1}, 16")
    A(f"ds_write_b128 v9, v[{o}:{o+3}] offset:{L_KF + c*KFSZ + 4128 + 32}")
for ctrl in ("row_shr:1", "row_shr:2", "row_shr:4", "row_shr:8"):
    for j in range(4):
        A(f"v_add_f32_dpp v{SA+j}, v{SA+j}, v{SA+j} {ctrl} row_mask:0xf bank_mask:0xf bound_ctrl:0")
for j in range(4):
    A(f"v_add_f32_dpp v{SA+j}, v{SA+j}, v{SA+j} row_bcast:15 row_mask:0xa bank_mask:0xf")
for j in range(4):
    A(f"v_add_f32_dpp v{SA+j}, v{SA+j}, v{SA+j} row_bcast:31 row_mask:0xc bank_mask:0xf")
a_ = capture(lambda: ln_final(SA, SA + 1, 104, 105)); b_ = capture(lambda: ln_final(SA + 2, SA + 3, 106, 107))
for x, y in zip(a_, b_):
    A(x)
    if y != "s_nop 0": A(y)
A(f"""s_lshl_b32 s{T0}, s2, 6
s_lshl_b32 s{T1}, s{sWAVE}, 4
s_add_u32 s{T0}, s{T0}, s{T1}
s_add_u32 s{T0}, s{T0}, {ST1}
v_mov_b32 v9, s{T0}
s_mov_b32 s{SX}, 0
s_mov_b32 s{SX+1}, 0x80000000
s_mov_b64 exec, s[{SX}:{SX+1}]""")
vm.op(f"buffer_store_dwordx4 v[104:107], v9, {W4}, 0 offen sc1 {os.environ.get('F_ST1B', '')}", "st1b")
A("s_mov_b64 exec, -1")
stamp("p1b stores issued")
sCH, sHF = 44, 45
A.srd(SM1, 80, F * 2); A.srd(SM2, 84, 1024)
A(f"""s_lshr_b32 s{sCH}, s{sWAVE}, 1
s_and_b32 s{sHF}, s{sWAVE}, 1
v_min_u32 v12, 31, v2
v_lshlrev_b32 v12, 6, v12
s_lshl_b32 s{T0}, s{sXG}, 11
s_add_u32 s{T0}, s{T0}, {F1A}
v_add_u32 v12, s{T0}, v12
v_lshlrev_b32 v13, 6, v2
v_lshlrev_b32 v5, 4, v0
s_lshl_b32 s{T0}, s{sD0}, 12
v_add_u32 v5, s{T0}, v5
v_add_u32 v6, 4096, v5
v_and_b32 v7, 1, v0
v_mul_u32_u24 v7, {OSZ}, v7
v_lshrrev_b32 v8, 1, v0
v_lshl_add_u32 v7, v8, 4, v7
v_lshlrev_b32 v15, 1, v4
v_sub_u32 v15, v15, v3
v_lshlrev_b32 v15, 4, v15
s_mul_i32 s{T0}, s{sCH}, {USZ}
s_lshl_b32 s{T1}, s{sHF}, 7
s_add_u32 s{T0}, s{T0}, s{T1}
s_add_u32 s{T0}, s{T0}, {L_U + 240}
v_add_u32 v15, s{T0}, v15
v_and_b32 v8, 1, v3
v_mul_u32_u24 v8, 4130, v8
v_lshlrev_b32 v16, 6, v4
v_lshl_add_u32 v16, v3, 1, v16
v_sub_u32 v16, v16, v8
s_mul_i32 s{T0}, s{sCH}, {KFSZ}
s_lshl_b32 s{T1}, s{sHF}, 8
s_add_u32 s{T0}, s{T0}, s{T1}
s_add_u32 s{T0}, s{T0}, {L_KF + 4132}
v_add_u32 v16, s{T0}, v16
v_add_u32 v17, 1024, v16
v_add_u32 v18, 2048, v16
v_add_u32 v19, 3072, v16
v_lshlrev_b32 v20, 16, v{DD}
v_and_b32 v21, 0xffff0000, v{DD}
v_lshlrev_b32 v8, 6, v3
v_lshl_add_u32 v8, v4, 4, v8          ; 64a' + 16g
s_lshl_b32 s{T0}, s{sD0}, 12
s_lshl_b32 s{T1}, s{sWAVE}, 11
s_add_u32 s{T0}, s{T0}, s{T1}
v_add_u32 v14, s{T0}, v8
v_lshlrev_b32 v63, 1, v8
s_lshl_b32 s{T0}, s{sWAVE}, 12
s_add_u32 s{T0}, s{T0}, {ST1}
v_add_u32 v63, s{T0}, v63
v_lshrrev_b32 v9, 2, v3
v_cmp_eq_u32 vcc, 3, v9
v_lshlrev_b32 v23, 11, v9
v_and_b32 v10, 3, v3
v_cndmask_b32 v11, 0, 1, vcc
v_lshl_add_u32 v23, v11, 11, v23
v_mul_u32_u24 v10, 12288, v10
s_lshl_b32 s{T0}, s{sD0}, 2
s_add_u32 s{T0}, s{T0}, {MODF}
v_add3_u32 v23, v23, v10, s{T0}
v_and_b32 v9, 1, v9
v_cvt_f32_u32 v62, v9
v_lshlrev_b32 v10, 4, v2
s_mul_i32 s{T0}, s{sFG}, 11
s_add_u32 s46, s{T0}, s{sWAVE}         ; F0
s_lshl_b32 s{T0}, s46, 14
s_add_u32 s{T0}, s{T0}, {W1P}
v_add_u32 v248, s{T0}, v10
v_add_u32 v249, 0x10000, v248
v_add_u32 v250, 0x20000, v248
s_add_u32 s{T0}, s46, 8
s_cmp_ge_u32 s{T0}, 86
s_cselect_b32 s47, {OOB}, 0
s_cmp_eq_u32 s{sWAVE}, 3
s_cselect_b32 s47, {OOB}, s47
v_add_u32 v250, s47, v250
""")
vm.wait("st1b", extra="lgkmcnt(0)")
A("s_barrier")
set_flag(1, F1B, f"s_mov_b32 s{T0}, s2", 10, 11, pre="s_waitcnt vmcnt(0)")
stamp("flag1b")
ACC = 24
AB = [64, 96]; BB_ = [144, 176]
UL, QE, SE, ME = 208, 216, 224, 240
def aload(o, st):
    for q in range(8):
        r = AB[st] + 4 * q; base = 128 * (q & 1) + 4 * o
        A(f"ds_read2_b32 v[{r}:{r+1}], v{16+(q>>1)} offset0:{base} offset1:{base+1}")
        A(f"ds_read2_b32 v[{r+2}:{r+3}], v{16+(q>>1)} offset0:{base+2} offset1:{base+3}")
def bload(o, st):
    for dl in range(8):
        r = BB_[st] + 4 * dl
        A(f"ds_read_b128 v[{r}:{r+3}], v15 offset:{(o&1)*OSZ + 16*(112-16*dl+(o>>1))}")
aload(0, 0)
for i in range(32): A(f"v_mov_b32 v{ACC+i}, 0")
sal = []
sal += [f"s_lshr_b32 s{T4}, s{sJ}, 3", f"s_mul_i32 s{T4}, s{T4}, {P('RRB', 1)}", f"s_mul_i32 s15, s{sFG}, {P('RFG', 1)}", f"s_lshl_b32 s{sROT1}, s{T4}, 1", f"s_add_u32 s{sROT1}, s{sROT1}, s15",
        f"s_lshl_b32 s{sROT1}, s{sROT1}, 1", f"s_and_b32 s{sROT1}, s{sROT1}, 15"]
for t in range(16):
    sal += [f"s_add_u32 s{ROT1[t]}, s{sROT1}, {t}", f"s_and_b32 s{ROT1[t]}, s{ROT1[t]}, 15", f"s_lshl_b32 s{ROT1[t]}, s{ROT1[t]}, 10"]
sal += [f"s_mul_i32 s{T4}, s{T4}, 11", f"s_lshr_b32 s{T4}, s{T4}, 1", f"s_mul_i32 s{T5}, s{sFG}, {3*P('RFG', 1)}", f"s_add_u32 s{T4}, s{T4}, s{T5}",
        f"s_cmp_ge_u32 s{sWAVE}, 2", f"s_cselect_b32 s{T5}, 21, 99",
        f"s_cmp_ge_u32 s{T4}, 22", f"s_cselect_b32 s15, 22, 0", f"s_sub_u32 s{T4}, s{T4}, s15"]
for i in range(22):
    r = ROT2[i]
    sal += [(f"s_lshl_b32 s{r}, s{T4}, 12", f"s_cmp_eq_u32 s{T4}, s{T5}", f"s_cselect_b32 s{r}, {OOB}, s{r}"),
            (f"s_add_u32 s{T4}, s{T4}, 1", f"s_cmp_eq_u32 s{T4}, 22", f"s_cselect_b32 s{T4}, 0, s{T4}")]
for x in sal: A(x if isinstance(x, str) else "\n".join(x))
sal = []
poll(12, 1, 0, 22, "p1a")
A("s_barrier")
stamp("poll1a done")
vm.op(f"buffer_load_dwordx4 v[{UL}:{UL+3}], v5, {W4}, 0 offen sc1{' nt' if P('NTU',0) else ''}", "u")
vm.op(f"buffer_load_dwordx4 v[{UL+4}:{UL+7}], v6, {W4}, 0 offen sc1{' nt' if P('NTU',0) else ''}", "u")
A(f"s_mov_b32 s{T2}, {QP}")
for jn in range(2):
    vm.op(f"buffer_load_dwordx4 v[{QE+4*jn}:{QE+4*jn+3}], v14, {W4}, s{T2} offen offset:{1024*jn} sc1", "qe")
for k in range(4):
    A(f"s_mov_b32 s{T1}, {F1B + 4096*k}")
    vm.op(f"buffer_load_dword v{56+k}, v13, {W4}, s{T1} offen sc1", "f1b")
vm.wait("u")
A(f"""ds_write_b128 v7, v[{UL}:{UL+3}] offset:{L_U}
ds_write_b128 v7, v[{UL+4}:{UL+7}] offset:{L_U+USZ}
s_waitcnt lgkmcnt(0)
s_barrier""")
bload(0, 0)
stamp("u in lds")
w1q = [(t, j) for t in range(16) for j in range(3)]
def w1_issue(n):
    for _ in range(n):
        if not w1q: return
        t, j = w1q.pop(0)
        vm.op(f"buffer_load_dwordx4 a[{(t*3+j)*4}:{(t*3+j)*4+3}], v{248+j}, {W4}, s{ROT1[t]} offen sc1{' nt' if P('NTW',0) else ''}", f"w1_{t}")
def me_final():
    vm.wait("me")
    for sh in (1, 2):
        A("s_nop 1")
        for k in range(2):
            A(f"v_add_f32_dpp v{UL+k}, v{UL+k}, v{UL+k} row_shr:{sh} row_mask:0xf bank_mask:0xf bound_ctrl:0")
    A(f"""v_cvt_pk_bf16_f32 v{UL+2}, v{UL}, v{UL+1}
    v_lshlrev_b32 v{UL}, 16, v{UL+2}
    v_and_b32 v{UL+1}, 0xffff0000, v{UL+2}
    v_add_f32 v{UL}, v{UL}, v62
    v_add_f32 v{UL+1}, v{UL+1}, v62
    v_cvt_pk_bf16_f32 v{UL+2}, v{UL}, v{UL+1}
    v_lshlrev_b32 v{UL}, 16, v{UL+2}
    v_and_b32 v{UL+1}, 0xffff0000, v{UL+2}
    s_nop 1""")
    for i in range(4):
        for k in range(2):
            A(f"v_mov_b32_dpp v{ME+2*i+k}, v{UL+k} row_newbcast:{4*i+3} row_mask:0xf bank_mask:0xf")
for o in range(4):
    st = o & 1
    A("s_waitcnt lgkmcnt(0)")
    lds = []
    if o + 1 < 4:
        lds = capture(lambda: (bload(o + 1, st ^ 1), aload(o + 1, st ^ 1)))
    side = []; cnt = 0
    if o == 3: side = capture(me_final)
    for dl in range(8):
        for q in range(8 - dl):
            n = q + dl
            A(f"v_mfma_f32_16x16x32_bf16 v[{ACC+4*n}:{ACC+4*n+3}], v[{AB[st]+4*q}:{AB[st]+4*q+3}], v[{BB_[st]+4*dl}:{BB_[st]+4*dl+3}], v[{ACC+4*n}:{ACC+4*n+3}]")
            cnt += 1
            if lds: A(lds.pop(0))
            if o > P("F1B_O", 0) and o >= P("W1_O0", 1) and cnt % P("W1_EVERY", 6) == 0: w1_issue(1)
            for _ in range(2 if o == 0 else 1):
                if sal:
                    x = sal.pop(0)
                    A(x if isinstance(x, str) else "\n".join(x))
            if side: A(side.pop(0))
    for x in side: A(x)
    if o == P("F1B_O", 0):
        vm.wait("f1b")
        A(f"""v_xor_b32 v56, s{sEP}, v56
        v_xor_b32 v57, s{sEP}, v57
        v_xor_b32 v58, s{sEP}, v58
        v_xor_b32 v59, s{sEP}, v59
        v_or3_b32 v56, v56, v57, v58
        v_or_b32 v56, v56, v59
        v_cmp_ne_u32 vcc, 0, v56
        s_nop 1
        s_cbranch_vccz p1b_done
        v_add_u32 v22, {F1B}, v13""")
        poll(22, 4, 4096, 56, "p1b", only_wave0=False)
        vm.op(f"buffer_load_dwordx2 v[{UL}:{UL+1}], v23, {W4}, 0 offen sc1", "me")
        for jn in range(2):
            for hh in range(2):
                vm.op(f"buffer_load_dwordx4 v[{SE+8*jn+4*hh}:{SE+8*jn+4*hh+3}], v63, {W4}, 0 offen offset:{2048*jn+16*hh} sc1", "se")
        if P("WTOUCH", 0):
            A(f"""s_mul_i32 s{T0}, s{sJ}, 44032
            v_lshlrev_b32 v22, 7, v0
            v_add_u32 v22, s{T0}, v22
            v_add_u32 v60, 32768, v22
            v_cmp_gt_u32 vcc, 88, v0
            v_mov_b32 v61, {OOB}
            s_mov_b32 s{T0}, {W1P}
            s_mov_b32 s{T1}, {W2P}
            v_cndmask_b32 v60, v61, v60, vcc""")
            for (ad, so) in ((22, T0), (60, T0), (22, T1), (60, T1)):
                vm.op(f"buffer_load_dword v61, v{ad}, {W4}, s{so} offen sc1", "touch")
        A(f"""v_lshlrev_b32 v128, 3, v0
        v_add_u32 v128, {MODF + 3*2048}, v128
        v_lshlrev_b32 v129, 3, v4
        s_lshl_b32 s{T0}, s46, 5
        v_add_u32 v129, s{T0}, v129
        v_lshlrev_b32 v130, 3, v3
        s_lshl_b32 s{T0}, s{sR}, 9
        s_lshl_b32 s{T1}, s{sWAVE}, 7
        s_add_u32 s{T0}, s{T0}, s{T1}
        s_add_u32 s{T0}, s{T0}, {ST1 + 4}
        v_add_u32 v130, s{T0}, v130""")
        for ks in range(4):
            A(f"s_mov_b32 s{T1}, {12288*ks}\ns_mov_b32 s{T0}, {12288*ks+4096}")
            for sec in range(3):
                so, off = (T1, 2048 * sec) if sec < 2 else (T0, 0)
                vm.op(f"buffer_load_dwordx2 a[{192+8*sec+2*ks}:{192+8*sec+2*ks+1}], v128, {W4}, s{so} offen offset:{off} sc1", "tp")
        for j in range(3):
            vm.op(f"buffer_load_dwordx2 a[{216+2*j}:{217+2*j}], v129, s[{SM1}:{SM1+3}], 0 offen offset:{128*j}", "tp")
        vm.op(f"buffer_load_dword v140, v130, {W4}, 0 offen sc1", "tp")
        stamp("flag1b all seen")
assert not sal
stamp("conv mfma done")
A(f"""v_lshlrev_b32 v9, 4, v2
s_lshl_b32 s{T0}, s{sWAVE}, 13
s_add_u32 s{T0}, s{T0}, {L_RED}
v_add_u32 v10, s{T0}, v9
s_lshl_b32 s{T0}, s{sWAVE}, 11
s_add_u32 s{T0}, s{T0}, {L_RED}
v_add_u32 v11, s{T0}, v9
v_lshrrev_b32 v5, 1, v4
v_sub_u32 v5, 1, v5
v_mul_u32_u24 v5, {OSZ}, v5
v_lshlrev_b32 v6, 4, v3
v_sub_u32 v5, v5, v6
v_and_b32 v6, 1, v4
v_lshlrev_b32 v6, 3, v6
v_sub_u32 v5, v5, v6
s_lshl_b32 s{T0}, s{sWAVE}, 9
s_sub_u32 s{T0}, {L_U + 16*(127-16) + 8}, s{T0}
v_add_u32 v5, s{T0}, v5""")
for n in range(8):
    A(f"ds_write_b128 v10, v[{ACC+4*n}:{ACC+4*n+3}] offset:{1024*n}")
UE = 128
for jn in range(2):
    for c in range(2):
        A(f"ds_read_b64 v[{UE+4*jn+2*c}:{UE+4*jn+2*c+1}], v5 offset:{256*(1-jn) + c*USZ}")
A("s_waitcnt lgkmcnt(0)\ns_barrier")
RR = 64
for jn in range(2):
    for src in range(4):
        r = RR + 16 * jn + 4 * src
        A(f"ds_read_b128 v[{r}:{r+3}], v11 offset:{8192*src + 1024*jn}")
vm.wait("qe", "se", "me")
XO, XS = 112, 120
SAp, C1p, GAp, C2p = ME, ME + 2, ME + 4, ME + 6
A(f"s_mov_b32 s{T2}, {X1S}\ns_mov_b32 s{T3}, {X1P}")
for jn in range(2):
    A(f"s_waitcnt lgkmcnt({4*(1-jn)})")
    seqs = []
    for r in range(4):
        Y, QF, QC, H, X = [24 + 10 * r + 2 * k for k in range(5)]
        b = RR + 16 * jn
        dw = 1 if r < 2 else 0
        sq = []
        for c in range(2):
            src = UE + 4 * jn + 2 * c + dw
            sq.append(f"v_and_b32 v{X+c}, 0xffff0000, v{src}" if r % 2 == 0 else f"v_lshlrev_b32 v{X+c}, 16, v{src}")
        st = SE + 8 * jn + 2 * r
        sq += f"""v_add_f32 v{Y}, v{b+r}, v{b+4+r}
        v_add_f32 v{Y+1}, v{b+8+r}, v{b+12+r}
        v_lshlrev_b32 v{QF}, 16, v{QE+4*jn+r}
        v_and_b32 v{QF+1}, 0xffff0000, v{QE+4*jn+r}
        v_pk_fma_f32 v[{Y}:{Y+1}], v[{X}:{X+1}], v[20:21], v[{Y}:{Y+1}]
        v_pk_add_f32 v[{QC}:{QC+1}], v[{QF}:{QF+1}], v[{st}:{st+1}] op_sel:[0,1] op_sel_hi:[1,1] neg_lo:[0,1] neg_hi:[0,1]
        v_pk_mul_f32 v[{H}:{H+1}], v[{QC}:{QC+1}], v[{st}:{st+1}] op_sel_hi:[1,0]
        v_pk_fma_f32 v[{H}:{H+1}], v[{H}:{H+1}], v[{C1p}:{C1p+1}], v[{SAp}:{SAp+1}]
        v_pk_mul_f32 v[{H}:{H+1}], v[{H}:{H+1}], v[{Y}:{Y+1}]
        v_pk_fma_f32 v[{QC}:{QC+1}], v[{H}:{H+1}], v[{GAp}:{GAp+1}], v[{QC}:{QC+1}]
        v_pk_fma_f32 v[{QF}:{QF+1}], v[{H}:{H+1}], v[{GAp}:{GAp+1}], v[{QF}:{QF+1}]
        v_pk_mul_f32 v[{QC}:{QC+1}], v[{QC}:{QC+1}], v[{C2p}:{C2p+1}]
        v_cvt_pk_bf16_f32 v{XO+4*jn+r}, v{QF}, v{QF+1}
        v_cvt_pk_bf16_f32 v{XS+4*jn+r}, v{QC}, v{QC+1}""".split("\n")
        seqs.append(sq)
    for gi, grp in enumerate(zip(*seqs)):
        for x in grp: A(x)
        if gi < P("W1_EPI", 8): w1_issue(1)
    vm.op(f"buffer_store_dwordx4 v[{XS+4*jn}:{XS+4*jn+3}], v14, {W4}, s{T2} offen offset:{1024*jn} sc1 {os.environ.get('F_ST2', '')}", "st2")
    vm.op(f"buffer_store_dwordx4 v[{XO+4*jn}:{XO+4*jn+3}], v14, {W4}, s{T3} offen offset:{1024*jn} sc1 {os.environ.get('F_ST2', '')}", "st2")
stamp("st2 issued")
w1_issue(99)
TP, B1R, M1R = 144, 208, 140
vm.wait("tp")
for i in range(24): A(f"v_accvgpr_read_b32 v{TP+i}, a{192+i}")
for i in range(6): A(f"v_accvgpr_read_b32 v{B1R+i}, a{216+i}")
for sec in range(3):
    b = TP + 8 * sec
    A(f"""v_pk_add_f32 v[{b}:{b+1}], v[{b}:{b+1}], v[{b+2}:{b+3}]
    v_pk_add_f32 v[{b+4}:{b+5}], v[{b+4}:{b+5}], v[{b+6}:{b+7}]""")
for sec in range(3):
    b = TP + 8 * sec
    A(f"""v_pk_add_f32 v[{b}:{b+1}], v[{b}:{b+1}], v[{b+4}:{b+5}]
    v_cvt_pk_bf16_f32 v{b+2}, v{b}, v{b+1}""")
A(f"""v_lshlrev_b32 v{TP+8}, 16, v{TP+10}
v_and_b32 v{TP+9}, 0xffff0000, v{TP+10}
v_lshlrev_b32 v{TP+16}, 16, v{TP+18}
v_and_b32 v{TP+17}, 0xffff0000, v{TP+18}
v_add_f32 v{TP+8}, 1.0, v{TP+8}
v_add_f32 v{TP+9}, 1.0, v{TP+9}
v_cvt_pk_bf16_f32 v{TP+10}, v{TP+8}, v{TP+9}
v_lshlrev_b32 v9, 2, v0
v_add_u32 v9, {L_TB}, v9
v_lshlrev_b32 v10, 3, v0
v_add_u32 v10, {L_TGB}, v10
ds_write_b32 v9, v{TP+2}
ds_write_b32 v9, v{TP+2} offset:1024
ds_write_b32 v9, v{TP+10} offset:{L_TC2-L_TB}
ds_write_b32 v9, v{TP+10} offset:{L_TC2-L_TB+1024}
ds_write_b64 v10, v[{TP+16}:{TP+17}]
v_and_b32 v9, 1, v3
v_mul_u32_u24 v9, {L_TC2-L_TB}, v9
v_lshl_add_u32 v9, v4, 4, v9
s_lshl_b32 s{T0}, s{sROT1}, 6
s_add_u32 s{T0}, s{T0}, {L_TB}
v_add_u32 v9, s{T0}, v9""")
A(f"""v_lshlrev_b32 v5, 13, v4
s_lshl_b32 s{T0}, s{sWAVE}, 15
s_lshl_b32 s{T1}, s{sR}, 8
s_add_u32 s{T0}, s{T0}, s{T1}
v_add_u32 v5, s{T0}, v5
s_and_b32 s{T1}, s{sWAVE}, 1
s_lshl_b32 s{T1}, s{T1}, 2
v_xor_b32 v7, s{T1}, v3
v_lshl_add_u32 v5, v7, 4, v5
v_add_u32 v6, {X1P}, v5
v_add_u32 v5, {X1S}, v5
v_and_b32 v7, 1, v4
v_lshlrev_b32 v8, 10, v4
v_lshl_add_u32 v8, v3, 2, v8
v_add_u32 v8, {L_X}, v8""")
for sg in range(4):
    A(f"v_xor_b32 v10, {sg}, v7\nv_lshl_add_u32 v{16+sg}, v10, 6, v8")
A(f"v_xor_b32 v10, s{sWAVE}, v7\nv_lshl_add_u32 v141, v10, 6, v8\nv_subrev_u32 v141, {L_X-L_XP}, v141")
A(f"""v_lshlrev_b32 v10, 4, v2
s_lshl_b32 s{T0}, s{sWAVE}, 10
v_add_u32 v11, s{T0}, v10
s_mul_i32 s{T0}, s{sFG}, {2*86*1024}
s_add_u32 s{T0}, s{T0}, {W2P}
v_add_u32 v20, s{T0}, v11
v_add_u32 v21, {86*1024}, v20
s_mul_i32 s{T0}, s{sR}, {2*86*1024}
s_add_u32 s{T0}, s{T0}, {HID}
v_add_u32 v22, s{T0}, v11
v_add_u32 v23, {86*1024}, v22
v_add_u32 v12, {F2}, v13
s_mul_i32 s{T0}, s{sWAVE}, 384
s_add_u32 s{T0}, s{T0}, {L_BB}
v_lshl_add_u32 v14, v4, 4, s{T0}
""")
vm.wait("st2", extra="lgkmcnt(0)")
A("s_barrier")
set_flag(0, F2, f"s_mov_b32 s{T0}, s2", 10, 11)
stamp("flag2")
MBF = 64
for t in range(16):
    A(f"ds_read_b128 v[{MBF+4*t}:{MBF+4*t+3}], v9 offset:{64*t}")
MD = 24
for i in range(12): A(f"v_mov_b32 v{MD+i}, 0")
A("s_waitcnt lgkmcnt(0)")
for t in range(16):
    vm.wait(f"w1_{t}")
    for j in range(3):
        A(f"v_mfma_f32_16x16x32_bf16 v[{MD+4*j}:{MD+4*j+3}], a[{(t*3+j)*4}:{(t*3+j)*4+3}], v[{MBF+4*t}:{MBF+4*t+3}], v[{MD+4*j}:{MD+4*j+3}]")
stamp("MB pass done")
def w2reg(i, cb):
    k = 2 * i + cb
    return f"a[{192+4*k}:{195+4*k}]" if k < 16 else f"v[{252-4*(k-16)}:{255-4*(k-16)}]"
w2q = [(i, cb) for i in range(22) for cb in range(2)]
def w2_issue(n):
    for _ in range(n):
        if not w2q: return
        i, cb = w2q.pop(0)
        vm.op(f"buffer_load_dwordx4 {w2reg(i,cb)}, v{20+cb}, {W4}, s{ROT2[i]} offen sc1{' nt' if P('NTW',0) else ''}", "w2")
A("s_nop 7\ns_nop 1")
Bq = 36
for j in range(3):
    for r in range(4):
        A(f"v_mov_b32_dpp v{Bq+4*j+r}, v{MD+4*j+r} row_newbcast:0 row_mask:0xf bank_mask:0xf")
        A(f"v_mov_b32_dpp v{Bq+12+4*j+r}, v{MD+4*j+r} row_newbcast:1 row_mask:0xf bank_mask:0xf")
for j in range(3):
    A(f"""v_lshlrev_b32 v60, 16, v{B1R+2*j}
    v_and_b32 v61, 0xffff0000, v{B1R+2*j}
    v_lshlrev_b32 v62, 16, v{B1R+2*j+1}
    v_and_b32 v63, 0xffff0000, v{B1R+2*j+1}
    v_pk_add_f32 v[{Bq+4*j}:{Bq+4*j+1}], v[{Bq+4*j}:{Bq+4*j+1}], v[60:61]
    v_pk_add_f32 v[{Bq+4*j+2}:{Bq+4*j+3}], v[{Bq+4*j+2}:{Bq+4*j+3}], v[62:63]""")
A(f"s_mov_b32 s{SX}, 0x00010001\ns_mov_b32 s{SX+1}, 0x00010001\ns_mov_b64 exec, s[{SX}:{SX+1}]")
for i in range(6):
    A(f"ds_write_b128 v14, v[{Bq+4*i}:{Bq+4*i+3}] offset:{64*i}")
A("s_mov_b64 exec, -1")
G1 = 24; SAC = 128
A("s_waitcnt lgkmcnt(0)")
for i in range(48): A(f"v_mov_b32 v{G1+i}, 0")
stamp("pre poll2")
w2e = capture(lambda: w2_issue(P("W2_EARLY", 0)))
A(f"s_cmp_eq_u32 s{sWAVE}, 0\ns_cbranch_scc1 p2w0")
for x in w2e: A(x)
A("s_branch p2join\np2w0:")
poll(12, 4, 4096, 136, "p2")
for x in w2e: A(x)
A("p2join:")
A(f"""s_cmp_lg_u32 s2, 0
s_cbranch_scc1 noep
s_cmp_lg_u32 s{sWAVE}, 0
s_cbranch_scc1 noep
v_mov_b32 v10, {EPOCH}
v_mov_b32 v11, s{sEP}
s_mov_b64 exec, 1
buffer_store_dword v11, v10, {W4}, 0 offen sc1
s_mov_b64 exec, -1
noep:
s_barrier""")
stamp("poll2 done")
A(f"s_lshl_b32 s{T5}, s{sWAVE}, 10\ns_add_u32 s{T5}, s{T5}, {L_X}")
for c in range(16):
    A(f"""s_add_u32 s{T0}, s{T5}, {4096*c}
    s_mov_b32 m0, s{T0}
    s_lshl_b32 s{T1}, s{ROT1[c]}, 7""")
    vm.op(f"buffer_load_dwordx4 v5, {W4}, s{T1} offen sc1{' nt' if P('NTX',0) else ''} lds", f"x{c//4}")
A(f"s_sub_u32 s{T5}, s{T5}, {L_X - L_XP}")
def xp_issue(c):
    A(f"""s_add_u32 s{T0}, s{T5}, {4096*c}
    s_mov_b32 m0, s{T0}
    s_lshl_b32 s{T1}, s{ROT1[c]}, 7""")
    vm.op(f"buffer_load_dwordx4 v6, {W4}, s{T1} offen sc1{' nt' if P('NTX',0) else ''} lds", f"p{c//4}")
BF = [72, 88]; PF = [104, 112]; ONE = 120; D1 = 136; D2 = 128
def bl(t, st):
    for sg in range(4):
        r = BF[st] + 4 * sg
        A(f"ds_read2st64_b32 v[{r}:{r+1}], v{16+sg} offset0:{16*t} offset1:{16*t+1}")
        A(f"ds_read2st64_b32 v[{r+2}:{r+3}], v{16+sg} offset0:{16*t+2} offset1:{16*t+3}")
def pl(u, r):
    A(f"ds_read2st64_b32 v[{r}:{r+1}], v141 offset0:{16*u} offset1:{16*u+1}")
    A(f"ds_read2st64_b32 v[{r+2}:{r+3}], v141 offset0:{16*u+2} offset1:{16*u+3}")
for i in range(4): A(f"v_mov_b32 v{ONE+i}, s{sONES}\nv_mov_b32 v{D1+i}, 0\nv_mov_b32 v{D2+i}, 0")
vm.wait("x0"); A("s_barrier")
stamp("x chunk0")
W2_T0, W2_EVERY = P("W2_T0", 1), P("W2_EVERY", 3)
xpq = list(range(16))
SAC = 128
BFP = [72, 80]
PFX = [[88, 92], [96, 100]]
def blp(p, t, st):
    for k in range(2):
        sg = 2 * p + k; r = BFP[st] + 4 * k
        A(f"ds_read2st64_b32 v[{r}:{r+1}], v{16+sg} offset0:{16*t} offset1:{16*t+1}")
        A(f"ds_read2st64_b32 v[{r+2}:{r+3}], v{16+sg} offset0:{16*t+2} offset1:{16*t+3}")
A(f"""v_lshrrev_b32 v5, 1, v4
v_lshlrev_b32 v5, 9, v5
v_lshl_add_u32 v5, v3, 4, v5
v_and_b32 v7, 1, v4
v_lshl_add_u32 v5, v7, 3, v5
s_mul_i32 s{T0}, s{sR}, {2*86*1024}
s_lshl_b32 s{T1}, s46, 10
s_add_u32 s{T0}, s{T0}, s{T1}
s_add_u32 s{T0}, s{T0}, {HID}
v_add_u32 v8, s{T0}, v5
v_add_u32 v9, 4096, v8
v_add_u32 v10, 8192, v8
v_add_u32 v10, s47, v10
v_min_u32 v15, 7, v2
v_lshlrev_b32 v15, 6, v15
s_lshl_b32 s{T0}, s{sR}, 9
v_add_u32 v15, s{T0}, v15""")
def epi(p):
    BBr, CSr = 104, 116
    for j in range(3):
        seqs = []
        for k in range(2):
            sg = 2 * p + k
            c = G1 + (j * 4 + sg) * 4
            sp = SAC + 2 * sg
            TT = 72 + 4 * k
            sq = []
            for hh in range(2):
                sq.append(f"v_pk_fma_f32 v[{TT+2*hh}:{TT+2*hh+1}], v[{CSr+4*j+2*hh}:{CSr+4*j+2*hh+1}], v[{sp}:{sp+1}], v[{BBr+4*j+2*hh}:{BBr+4*j+2*hh+1}] op_sel:[0,1,0] op_sel_hi:[1,1,1] neg_lo:[0,1,0] neg_hi:[0,1,0]")
            for hh in range(2):
                sq.append(f"v_pk_fma_f32 v[{c+2*hh}:{c+2*hh+1}], v[{c+2*hh}:{c+2*hh+1}], v[{sp}:{sp+1}], v[{TT+2*hh}:{TT+2*hh+1}] op_sel_hi:[1,0,1]")
            for r in range(4): sq.append(f"v_max_f32 v{c+r}, 0, v{c+r}")
            sq += [f"v_pk_mul_f32 v[{c}:{c+1}], v[{c}:{c+1}], v[{c}:{c+1}]",
                   f"v_pk_mul_f32 v[{c+2}:{c+3}], v[{c+2}:{c+3}], v[{c+2}:{c+3}]",
                   f"v_cvt_pk_bf16_f32 v{c}, v{c}, v{c+1}",
                   f"v_cvt_pk_bf16_f32 v{c+1}, v{c+2}, v{c+3}"]
            seqs.append(sq)
        for grp in zip(*seqs):
            for x in grp: A(x)
        for k in range(2):
            c = G1 + (j * 4 + 2 * p + k) * 4
            vm.op(f"buffer_store_dwordx2 v[{c}:{c+1}], v{8+j}, {W4}, {'s%d'%T3 if p else '0'} offen offset:{256*k} sc1 {os.environ.get('F_ST3', '')}", f"st3{p}")
fidx = f"s_lshl_b32 s{T0}, s{sR}, 3\ns_add_u32 s{T0}, s{T0}, s{sFG}"
for p in range(2):
    blp(p, 0, 0)
    for t in range(16):
        st = t & 1
        lds = []
        if p == 0 and t in (3, 7, 11):
            vm.wait(*{3: ["x1"], 7: ["x2", "p1"], 11: ["x3", "p3"]}[t]); A("s_barrier")
        if p == 1 and t == P("F3A_T", 5):
            vm.wait("st30"); A("s_barrier")
            set_flag(0, F3, fidx, 92, 93)
        if t + 1 < 16: lds += capture(lambda: blp(p, t + 1, st ^ 1))
        if p == 0 and 8 <= t + 1 < 16:
            for k in range(2): lds += capture(lambda: pl(2 * (t + 1 - 8) + k, PFX[st ^ 1][k]))
        A("s_waitcnt lgkmcnt(0)")
        mfs = []
        for j in range(3):
            for k in range(2):
                c = G1 + (j * 4 + 2 * p + k) * 4
                mfs.append(f"v_mfma_f32_16x16x32_bf16 v[{c}:{c+3}], a[{(t*3+j)*4}:{(t*3+j)*4+3}], v[{BFP[st]+4*k}:{BFP[st]+4*k+3}], v[{c}:{c+3}]")
        if p == 0 and t >= 8:
            for k in range(2):
                q_ = PFX[st][k]
                mfs.insert(0, f"v_mfma_f32_16x16x32_bf16 v[{D1}:{D1+3}], v[{ONE}:{ONE+3}], v[{q_}:{q_+3}], v[{D1}:{D1+3}]")
                mfs.insert(0, f"v_mfma_f32_16x16x32_bf16 v[{D2}:{D2+3}], v[{q_}:{q_+3}], v[{q_}:{q_+3}], v[{D2}:{D2+3}]")
        for mf, x in enumerate(mfs, 1):
            A(x)
            for _ in range(2):
                if lds: A(lds.pop(0))
            if mf % 2 == 0 and xpq: xp_issue(xpq.pop(0))
            elif (p == 1 or t >= W2_T0) and mf % W2_EVERY == 0: w2_issue(1)
        assert not lds
    if p == 0:
        A(f"""v_and_b32 v124, 3, v3
        v_lshrrev_b32 v125, 2, v3
        v_cmp_eq_u32 s[{SX}:{SX+1}], v125, v4
        v_lshlrev_b32 v90, 3, v3
        s_lshl_b32 s{T0}, s{sWAVE}, 7
        s_add_u32 s{T0}, s{T0}, {L_ST}
        v_add_u32 v91, s{T0}, v90
        v_add_u32 v90, {L_ST}, v90
        v_cmp_eq_u32 vcc, 1, v124
        s_nop 1
        v_cndmask_b32 v{D2}, v{D2}, v{D2+1}, vcc
        v_cmp_eq_u32 vcc, 2, v124
        s_nop 1
        v_cndmask_b32 v{D2}, v{D2}, v{D2+2}, vcc
        v_cmp_eq_u32 vcc, 3, v124
        s_nop 1
        v_cndmask_b32 v{D2}, v{D2}, v{D2+3}, vcc""")
        ln_final(D1, D2, 88, 89)
        A(f"""v_sub_f32 v89, v89, v{M1R}
        v_mul_f32 v89, v89, v88
        s_mov_b64 exec, s[{SX}:{SX+1}]
        ds_write_b64 v91, v[88:89]
        s_mov_b64 exec, -1""")
        for i in range(6):
            A(f"ds_read_b128 v[{104+4*i}:{107+4*i}], v14 offset:{64*i}")
        A(f"s_mov_b32 s{T3}, {86*1024}\ns_waitcnt lgkmcnt(0)\ns_barrier")
        for sg in range(4):
            A(f"ds_read_b64 v[{SAC+2*sg}:{SAC+2*sg+1}], v90 offset:{128*sg}")
        A("s_waitcnt lgkmcnt(0)")
        stamp("gemm1 pass A done")
    else:
        A("s_nop 7")
        stamp("gemm1 pass B done")
    epi(p)
stamp("st3 issued")
XR, BR, GR = 96, 104, 112
A(f"""v_and_b32 v8, 31, v2
v_lshrrev_b32 v9, 5, v2
s_lshr_b32 s{T0}, s{sWAVE}, 1
s_and_b32 s{T1}, s{sWAVE}, 1
s_lshl_b32 s{T2}, s{sFG}, 7
s_lshl_b32 s{T4}, s{T1}, 6
s_add_u32 s{T2}, s{T2}, s{T4}
v_lshlrev_b32 v10, 3, v9
v_add_u32 v10, s{T2}, v10
v_lshlrev_b32 v11, 1, v10
v_add_u32 v11, {L_TGB}, v11
s_lshl_b32 s{T4}, s{sR}, 6
s_lshl_b32 s{T5}, s{T0}, 5
s_add_u32 s{T4}, s{T4}, s{T5}
v_add_u32 v12, s{T4}, v8
v_lshlrev_b32 v19, 11, v10
v_lshl_add_u32 v19, v12, 2, v19
v_add_u32 v19, {X1P}, v19
v_lshl_add_u32 v12, v12, 10, v10
v_add_u32 v16, {F3}, v15
v_add_u32 v17, {F3B}, v15""")
vm.op(f"buffer_load_dword v18, v16, {W4}, 0 offen sc1", "f3a")
w2_issue(99)
vm.wait("st31")
A("s_barrier")
set_flag(0, F3B, fidx, 92, 93)
stamp("flag3")
G2 = 24
for i in range(64): A(f"v_mov_b32 v{G2+i}, 0")
def fcheck(tag, reg, addr, lab):
    vm.wait(tag)
    A(f"""v_cmp_ne_u32 vcc, s{sEP}, v{reg}
    s_nop 1
    s_cbranch_vccz {lab}_done""")
    poll(addr, 1, 0, reg, lab, only_wave0=False)
fcheck("f3a", 18, 16, "p3a")
stamp("poll3 done")
HD = P("HD", 6)
hq = [(sb, i) for sb in range(2) for i in range(22)]
def h_issue():
    sb, i = hq.pop(0)
    vm.op(f"buffer_load_dwordx4 a[{(22*sb+i)*4}:{(22*sb+i)*4+3}], v{22+sb}, {W4}, s{ROT2[i]} offen sc1{' nt' if P('NTH',0) else ''}", f"h{sb}_{i}")
for _ in range(HD): h_issue()
for q in range(4):
    A(f"ds_read_b128 v[{GR+4*q}:{GR+4*q+3}], v11 offset:{32*q}")
F3B_I = P("F3B_I", 12)
for sb in range(2):
    for i in range(22):
        vm.wait(f"h{sb}_{i}")
        for cb in range(2):
            c = G2 + 16 * (2 * sb + cb)
            A(f"v_mfma_f32_32x32x16_bf16 v[{c}:{c+15}], {w2reg(i,cb)}, a[{(22*sb+i)*4}:{(22*sb+i)*4+3}], v[{c}:{c+15}]")
        if sb == 0 and i == F3B_I: vm.op(f"buffer_load_dword v18, v17, {W4}, 0 offen sc1", "f3b")
        if hq and hq[0] == (1, 0): fcheck("f3b", 18, 17, "p3b")
        if hq: h_issue()
        if sb == 1 and i == 2:
            for q in range(4):
                for pp in range(2):
                    A(f"s_mov_b32 s{T1}, {8192*(4*q+pp)}")
                    vm.op(f"buffer_load_dword v{XR+2*q+pp}, v19, {W4}, s{T1} offen sc1", "xr")
            for q in range(4):
                vm.op(f"buffer_load_dwordx2 v[{BR+2*q}:{BR+2*q+1}], v10, s[{SM2}:{SM2+3}], 0 offen offset:{16*q}", "xr")
vm.wait("xr")
stamp("gemm2 mfma done")
A(f"""s_nop 7
s_nop 3
v_lshlrev_b32 v13, 4, v2""")
for T in range(4):
    lab = A.label("skip")
    A(f"""s_cmp_eq_u32 s{sWAVE}, {T}
    s_cbranch_scc1 {lab}
    s_sub_u32 s{T0}, s{sWAVE}, {T+1}
    s_and_b32 s{T0}, s{T0}, 3
    s_lshl_b32 s{T0}, s{T0}, 12
    s_add_u32 s{T0}, s{T0}, {L_RED + T*12288}
    v_add_u32 v14, s{T0}, v13""")
    for q in range(4):
        A(f"ds_write_b128 v14, v[{G2+16*T+4*q}:{G2+16*T+4*q+3}] offset:{1024*q}")
    A(f"{lab}:")
OWN = 144
for T in range(4):
    lab = A.label("mv")
    A(f"s_cmp_lg_u32 s{sWAVE}, {T}\ns_cbranch_scc1 {lab}")
    for i in range(16): A(f"v_mov_b32 v{OWN+i}, v{G2+16*T+i}")
    A(f"{lab}:")
A(f"""s_mul_i32 s{T0}, s{sWAVE}, 12288
s_add_u32 s{T0}, s{T0}, {L_RED}
v_add_u32 v14, s{T0}, v13
s_waitcnt lgkmcnt(0)
s_barrier""")
for q in range(4):
    for sl in range(3):
        A(f"ds_read_b128 v[{G2+16*sl+4*q}:{G2+16*sl+4*q+3}], v14 offset:{4096*sl+1024*q}")
U = 160
for q in range(4):
    c = OWN + 4 * q
    A(f"""v_lshlrev_b32 v{U}, 16, v{BR+2*q}
    v_and_b32 v{U+1}, 0xffff0000, v{BR+2*q}
    v_lshlrev_b32 v{U+2}, 16, v{BR+2*q+1}
    v_and_b32 v{U+3}, 0xffff0000, v{BR+2*q+1}
    v_pk_add_f32 v[{c}:{c+1}], v[{c}:{c+1}], v[{U}:{U+1}]
    v_pk_add_f32 v[{c+2}:{c+3}], v[{c+2}:{c+3}], v[{U+2}:{U+3}]
    v_lshlrev_b32 v{U}, 16, v{XR+2*q}
    v_and_b32 v{U+1}, 0xffff0000, v{XR+2*q}
    v_lshlrev_b32 v{U+2}, 16, v{XR+2*q+1}
    v_and_b32 v{U+3}, 0xffff0000, v{XR+2*q+1}
    s_waitcnt lgkmcnt({3*(3-q)})""")
    for sl in range(3):
        for hh in range(2):
            A(f"v_pk_add_f32 v[{c+2*hh}:{c+2*hh+1}], v[{c+2*hh}:{c+2*hh+1}], v[{G2+16*sl+4*q+2*hh}:{G2+16*sl+4*q+2*hh+1}]")
    A(f"""v_pk_fma_f32 v[{c}:{c+1}], v[{c}:{c+1}], v[{GR+4*q}:{GR+4*q+1}], v[{U}:{U+1}]
    v_pk_fma_f32 v[{c+2}:{c+3}], v[{c+2}:{c+3}], v[{GR+4*q+2}:{GR+4*q+3}], v[{U+2}:{U+3}]
    v_cvt_pk_bf16_f32 v{c}, v{c}, v{c+1}
    v_cvt_pk_bf16_f32 v{c+1}, v{c+2}, v{c+3}
    buffer_store_dwordx2 v[{c}:{c+1}], v12, s[{SOUT}:{SOUT+3}], 0 offen offset:{16*q}{' nt' if P('NTO',0) else ''}""")
if STAMP:
    stamp("out issued")
    A("s_waitcnt vmcnt(0)")
    stamp("end")
    A("s_memtime s[100:101]\ns_waitcnt lgkmcnt(0)\nv_writelane_b32 v143, s100, 63")
    A(f"""v_lshlrev_b32 v1, 2, v2
    s_lshl_b32 s{T0}, s2, 10
    s_lshl_b32 s{T1}, s{sWAVE}, 8
    s_add_u32 s{T0}, s{T0}, s{T1}
    s_add_u32 s{T0}, s{T0}, {TS}
    v_add_u32 v1, s{T0}, v1
    buffer_store_dword v143, v1, {W4}, 0 offen""")
A("k_done:\ns_endpgm\nk_end:")

hdr = f"; @launch grid=(256,1,1) block=(256,1,1) lds={LDS_SZ}\n.amdgcn_target \"amdgcn-amd-amdhsa--gfx950\"\n.text\n"
out = hdr + A.text() + '.section .rodata,"a"\n' + A.kd(name, 256, 102, accum=256, agpr=256)
open(sys.argv[1], "w").write(out)
print("stamps", nst[0], "lds", LDS_SZ, file=sys.stderr)
```

```python
import sys, os
from asmlib import *

STAMP = os.environ.get("STAMP") == "1"
def P(n, d): return int(os.environ.get(n, d))
S, D, F = 2048, 512, 1376
UR, QP, X1P, X1S, HID, W1P, W2P = 0x0, 0x200000, 0x400000, 0x600000, 0x800000, 0xE00000, 0x1000000
MODF, ST1 = 0x1200000, 0x1210000
F1A, F1B, F2, F3, EPOCH, F3B = 0x1300000, 0x1304000, 0x1308000, 0x130C000, 0x1310000, 0x1314000
TS = 0x1400000
WS_SZ = 0x1500000
OOB = 0x40000000
SZ_SD = S * D * 2
SZ_W = D * F * 2
POLL_MAX = 200000

OSZ = 2368; USZ = 2 * OSZ
L_U = 0
L_KF = 9472; KFSZ = 8256
L_MODP = L_KF + 2 * KFSZ
L_XP = 0
L_X = 65536
L_RED = L_X
L_TB = 131072
L_TC2 = L_TB + 2048 + 64
L_TGB = L_TC2 + 2048 + 64
L_BB = L_TGB + 2048
L_ST = L_BB + 4 * 384
LDS_SZ = L_ST + 512
assert LDS_SZ <= 160 * 1024 and L_MODP + 4096 <= 65536

WS, SK, SV, SQ, SM1, SKF, SM2, SC, SWM, SPK, SOUT = 4, 8, 12, 16, 20, 24, 28, 32, 36, 40, 48
sWAVE, sXG, sJ, sEP = 52, 53, 54, 55
sR, sFG, sD0, sONES, sM = 96, 97, 98, 99, 3
T0, T1, T2, T3, T4, T5 = 56, 57, 58, 59, 60, 61
SX = 62
ROT1 = [64 + i for i in range(16)]
ROT2 = [80 + i for i in range(16)] + [8 + i for i in range(6)]
sROT1 = 14

A = Asm()
name = "adaLN_cond__ssm_conv_h3__dense_activation_squared_relu__prompt_kernel"
W4 = f"s[{WS}:{WS+3}]"

class VM:
    def __init__(self): self.q = []
    def op(self, text, tag):
        A(text); self.q.append(tag)
    def wait(self, *tags, extra=""):
        last = max((i for i, t in enumerate(self.q) if t in tags), default=-1)
        n = len(self.q) - 1 - last
        if last >= 0:
            assert n <= 63, (tags, n)
            A(f"s_waitcnt vmcnt({n}) {extra}".rstrip())
            self.q = self.q[last + 1:]
        elif extra:
            A(f"s_waitcnt {extra}")
vm = VM()

nst = [0]
def stamp(label=""):
    if not STAMP: return
    i = nst[0]; nst[0] += 1
    print(f"stamp {i}: {label}", file=sys.stderr)
    A(f"""s_memrealtime s[100:101]
    s_waitcnt lgkmcnt(0)
    v_writelane_b32 v143, s100, {i}""")

def rnd1(r):
    A(f"v_cvt_pk_bf16_f32 v{r}, v{r}, v{r}\nv_lshlrev_b32 v{r}, 16, v{r}")
def capture(fn):
    save = A.lines; A.lines = []
    fn()
    tmp = [x.strip() for x in A.lines]; A.lines = save
    return tmp

def poll(addr_v, nloads, stride_imm, dst, lab, only_wave0=True):
    if only_wave0:
        A(f"s_cmp_lg_u32 s{sWAVE}, 0\ns_cbranch_scc1 {lab}_done")
    A(f"s_mov_b32 s{T0}, 0\n{lab}:")
    for k in range(nloads):
        A(f"s_mov_b32 s{T1}, {k*stride_imm}\nbuffer_load_dword v{dst+k}, v{addr_v}, {W4}, s{T1} offen sc1")
    A("s_waitcnt vmcnt(0)")
    for k in range(nloads):
        A(f"v_xor_b32 v{dst+k}, s{sEP}, v{dst+k}")
    for k in range(1, nloads):
        A(f"v_or_b32 v{dst}, v{dst}, v{dst+k}")
    A(f"""v_cmp_ne_u32 vcc, 0, v{dst}
    s_add_u32 s{T0}, s{T0}, 1
    s_cmp_ge_u32 s{T0}, {POLL_MAX}
    s_cbranch_scc1 {lab}_done
    s_cbranch_vccz {lab}_done
    s_mov_b64 exec, vcc
    s_sleep {P("PSLEEP", 2)}
    s_branch {lab}
    {lab}_done:
    s_mov_b64 exec, -1""")

def set_flag(wave, base, idx_code, va, vd, pre=""):
    lab = A.label("fl")
    A(f"""s_cmp_lg_u32 s{sWAVE}, {wave}
    s_cbranch_scc1 {lab}
    {pre}
    {idx_code}
    s_lshl_b32 s{T0}, s{T0}, 6
    s_add_u32 s{T0}, s{T0}, {base}
    v_mov_b32 v{va}, s{T0}
    v_mov_b32 v{vd}, s{sEP}
    s_mov_b64 exec, 1
    buffer_store_dword v{vd}, v{va}, {W4}, 0 offen sc1
    s_mov_b64 exec, -1
    {lab}:""".replace("    \n", ""))

def ln_final(sm, sq, rs_out, m_out):
    A(f"""v_mul_f32 v{m_out}, 0x3b000000, v{sm}
    v_mul_f32 v{rs_out}, 0x3b000000, v{sq}
    v_fma_f32 v{rs_out}, -v{m_out}, v{m_out}, v{rs_out}
    v_max_f32 v{rs_out}, 0, v{rs_out}""")
    rnd1(rs_out); rnd1(m_out)
    A(f"v_add_f32 v{rs_out}, 0x3727c5ac, v{rs_out}")
    rnd1(rs_out)
    A(f"v_sqrt_f32 v{rs_out}, v{rs_out}\ns_nop 0")
    rnd1(rs_out)
    A(f"v_rcp_f32 v{rs_out}, v{rs_out}\ns_nop 0")

A.kernel_begin(name)
NCP = P("NCP", 6)
A(f"""s_cmp_ge_u32 s2, 256
s_cbranch_scc1 k_done
s_load_dwordx16 s[64:79], s[0:1], 0
s_load_dwordx16 s[80:95], s[0:1], 64
s_getpc_b64 s[48:49]
k_pc:""")
A(f"""
v_lshrrev_b32 v1, 6, v0
v_and_b32 v2, 63, v0
v_readfirstlane_b32 s{sWAVE}, v1
s_and_b32 s{sXG}, s2, 7
s_lshr_b32 s{sJ}, s2, 3
v_and_b32 v3, 15, v2
v_lshrrev_b32 v4, 4, v2
s_lshr_b32 s{T0}, s{sJ}, 3
s_lshl_b32 s{T0}, s{T0}, 3
s_add_u32 s{sR}, s{sXG}, s{T0}
s_and_b32 s{sFG}, s{sJ}, 7
s_lshl_b32 s{sD0}, s{sXG}, 6
s_lshl_b32 s{T0}, s{sJ}, 1
s_add_u32 s{sD0}, s{sD0}, s{T0}
s_mov_b32 s{sONES}, 0x3f803f80""")
stamp("start")
if STAMP: A("s_memtime s[100:101]\ns_waitcnt lgkmcnt(0)\nv_writelane_b32 v143, s100, 62")
KT, VT, QT, US, QS, PKT = L_X, L_X + 9216, L_X + 17408, L_X + 25600, L_X + 33792, L_X + 41984
A(f"""v_lshrrev_b32 v5, 3, v2
v_lshlrev_b32 v5, 10, v5
v_and_b32 v6, 7, v2
v_lshl_add_u32 v5, v6, 4, v5          ; (l>>3)*1024 + (l&7)*16
s_lshl_b32 s{T0}, s{sJ}, 16
s_lshl_b32 s{T1}, s{sXG}, 7
s_add_u32 s{T0}, s{T0}, s{T1}
v_add_u32 v7, s{T0}, v5
v_subrev_u32 v7, 8192, v7
s_lshl_b32 s{T1}, s{sWAVE}, 14
s_add_u32 s{T0}, s{T0}, s{T1}
v_add_u32 v5, s{T0}, v5
v_and_b32 v12, 31, v0                 ; cp
v_lshrrev_b32 v13, 5, v0              ; rg
v_lshlrev_b32 v8, 4, v12
s_lshl_b32 s{T0}, s{sXG}, 9
v_add_u32 v8, s{T0}, v8
s_lshl_b32 s{T4}, s{sWAVE}, 11         ; 2048*w
s_movk_i32 s{T5}, 8192
s_waitcnt lgkmcnt(0)""")
if P("TLBT", 0):
    for p in (66, 68, 64, 70, 72, 74, 86, 88, 78, 82, 80, 84, 90):
        A(f"s_load_dword s0, s[{p}:{p+1}], 0")
    A(f"s_add_u32 s76, s88, 0x200000\ns_addc_u32 s77, s89, 0\ns_load_dword s0, s[76:77], 0")
    A(f"s_mov_b32 s76, s94\ns_mov_b32 s77, s95")
    for pg in range(10):
        A(f"s_load_dword s0, s[76:77], 0")
        if pg < 9: A(f"s_add_u32 s76, s76, 0x200000\ns_addc_u32 s77, s77, 0")
A.srd(SK, 66, SZ_SD); A.srd(SV, 68, SZ_SD); A.srd(SM1, 70, 4096); A.srd(SQ, 64, SZ_SD)
A(f"""s_cmp_lg_u32 s{sWAVE}, 3
s_cbranch_scc1 nohalo
s_mov_b32 m0, {KT}
s_nop 0
buffer_load_dwordx4 v7, s[{SK}:{SK+3}], 0 offen lds
nohalo:""")
W = 44
NTQ = lambda srd: ' nt' if (P('NT', 1) and (srd != SQ or P('NTQ', 1))) else ''
for (base, srd, tag) in ((KT + 1024, SK, "k"), (VT, SV, "k"), (QT, SQ, "k")):
    for i in range(2):
        A(f"s_add_u32 s{T0}, s{T4}, {base + 1024*i}\ns_mov_b32 m0, s{T0}\ns_nop 0")
        vm.op(f"buffer_load_dwordx4 v5, s[{srd}:{srd+3}], {'s%d'%T5 if i else '0'} offen{NTQ(srd)} lds", tag)
vm.op(f"buffer_load_dwordx4 v[{W}:{W+3}], v8, s[{SM1}:{SM1+3}], 0 offen", "k")
A(f"""s_mul_i32 s{T0}, s{sJ}, 43
s_lshr_b32 s{T0}, s{T0}, 8              ; j/6
s_mul_i32 s{T0}, s{T0}, 6
s_sub_u32 s{T0}, s{sJ}, s{T0}           ; j%6
s_lshl_b32 s{T0}, s{T0}, 12
v_lshl_add_u32 v9, v0, 4, s{T0}
v_min_u32 v9, k_end-k_pc-16, v9""")
vm.op(f"global_load_dwordx4 a[0:3], v9, s[48:49]", "code")
A.srd(WS, 94, WS_SZ); A.srd(SKF, 72, SZ_SD); A.srd(SM2, 74, 1024); A.srd(SC, 86, 1024); A.srd(SWM, 88, 512 * 3072 * 2)
A.srd(SOUT, 90, SZ_SD)
A(f"v_mov_b32 v142, {EPOCH}")
vm.op(f"buffer_load_dword v142, v142, {W4}, 0 offen sc1", "ep")
KF0, DD, SR, CC, WM = 48, 58, 60, 68, 72
A(f"""v_lshlrev_b32 v9, 4, v0
s_lshl_b32 s{T0}, s{sD0}, 12
v_add_u32 v9, s{T0}, v9
s_movk_i32 s{T1}, 4096""")
vm.op(f"buffer_load_dwordx4 v[{KF0}:{KF0+3}], v9, s[{SKF}:{SKF+3}], 0 offen{' nt' if P('NT',1) else ''}", "kf")
vm.op(f"buffer_load_dwordx4 v[{KF0+4}:{KF0+7}], v9, s[{SKF}:{SKF+3}], s{T1} offen{' nt' if P('NT',1) else ''}", "kf")
A(f"s_lshl_b32 s{T0}, s{sD0}, 1\nv_mov_b32 v9, s{T0}")
vm.op(f"buffer_load_dword v{DD}, v9, s[{SM2}:{SM2+3}], 0 offen", "D")
PS, PA, PD = 88, 92, 90
A(f"""s_sub_u32 s{T0}, s2, 74
v_lshlrev_b32 v{PD}, 4, v2
v_bfe_u32 v9, v2, 2, 2                ; r
v_and_b32 v10, 3, v2                  ; c
s_cmp_lt_u32 s{T0}, 96
s_cbranch_scc0 pk_w2""")
A.srd(SPK, 78, SZ_W)
A(f"""s_and_b32 s{T1}, s{T0}, 15              ; t
s_lshr_b32 s{T2}, s{T0}, 4              ; Fgb
v_lshrrev_b32 v11, 5, v2
v_bfe_u32 v14, v2, 1, 4
s_and_b32 s{T3}, s{sWAVE}, 1
s_lshl_b32 s{T3}, s{T3}, 2
v_or_b32 v15, s{T3}, v11
v_xor_b32 v14, v14, v15               ; i' even
v_xor_b32 v15, 2, v14                 ; i' odd
v_mul_u32_u24 v11, 2752, v11
v_and_b32 v16, 1, v2
v_lshl_add_u32 v11, v16, 4, v11
s_mul_i32 s{T3}, s{T1}, {32*2752}
s_mul_i32 s{T4}, s{sWAVE}, {8*2752}
s_add_u32 s{T3}, s{T3}, s{T4}
s_lshl_b32 s{T4}, s{T2}, 9
s_add_u32 s{T3}, s{T3}, s{T4}
v_add_u32 v11, s{T3}, v11
v_lshl_add_u32 v{PS}, v14, 5, v11
v_lshl_add_u32 v{PS+1}, v15, 5, v11
s_movk_i32 s44, 5504
v_and_b32 v14, 1, v4
v_lshl_or_b32 v14, v14, 2, v9
v_lshl_add_u32 v15, v4, 3, v9
v_lshlrev_b32 v15, 9, v15
v_lshl_add_u32 v15, v10, 3, v15
v_add_u32 v15, {PKT}, v15
s_lshl_b32 s{T3}, s{sWAVE}, 2
v_xor_b32 v14, s{T3}, v14""")
for u in range(4):
    A(f"""v_xor_b32 v16, {u}, v14
    v_lshl_add_u32 v{PA+u}, v16, 5, v15
    v_add_u32 v{PA+4+u}, 2048, v{PA+u}""")
A(f"""s_lshl_b32 s{T2}, s{T2}, 2
s_add_u32 s{T2}, s{T2}, s{sWAVE}        ; Fg
s_lshl_b32 s{T3}, s{T2}, 16
s_lshl_b32 s{T4}, s{T1}, 10
s_add_u32 s{T3}, s{T3}, s{T4}
s_add_u32 s{T3}, s{T3}, {W1P}
s_cmp_ge_u32 s{T2}, 22
s_cselect_b32 s{T3}, {OOB}, s{T3}
v_add_u32 v{PD}, s{T3}, v{PD}
s_movk_i32 s45, 16384
s_cmp_eq_u32 s{T2}, 21
s_cselect_b32 s46, {OOB}, 0
s_branch pk_go
pk_w2:""")
A.srd(SPK, 82, SZ_W)
A(f"""s_sub_u32 s{T1}, s2, 170                ; F
v_bfe_u32 v14, v2, 2, 2
v_xor_b32 v14, v14, v4
v_lshlrev_b32 v11, 10, v4
v_lshl_add_u32 v11, v14, 6, v11
v_lshl_add_u32 v11, v10, 4, v11
s_lshl_b32 s{T3}, s{T1}, 14
s_lshl_b32 s{T4}, s{sWAVE}, 8
s_add_u32 s{T3}, s{T3}, s{T4}
s_cmp_ge_u32 s{T1}, 86
s_cselect_b32 s{T3}, {OOB}, s{T3}
v_add_u32 v{PS}, s{T3}, v11
v_mov_b32 v{PS+1}, v{PS}
s_movk_i32 s44, 4096
v_lshrrev_b32 v14, 1, v4
v_lshl_add_u32 v14, v14, 3, v9
v_lshlrev_b32 v14, 8, v14
v_and_b32 v15, 1, v4
v_lshl_add_u32 v14, v15, 5, v14
v_lshl_add_u32 v14, v10, 3, v14
s_lshl_b32 s{T3}, s{sWAVE}, 12
s_add_u32 s{T3}, s{T3}, {PKT}
v_add_u32 v14, s{T3}, v14""")
for u in range(4):
    A(f"""v_xor_b32 v16, {u}, v9
    v_lshl_add_u32 v{PA+u}, v16, 6, v14
    v_add_u32 v{PA+4+u}, 1024, v{PA+u}""")
A(f"""s_mul_i32 s{T3}, s{sWAVE}, {4*86*1024}
s_lshl_b32 s{T4}, s{T1}, 10
s_add_u32 s{T3}, s{T3}, s{T4}
s_add_u32 s{T3}, s{T3}, {W2P}
s_cmp_ge_u32 s{T1}, 86
s_cselect_b32 s{T3}, {OOB}, s{T3}
v_add_u32 v{PD}, s{T3}, v{PD}
s_mov_b32 s45, {86*1024}
s_mov_b32 s46, 0
pk_go:
s_lshl_b32 s{T4}, s{sWAVE}, 12
s_mov_b32 s47, 0""")
for i in range(4):
    A(f"s_add_u32 s{T0}, s{T4}, {PKT + 1024*i}\ns_mov_b32 m0, s{T0}\ns_nop 0")
    vm.op(f"buffer_load_dwordx4 v{PS+(i&1)}, s[{SPK}:{SPK+3}], s47 offen{' nt' if P('NT',1) else ''} lds", "pk")
    if i < 3: A(f"s_add_u32 s47, s47, s44")
A(f"""v_lshlrev_b32 v5, 10, v13
v_lshl_add_u32 v5, v12, 2, v5
v_add_u32 v6, {KT + 5*128 + 1024}, v5
v_add_u32 v5, {KT + 5*128}, v5
v_subrev_u32 v7, {KT + 5*128 - VT}, v5
v_add_u32 v8, {QT - VT}, v7
v_and_b32 v9, 7, v12
v_sub_u32 v10, 7, v13
v_xor_b32 v10, v10, v9
v_lshlrev_b32 v14, 8, v12
v_lshl_add_u32 v15, v10, 4, v14
v_add_u32 v15, {US}, v15
v_lshlrev_b32 v10, 1, v13
v_xor_b32 v10, v10, v9
v_lshl_add_u32 v16, v10, 4, v14
v_add_u32 v16, {QS}, v16
v_xor_b32 v17, 16, v16
v_lshrrev_b32 v9, 3, v0               ; ch
v_and_b32 v10, 7, v0
v_bfe_u32 v11, v0, 4, 3
v_xor_b32 v11, v11, v10
v_lshlrev_b32 v18, 7, v9
v_lshl_add_u32 v18, v11, 4, v18
v_add_u32 v18, {US}, v18
v_lshlrev_b32 v19, 12, v9
v_lshl_add_u32 v19, v10, 4, v19
s_lshl_b32 s{T0}, s{sXG}, 18
s_lshl_b32 s{T1}, s{sJ}, 7
s_sub_u32 s{T0}, s{T0}, s{T1}
s_add_u32 s{T0}, s{T0}, 3968
v_add_u32 v19, s{T0}, v19
v_lshrrev_b32 v9, 4, v0
v_and_b32 v11, 7, v9
v_xor_b32 v11, v11, v3
v_lshlrev_b32 v20, 8, v9
v_lshl_add_u32 v20, v11, 4, v20
v_add_u32 v20, {QS}, v20
v_lshlrev_b32 v21, 13, v9
v_lshl_add_u32 v21, v3, 4, v21
s_lshl_b32 s{T0}, s{sXG}, 18
s_lshl_b32 s{T1}, s{sJ}, 8
s_add_u32 s{T0}, s{T0}, s{T1}
s_add_u32 s{T0}, s{T0}, {QP}
v_add_u32 v21, s{T0}, v21""")
stamp("issued")
vm.wait("k")
A("s_barrier")
stamp("kvq in lds")
KR, VR, QR = 144, 156, 164
for j in range(0, 8, 2):
    A(f"ds_read2_b32 v[{KR+j}:{KR+j+1}], v5 offset0:{32*j} offset1:{32*j+32}")
A(f"ds_read2_b32 v[{KR+8}:{KR+9}], v6 offset0:0 offset1:32\nds_read_b32 v{KR+10}, v6 offset:256")
for j in range(0, 8, 2):
    A(f"ds_read2_b32 v[{VR+j}:{VR+j+1}], v7 offset0:{32*j} offset1:{32*j+32}")
for j in range(0, 8, 2):
    A(f"ds_read2_b32 v[{QR+j}:{QR+j+1}], v8 offset0:{32*j} offset1:{32*j+32}")
A(f"""s_mul_i32 s{T0}, s2, 1366
s_lshr_b32 s{T0}, s{T0}, 16
s_mul_i32 s{T1}, s{T0}, 48
s_sub_u32 s{T1}, s2, s{T1}
s_mul_i32 s{sM}, s{T0}, 12288
s_lshl_b32 s{T2}, s{T1}, 8
s_add_u32 s{sM}, s{sM}, s{T2}
s_add_u32 s{sM}, s{sM}, {MODF}
s_cmp_ge_u32 s2, 192
s_cselect_b32 s{sM}, {OOB}, s{sM}
s_mul_i32 s{T2}, s{T0}, {128*6144}
s_lshl_b32 s{T3}, s{T1}, 7
s_add_u32 s{T2}, s{T2}, s{T3}
s_cmp_ge_u32 s2, 192
s_cselect_b32 s{T2}, {OOB}, s{T2}
v_and_b32 v22, 7, v0
v_lshrrev_b32 v23, 3, v0
v_mul_u32_u24 v24, {4*6144}, v23
v_lshl_add_u32 v24, v22, 4, v24
v_add_u32 v24, s{T2}, v24
v_lshlrev_b32 v23, 3, v23
s_lshl_b32 s{T0}, s{T0}, 8
v_add_u32 v23, s{T0}, v23""")
vm.op(f"buffer_load_dwordx2 v[{CC}:{CC+1}], v23, s[{SC}:{SC+3}], 0 offen", "c")
for i in range(4):
    A(f"s_mov_b32 s{T0}, {6144*i}")
    vm.op(f"buffer_load_dwordx4 v[{WM+4*i}:{WM+4*i+3}], v24, s[{SWM}:{SWM+3}], s{T0} offen{' nt' if P('NT',1) else ''}", "wm")
A(f"""v_lshlrev_b32 v22, 4, v2
s_lshl_b32 s{T0}, s2, 13
s_lshl_b32 s{T1}, s{sWAVE}, 11
s_add_u32 s{T0}, s{T0}, s{T1}
v_add_u32 v22, s{T0}, v22""")
vm.op(f"buffer_load_dwordx4 v[{SR}:{SR+3}], v22, s[{SQ}:{SQ+3}], 0 offen{' nt' if P('NTS',1) else ''}", "sr")
vm.op(f"buffer_load_dwordx4 v[{SR+4}:{SR+7}], v22, s[{SQ}:{SQ+3}], 0 offen offset:1024{' nt' if P('NTS',1) else ''}", "sr")
WF, KFF, O = 100, 108, 172
KV = [180 + 2 * r for r in range(8)]
A(f"""v_lshlrev_b32 v{WF+0}, 16, v{W+0}
v_lshlrev_b32 v{WF+1}, 16, v{W+2}
v_and_b32 v{WF+2}, 0xffff0000, v{W+0}
v_and_b32 v{WF+3}, 0xffff0000, v{W+2}
v_lshlrev_b32 v{WF+4}, 16, v{W+1}
v_lshlrev_b32 v{WF+5}, 16, v{W+3}
v_and_b32 v{WF+6}, 0xffff0000, v{W+1}
v_and_b32 v{WF+7}, 0xffff0000, v{W+3}
s_waitcnt lgkmcnt(8)""")
for j in range(11):
    A(f"v_lshlrev_b32 v{KFF+2*j}, 16, v{KR+j}\nv_and_b32 v{KFF+2*j+1}, 0xffff0000, v{KR+j}")
A(f"""s_waitcnt lgkmcnt(0)
ds_write_b128 v16, v[{QR}:{QR+3}]
ds_write_b128 v17, v[{QR+4}:{QR+7}]""")
for r in range(8):
    A(f"v_pk_mul_f32 v[{KV[r]}:{KV[r]+1}], v[{KFF+2*r}:{KFF+2*r+1}], v[{WF+6}:{WF+7}]")
for t in range(1, 4):
    for r in range(8):
        A(f"v_pk_fma_f32 v[{KV[r]}:{KV[r]+1}], v[{KFF+2*(r+t)}:{KFF+2*(r+t)+1}], v[{WF+2*(3-t)}:{WF+2*(3-t)+1}], v[{KV[r]}:{KV[r]+1}]")
for r in range(8):
    A(f"v_lshlrev_b32 v{KFF+2*r}, 16, v{VR+r}\nv_and_b32 v{KFF+2*r+1}, 0xffff0000, v{VR+r}")
for r in range(8):
    A(f"v_pk_mul_f32 v[{KV[r]}:{KV[r]+1}], v[{KV[r]}:{KV[r]+1}], v[{KFF+2*r}:{KFF+2*r+1}]")
for e in range(2):
    for j in range(4):
        A(f"v_cvt_pk_bf16_f32 v{O+4*e+j}, v{KV[7-2*j]+e}, v{KV[6-2*j]+e}")
    A(f"ds_write_b128 v15, v[{O+4*e}:{O+4*e+3}] offset:{128*e}")
A(f"""s_mov_b32 s{T1}, 131072
s_waitcnt lgkmcnt(0)
s_barrier
ds_read_b128 v[144:147], v18
ds_read_b128 v[148:151], v18 offset:4096
ds_read_b128 v[152:155], v20
ds_read_b128 v[156:159], v20 offset:4096
s_waitcnt lgkmcnt(3)""")
vm.op(f"buffer_store_dwordx4 v[144:147], v19, {W4}, 0 offen {'' if P('PLAIN_UQ',0) else 'sc1'} {os.environ.get('F_ST1', '')}", "st1")
A("s_waitcnt lgkmcnt(2)")
vm.op(f"buffer_store_dwordx4 v[148:151], v19, {W4}, s{T1} offen {'' if P('PLAIN_UQ',0) else 'sc1'} {os.environ.get('F_ST1', '')}", "st1")
A("s_waitcnt lgkmcnt(1)")
vm.op(f"buffer_store_dwordx4 v[152:155], v21, {W4}, 0 offen {'' if P('PLAIN_UQ',0) else 'sc1'} {os.environ.get('F_ST1', '')}", "st1")
A("s_waitcnt lgkmcnt(0)")
vm.op(f"buffer_store_dwordx4 v[156:159], v21, {W4}, s{T1} offen {'' if P('PLAIN_UQ',0) else 'sc1'} {os.environ.get('F_ST1', '')}", "st1")
stamp("st1 issued")
vm.wait("kf", "D")
A(f"""v_lshlrev_b32 v9, 4, v0
v_mov_b32 v120, 0
v_mov_b32 v121, 0
v_mov_b32 v122, 0
v_mov_b32 v123, 0
ds_write_b128 v9, v[{KF0}:{KF0+3}] offset:{L_KF + 32}
ds_write_b128 v9, v[{KF0+4}:{KF0+7}] offset:{L_KF + KFSZ + 32}
v_mul_u32_u24 v22, {OSZ}, v4
v_lshl_add_u32 v22, v3, 4, v22
v_lshrrev_b32 v10, 1, v2
v_and_b32 v10, 3, v10
v_mul_u32_u24 v10, 4128, v10
v_and_b32 v11, 1, v2
v_lshl_add_u32 v10, v11, 4, v10
ds_write_b128 v22, v[120:123] offset:{L_U + 2048}
ds_write_b128 v10, v[120:123] offset:{L_KF}""")
vm.wait("c")
A(f"""v_lshlrev_b32 v{CC+2}, 16, v{CC+1}
v_and_b32 v{CC+3}, 0xffff0000, v{CC+1}
v_and_b32 v{CC+1}, 0xffff0000, v{CC}
v_lshlrev_b32 v{CC}, 16, v{CC}""")
for i in range(4): A(f"v_mul_f32 v{100+i}, 0xbfb8aa3b, v{CC+i}")
for i in range(4): A(f"v_exp_f32 v{100+i}, v{100+i}")
for i in range(4): A(f"v_add_f32 v{100+i}, 1.0, v{100+i}")
for i in range(4): A(f"v_rcp_f32 v{100+i}, v{100+i}")
for i in range(4): A(f"v_mul_f32 v{CC+i}, v{CC+i}, v{100+i}")
for i in range(0, 4, 2):
    A(f"""v_cvt_pk_bf16_f32 v100, v{CC+i}, v{CC+i+1}
    v_lshlrev_b32 v{CC+i}, 16, v100
    v_and_b32 v{CC+i+1}, 0xffff0000, v100""")
MA = 104
vm.wait("wm")
for i in range(4):
    for j in range(4):
        t = 112 + 2 * (j % 2)
        A(f"v_lshlrev_b32 v{t}, 16, v{WM+4*i+j}\nv_and_b32 v{t+1}, 0xffff0000, v{WM+4*i+j}")
        if i == 0:
            A(f"v_pk_mul_f32 v[{MA+2*j}:{MA+2*j+1}], v[{t}:{t+1}], v[{CC}:{CC+1}] op_sel_hi:[1,0]")
        else:
            sel = "op_sel_hi:[1,0,1]" if i % 2 == 0 else "op_sel:[0,1,0] op_sel_hi:[1,1,1]"
            A(f"v_pk_fma_f32 v[{MA+2*j}:{MA+2*j+1}], v[{t}:{t+1}], v[{CC+(i//2)*2}:{CC+(i//2)*2+1}], v[{MA+2*j}:{MA+2*j+1}] {sel}")
A(f"""v_lshrrev_b32 v11, 4, v0
v_lshlrev_b32 v11, 8, v11
v_and_b32 v10, 7, v0
v_lshl_add_u32 v11, v10, 5, v11""")
for j in range(8):
    A(f"v_add_f32_dpp v{MA+j}, v{MA+j}, v{MA+j} row_shr:8 row_mask:0xf bank_mask:0xf bound_ctrl:0")
A(f"""v_cmp_le_u32 vcc, 8, v3
s_and_saveexec_b64 s[{SX}:{SX+1}], vcc
ds_write_b128 v11, v[{MA}:{MA+3}] offset:{L_MODP}
ds_write_b128 v11, v[{MA+4}:{MA+7}] offset:{L_MODP+16}
s_mov_b64 exec, s[{SX}:{SX+1}]""")
vm.wait("st1", extra="lgkmcnt(0)")
A(f"v_readfirstlane_b32 s{sEP}, v142\ns_barrier\ns_add_u32 s{sEP}, s{sEP}, 0x9e3779b9")
set_flag(0, F1A, f"s_lshl_b32 s{T0}, s{sXG}, 5\ns_add_u32 s{T0}, s{T0}, s{sJ}", 10, 11)
stamp("flag1a")
PKR = 144
for u in range(4):
    A(f"ds_read_b64_tr_b16 v[{PKR+4*u}:{PKR+4*u+1}], v{PA+u}\nds_read_b64_tr_b16 v[{PKR+4*u+2}:{PKR+4*u+3}], v{PA+4+u}")
KFM = 56
A(f"""ds_read_b32 v{KFM}, v9 offset:{L_KF + 28}
ds_read_b32 v{KFM+1}, v9 offset:{L_KF + KFSZ + 28}
s_mov_b32 s47, 0""")
for u in range(4):
    A(f"s_waitcnt lgkmcnt({8-2*u})")
    vm.op(f"buffer_store_dwordx4 v[{PKR+4*u}:{PKR+4*u+3}], v{PD}, {W4}, s47 offen sc1 {os.environ.get('F_ST1B', '')}", "st1b")
    if u < 3:
        A(f"s_add_u32 s47, s47, s45")
        if u == 1: A(f"s_add_u32 s47, s47, s46")
A(f"""s_cmp_lg_u32 s{sWAVE}, 1
s_cbranch_scc1 modf_done
v_lshlrev_b32 v11, 2, v2""")
for p in range(16):
    A(f"ds_read_b32 v{160+p}, v11 offset:{L_MODP+256*p}")
A("s_waitcnt lgkmcnt(0)")
for st in (8, 4, 2, 1):
    for p in range(st):
        A(f"v_add_f32 v{160+p}, v{160+p}, v{160+p+st}")
A(f"""v_add_u32 v10, s{sM}, v11
buffer_store_dword v160, v10, {W4}, 0 offen sc1
modf_done:""")
SA = 100
for i in range(4): A(f"v_mov_b32 v{SA+i}, 0")
for j in range(4):
    for rr in range(2):
        A(f"""v_dot2_f32_bf16 v{SA+2*rr}, v{SR+4*rr+j}, s{sONES}, v{SA+2*rr}
        v_dot2_f32_bf16 v{SA+2*rr+1}, v{SR+4*rr+j}, v{SR+4*rr+j}, v{SA+2*rr+1}""")
A("s_waitcnt lgkmcnt(0)")
for c in range(2):
    o = 124 + 4 * c
    A(f"v_alignbit_b32 v{o}, v{KF0+4*c}, v{KFM+c}, 16")
    for j in range(1, 4):
        A(f"v_alignbit_b32 v{o+j}, v{KF0+4*c+j}, v{KF0+4*c+j-1}, 16")
    A(f"ds_write_b128 v9, v[{o}:{o+3}] offset:{L_KF + c*KFSZ + 4128 + 32}")
for ctrl in ("row_shr:1", "row_shr:2", "row_shr:4", "row_shr:8"):
    for j in range(4):
        A(f"v_add_f32_dpp v{SA+j}, v{SA+j}, v{SA+j} {ctrl} row_mask:0xf bank_mask:0xf bound_ctrl:0")
for j in range(4):
    A(f"v_add_f32_dpp v{SA+j}, v{SA+j}, v{SA+j} row_bcast:15 row_mask:0xa bank_mask:0xf")
for j in range(4):
    A(f"v_add_f32_dpp v{SA+j}, v{SA+j}, v{SA+j} row_bcast:31 row_mask:0xc bank_mask:0xf")
a_ = capture(lambda: ln_final(SA, SA + 1, 104, 105)); b_ = capture(lambda: ln_final(SA + 2, SA + 3, 106, 107))
for x, y in zip(a_, b_):
    A(x)
    if y != "s_nop 0": A(y)
A(f"""s_lshl_b32 s{T0}, s2, 6
s_lshl_b32 s{T1}, s{sWAVE}, 4
s_add_u32 s{T0}, s{T0}, s{T1}
s_add_u32 s{T0}, s{T0}, {ST1}
v_mov_b32 v9, s{T0}
s_mov_b32 s{SX}, 0
s_mov_b32 s{SX+1}, 0x80000000
s_mov_b64 exec, s[{SX}:{SX+1}]""")
vm.op(f"buffer_store_dwordx4 v[104:107], v9, {W4}, 0 offen sc1 {os.environ.get('F_ST1B', '')}", "st1b")
A("s_mov_b64 exec, -1")
stamp("p1b stores issued")
sCH, sHF = 44, 45
A.srd(SM1, 80, F * 2); A.srd(SM2, 84, 1024)
A(f"""s_lshr_b32 s{sCH}, s{sWAVE}, 1
s_and_b32 s{sHF}, s{sWAVE}, 1
v_min_u32 v12, 31, v2
v_lshlrev_b32 v12, 6, v12
s_lshl_b32 s{T0}, s{sXG}, 11
s_add_u32 s{T0}, s{T0}, {F1A}
v_add_u32 v12, s{T0}, v12
v_lshlrev_b32 v13, 6, v2
v_lshlrev_b32 v5, 4, v0
s_lshl_b32 s{T0}, s{sD0}, 12
v_add_u32 v5, s{T0}, v5
v_add_u32 v6, 4096, v5
v_and_b32 v7, 1, v0
v_mul_u32_u24 v7, {OSZ}, v7
v_lshrrev_b32 v8, 1, v0
v_lshl_add_u32 v7, v8, 4, v7
v_lshlrev_b32 v15, 1, v4
v_sub_u32 v15, v15, v3
v_lshlrev_b32 v15, 4, v15
s_mul_i32 s{T0}, s{sCH}, {USZ}
s_lshl_b32 s{T1}, s{sHF}, 7
s_add_u32 s{T0}, s{T0}, s{T1}
s_add_u32 s{T0}, s{T0}, {L_U + 240}
v_add_u32 v15, s{T0}, v15
v_and_b32 v8, 1, v3
v_mul_u32_u24 v8, 4130, v8
v_lshlrev_b32 v16, 6, v4
v_lshl_add_u32 v16, v3, 1, v16
v_sub_u32 v16, v16, v8
s_mul_i32 s{T0}, s{sCH}, {KFSZ}
s_lshl_b32 s{T1}, s{sHF}, 8
s_add_u32 s{T0}, s{T0}, s{T1}
s_add_u32 s{T0}, s{T0}, {L_KF + 4132}
v_add_u32 v16, s{T0}, v16
v_add_u32 v17, 1024, v16
v_add_u32 v18, 2048, v16
v_add_u32 v19, 3072, v16
v_lshlrev_b32 v20, 16, v{DD}
v_and_b32 v21, 0xffff0000, v{DD}
v_lshlrev_b32 v8, 6, v3
v_lshl_add_u32 v8, v4, 4, v8          ; 64a' + 16g
s_lshl_b32 s{T0}, s{sD0}, 12
s_lshl_b32 s{T1}, s{sWAVE}, 11
s_add_u32 s{T0}, s{T0}, s{T1}
v_add_u32 v14, s{T0}, v8
v_lshlrev_b32 v63, 1, v8
s_lshl_b32 s{T0}, s{sWAVE}, 12
s_add_u32 s{T0}, s{T0}, {ST1}
v_add_u32 v63, s{T0}, v63
v_lshrrev_b32 v9, 2, v3
v_cmp_eq_u32 vcc, 3, v9
v_lshlrev_b32 v23, 11, v9
v_and_b32 v10, 3, v3
v_cndmask_b32 v11, 0, 1, vcc
v_lshl_add_u32 v23, v11, 11, v23
v_mul_u32_u24 v10, 12288, v10
s_lshl_b32 s{T0}, s{sD0}, 2
s_add_u32 s{T0}, s{T0}, {MODF}
v_add3_u32 v23, v23, v10, s{T0}
v_and_b32 v9, 1, v9
v_cvt_f32_u32 v62, v9
v_lshlrev_b32 v10, 4, v2
s_mul_i32 s{T0}, s{sFG}, 11
s_add_u32 s46, s{T0}, s{sWAVE}         ; F0
s_lshl_b32 s{T0}, s46, 14
s_add_u32 s{T0}, s{T0}, {W1P}
v_add_u32 v248, s{T0}, v10
v_add_u32 v249, 0x10000, v248
v_add_u32 v250, 0x20000, v248
s_add_u32 s{T0}, s46, 8
s_cmp_ge_u32 s{T0}, 86
s_cselect_b32 s47, {OOB}, 0
s_cmp_eq_u32 s{sWAVE}, 3
s_cselect_b32 s47, {OOB}, s47
v_add_u32 v250, s47, v250
""")
vm.wait("st1b", extra="lgkmcnt(0)")
A("s_barrier")
set_flag(1, F1B, f"s_mov_b32 s{T0}, s2", 10, 11, pre="s_waitcnt vmcnt(0)")
stamp("flag1b")
ACC = 24
AB = [64, 96]; BB_ = [144, 176]
UL, QE, SE, ME = 208, 216, 224, 240
def aload(o, st):
    for q in range(8):
        r = AB[st] + 4 * q; base = 128 * (q & 1) + 4 * o
        A(f"ds_read2_b32 v[{r}:{r+1}], v{16+(q>>1)} offset0:{base} offset1:{base+1}")
        A(f"ds_read2_b32 v[{r+2}:{r+3}], v{16+(q>>1)} offset0:{base+2} offset1:{base+3}")
def bload(o, st):
    for dl in range(8):
        r = BB_[st] + 4 * dl
        A(f"ds_read_b128 v[{r}:{r+3}], v15 offset:{(o&1)*OSZ + 16*(112-16*dl+(o>>1))}")
aload(0, 0)
for i in range(32): A(f"v_mov_b32 v{ACC+i}, 0")
sal = []
sal += [f"s_lshr_b32 s{T4}, s{sJ}, 3", f"s_mul_i32 s{T4}, s{T4}, {P('RRB', 1)}", f"s_mul_i32 s15, s{sFG}, {P('RFG', 1)}", f"s_lshl_b32 s{sROT1}, s{T4}, 1", f"s_add_u32 s{sROT1}, s{sROT1}, s15",
        f"s_lshl_b32 s{sROT1}, s{sROT1}, 1", f"s_and_b32 s{sROT1}, s{sROT1}, 15"]
for t in range(16):
    sal += [f"s_add_u32 s{ROT1[t]}, s{sROT1}, {t}", f"s_and_b32 s{ROT1[t]}, s{ROT1[t]}, 15", f"s_lshl_b32 s{ROT1[t]}, s{ROT1[t]}, 10"]
sal += [f"s_mul_i32 s{T4}, s{T4}, 11", f"s_lshr_b32 s{T4}, s{T4}, 1", f"s_mul_i32 s{T5}, s{sFG}, {3*P('RFG', 1)}", f"s_add_u32 s{T4}, s{T4}, s{T5}",
        f"s_cmp_ge_u32 s{sWAVE}, 2", f"s_cselect_b32 s{T5}, 21, 99",
        f"s_cmp_ge_u32 s{T4}, 22", f"s_cselect_b32 s15, 22, 0", f"s_sub_u32 s{T4}, s{T4}, s15"]
for i in range(22):
    r = ROT2[i]
    sal += [(f"s_lshl_b32 s{r}, s{T4}, 12", f"s_cmp_eq_u32 s{T4}, s{T5}", f"s_cselect_b32 s{r}, {OOB}, s{r}"),
            (f"s_add_u32 s{T4}, s{T4}, 1", f"s_cmp_eq_u32 s{T4}, 22", f"s_cselect_b32 s{T4}, 0, s{T4}")]
for x in sal: A(x if isinstance(x, str) else "\n".join(x))
sal = []
poll(12, 1, 0, 22, "p1a")
A("s_barrier")
stamp("poll1a done")
vm.op(f"buffer_load_dwordx4 v[{UL}:{UL+3}], v5, {W4}, 0 offen sc1{' nt' if P('NTU',0) else ''}", "u")
vm.op(f"buffer_load_dwordx4 v[{UL+4}:{UL+7}], v6, {W4}, 0 offen sc1{' nt' if P('NTU',0) else ''}", "u")
A(f"s_mov_b32 s{T2}, {QP}")
for jn in range(2):
    vm.op(f"buffer_load_dwordx4 v[{QE+4*jn}:{QE+4*jn+3}], v14, {W4}, s{T2} offen offset:{1024*jn} sc1", "qe")
for k in range(4):
    A(f"s_mov_b32 s{T1}, {F1B + 4096*k}")
    vm.op(f"buffer_load_dword v{56+k}, v13, {W4}, s{T1} offen sc1", "f1b")
vm.wait("u")
A(f"""ds_write_b128 v7, v[{UL}:{UL+3}] offset:{L_U}
ds_write_b128 v7, v[{UL+4}:{UL+7}] offset:{L_U+USZ}
s_waitcnt lgkmcnt(0)
s_barrier""")
bload(0, 0)
stamp("u in lds")
w1q = [(t, j) for t in range(16) for j in range(3)]
def w1_issue(n):
    for _ in range(n):
        if not w1q: return
        t, j = w1q.pop(0)
        vm.op(f"buffer_load_dwordx4 a[{(t*3+j)*4}:{(t*3+j)*4+3}], v{248+j}, {W4}, s{ROT1[t]} offen sc1{' nt' if P('NTW',0) else ''}", f"w1_{t}")
def me_final():
    vm.wait("me")
    for sh in (1, 2):
        A("s_nop 1")
        for k in range(2):
            A(f"v_add_f32_dpp v{UL+k}, v{UL+k}, v{UL+k} row_shr:{sh} row_mask:0xf bank_mask:0xf bound_ctrl:0")
    A(f"""v_cvt_pk_bf16_f32 v{UL+2}, v{UL}, v{UL+1}
    v_lshlrev_b32 v{UL}, 16, v{UL+2}
    v_and_b32 v{UL+1}, 0xffff0000, v{UL+2}
    v_add_f32 v{UL}, v{UL}, v62
    v_add_f32 v{UL+1}, v{UL+1}, v62
    v_cvt_pk_bf16_f32 v{UL+2}, v{UL}, v{UL+1}
    v_lshlrev_b32 v{UL}, 16, v{UL+2}
    v_and_b32 v{UL+1}, 0xffff0000, v{UL+2}
    s_nop 1""")
    for i in range(4):
        for k in range(2):
            A(f"v_mov_b32_dpp v{ME+2*i+k}, v{UL+k} row_newbcast:{4*i+3} row_mask:0xf bank_mask:0xf")
for o in range(4):
    st = o & 1
    A("s_waitcnt lgkmcnt(0)")
    lds = []
    if o + 1 < 4:
        lds = capture(lambda: (bload(o + 1, st ^ 1), aload(o + 1, st ^ 1)))
    side = []; cnt = 0
    if o == 3: side = capture(me_final)
    for dl in range(8):
        for q in range(8 - dl):
            n = q + dl
            A(f"v_mfma_f32_16x16x32_bf16 v[{ACC+4*n}:{ACC+4*n+3}], v[{AB[st]+4*q}:{AB[st]+4*q+3}], v[{BB_[st]+4*dl}:{BB_[st]+4*dl+3}], v[{ACC+4*n}:{ACC+4*n+3}]")
            cnt += 1
            if lds: A(lds.pop(0))
            if o > P("F1B_O", 0) and o >= P("W1_O0", 1) and cnt % P("W1_EVERY", 6) == 0: w1_issue(1)
            for _ in range(2 if o == 0 else 1):
                if sal:
                    x = sal.pop(0)
                    A(x if isinstance(x, str) else "\n".join(x))
            if side: A(side.pop(0))
    for x in side: A(x)
    if o == P("F1B_O", 0):
        vm.wait("f1b")
        A(f"""v_xor_b32 v56, s{sEP}, v56
        v_xor_b32 v57, s{sEP}, v57
        v_xor_b32 v58, s{sEP}, v58
        v_xor_b32 v59, s{sEP}, v59
        v_or3_b32 v56, v56, v57, v58
        v_or_b32 v56, v56, v59
        v_cmp_ne_u32 vcc, 0, v56
        s_nop 1
        s_cbranch_vccz p1b_done
        v_add_u32 v22, {F1B}, v13""")
        poll(22, 4, 4096, 56, "p1b", only_wave0=False)
        vm.op(f"buffer_load_dwordx2 v[{UL}:{UL+1}], v23, {W4}, 0 offen sc1", "me")
        for jn in range(2):
            for hh in range(2):
                vm.op(f"buffer_load_dwordx4 v[{SE+8*jn+4*hh}:{SE+8*jn+4*hh+3}], v63, {W4}, 0 offen offset:{2048*jn+16*hh} sc1", "se")
        if P("WTOUCH", 0):
            A(f"""s_mul_i32 s{T0}, s{sJ}, 44032
            v_lshlrev_b32 v22, 7, v0
            v_add_u32 v22, s{T0}, v22
            v_add_u32 v60, 32768, v22
            v_cmp_gt_u32 vcc, 88, v0
            v_mov_b32 v61, {OOB}
            s_mov_b32 s{T0}, {W1P}
            s_mov_b32 s{T1}, {W2P}
            v_cndmask_b32 v60, v61, v60, vcc""")
            for (ad, so) in ((22, T0), (60, T0), (22, T1), (60, T1)):
                vm.op(f"buffer_load_dword v61, v{ad}, {W4}, s{so} offen sc1", "touch")
        A(f"""v_lshlrev_b32 v128, 3, v0
        v_add_u32 v128, {MODF + 3*2048}, v128
        v_lshlrev_b32 v129, 3, v4
        s_lshl_b32 s{T0}, s46, 5
        v_add_u32 v129, s{T0}, v129
        v_lshlrev_b32 v130, 3, v3
        s_lshl_b32 s{T0}, s{sR}, 9
        s_lshl_b32 s{T1}, s{sWAVE}, 7
        s_add_u32 s{T0}, s{T0}, s{T1}
        s_add_u32 s{T0}, s{T0}, {ST1 + 4}
        v_add_u32 v130, s{T0}, v130""")
        for ks in range(4):
            A(f"s_mov_b32 s{T1}, {12288*ks}\ns_mov_b32 s{T0}, {12288*ks+4096}")
            for sec in range(3):
                so, off = (T1, 2048 * sec) if sec < 2 else (T0, 0)
                vm.op(f"buffer_load_dwordx2 a[{192+8*sec+2*ks}:{192+8*sec+2*ks+1}], v128, {W4}, s{so} offen offset:{off} sc1", "tp")
        for j in range(3):
            vm.op(f"buffer_load_dwordx2 a[{216+2*j}:{217+2*j}], v129, s[{SM1}:{SM1+3}], 0 offen offset:{128*j}", "tp")
        vm.op(f"buffer_load_dword v140, v130, {W4}, 0 offen sc1", "tp")
        stamp("flag1b all seen")
assert not sal
stamp("conv mfma done")
A(f"""v_lshlrev_b32 v9, 4, v2
s_lshl_b32 s{T0}, s{sWAVE}, 13
s_add_u32 s{T0}, s{T0}, {L_RED}
v_add_u32 v10, s{T0}, v9
s_lshl_b32 s{T0}, s{sWAVE}, 11
s_add_u32 s{T0}, s{T0}, {L_RED}
v_add_u32 v11, s{T0}, v9
v_lshrrev_b32 v5, 1, v4
v_sub_u32 v5, 1, v5
v_mul_u32_u24 v5, {OSZ}, v5
v_lshlrev_b32 v6, 4, v3
v_sub_u32 v5, v5, v6
v_and_b32 v6, 1, v4
v_lshlrev_b32 v6, 3, v6
v_sub_u32 v5, v5, v6
s_lshl_b32 s{T0}, s{sWAVE}, 9
s_sub_u32 s{T0}, {L_U + 16*(127-16) + 8}, s{T0}
v_add_u32 v5, s{T0}, v5""")
for n in range(8):
    A(f"ds_write_b128 v10, v[{ACC+4*n}:{ACC+4*n+3}] offset:{1024*n}")
UE = 128
for jn in range(2):
    for c in range(2):
        A(f"ds_read_b64 v[{UE+4*jn+2*c}:{UE+4*jn+2*c+1}], v5 offset:{256*(1-jn) + c*USZ}")
A("s_waitcnt lgkmcnt(0)\ns_barrier")
RR = 64
for jn in range(2):
    for src in range(4):
        r = RR + 16 * jn + 4 * src
        A(f"ds_read_b128 v[{r}:{r+3}], v11 offset:{8192*src + 1024*jn}")
vm.wait("qe", "se", "me")
XO, XS = 112, 120
SAp, C1p, GAp, C2p = ME, ME + 2, ME + 4, ME + 6
A(f"s_mov_b32 s{T2}, {X1S}\ns_mov_b32 s{T3}, {X1P}")
for jn in range(2):
    A(f"s_waitcnt lgkmcnt({4*(1-jn)})")
    seqs = []
    for r in range(4):
        Y, QF, QC, H, X = [24 + 10 * r + 2 * k for k in range(5)]
        b = RR + 16 * jn
        dw = 1 if r < 2 else 0
        sq = []
        for c in range(2):
            src = UE + 4 * jn + 2 * c + dw
            sq.append(f"v_and_b32 v{X+c}, 0xffff0000, v{src}" if r % 2 == 0 else f"v_lshlrev_b32 v{X+c}, 16, v{src}")
        st = SE + 8 * jn + 2 * r
        sq += f"""v_add_f32 v{Y}, v{b+r}, v{b+4+r}
        v_add_f32 v{Y+1}, v{b+8+r}, v{b+12+r}
        v_lshlrev_b32 v{QF}, 16, v{QE+4*jn+r}
        v_and_b32 v{QF+1}, 0xffff0000, v{QE+4*jn+r}
        v_pk_fma_f32 v[{Y}:{Y+1}], v[{X}:{X+1}], v[20:21], v[{Y}:{Y+1}]
        v_pk_add_f32 v[{QC}:{QC+1}], v[{QF}:{QF+1}], v[{st}:{st+1}] op_sel:[0,1] op_sel_hi:[1,1] neg_lo:[0,1] neg_hi:[0,1]
        v_pk_mul_f32 v[{H}:{H+1}], v[{QC}:{QC+1}], v[{st}:{st+1}] op_sel_hi:[1,0]
        v_pk_fma_f32 v[{H}:{H+1}], v[{H}:{H+1}], v[{C1p}:{C1p+1}], v[{SAp}:{SAp+1}]
        v_pk_mul_f32 v[{H}:{H+1}], v[{H}:{H+1}], v[{Y}:{Y+1}]
        v_pk_fma_f32 v[{QC}:{QC+1}], v[{H}:{H+1}], v[{GAp}:{GAp+1}], v[{QC}:{QC+1}]
        v_pk_fma_f32 v[{QF}:{QF+1}], v[{H}:{H+1}], v[{GAp}:{GAp+1}], v[{QF}:{QF+1}]
        v_pk_mul_f32 v[{QC}:{QC+1}], v[{QC}:{QC+1}], v[{C2p}:{C2p+1}]
        v_cvt_pk_bf16_f32 v{XO+4*jn+r}, v{QF}, v{QF+1}
        v_cvt_pk_bf16_f32 v{XS+4*jn+r}, v{QC}, v{QC+1}""".split("\n")
        seqs.append(sq)
    for gi, grp in enumerate(zip(*seqs)):
        for x in grp: A(x)
        if gi < P("W1_EPI", 8): w1_issue(1)
    vm.op(f"buffer_store_dwordx4 v[{XS+4*jn}:{XS+4*jn+3}], v14, {W4}, s{T2} offen offset:{1024*jn} sc1 {os.environ.get('F_ST2', '')}", "st2")
    vm.op(f"buffer_store_dwordx4 v[{XO+4*jn}:{XO+4*jn+3}], v14, {W4}, s{T3} offen offset:{1024*jn} sc1 {os.environ.get('F_ST2', '')}", "st2")
stamp("st2 issued")
w1_issue(99)
TP, B1R, M1R = 144, 208, 140
vm.wait("tp")
for i in range(24): A(f"v_accvgpr_read_b32 v{TP+i}, a{192+i}")
for i in range(6): A(f"v_accvgpr_read_b32 v{B1R+i}, a{216+i}")
for sec in range(3):
    b = TP + 8 * sec
    A(f"""v_pk_add_f32 v[{b}:{b+1}], v[{b}:{b+1}], v[{b+2}:{b+3}]
    v_pk_add_f32 v[{b+4}:{b+5}], v[{b+4}:{b+5}], v[{b+6}:{b+7}]""")
for sec in range(3):
    b = TP + 8 * sec
    A(f"""v_pk_add_f32 v[{b}:{b+1}], v[{b}:{b+1}], v[{b+4}:{b+5}]
    v_cvt_pk_bf16_f32 v{b+2}, v{b}, v{b+1}""")
A(f"""v_lshlrev_b32 v{TP+8}, 16, v{TP+10}
v_and_b32 v{TP+9}, 0xffff0000, v{TP+10}
v_lshlrev_b32 v{TP+16}, 16, v{TP+18}
v_and_b32 v{TP+17}, 0xffff0000, v{TP+18}
v_add_f32 v{TP+8}, 1.0, v{TP+8}
v_add_f32 v{TP+9}, 1.0, v{TP+9}
v_cvt_pk_bf16_f32 v{TP+10}, v{TP+8}, v{TP+9}
v_lshlrev_b32 v9, 2, v0
v_add_u32 v9, {L_TB}, v9
v_lshlrev_b32 v10, 3, v0
v_add_u32 v10, {L_TGB}, v10
ds_write_b32 v9, v{TP+2}
ds_write_b32 v9, v{TP+2} offset:1024
ds_write_b32 v9, v{TP+10} offset:{L_TC2-L_TB}
ds_write_b32 v9, v{TP+10} offset:{L_TC2-L_TB+1024}
ds_write_b64 v10, v[{TP+16}:{TP+17}]
v_and_b32 v9, 1, v3
v_mul_u32_u24 v9, {L_TC2-L_TB}, v9
v_lshl_add_u32 v9, v4, 4, v9
s_lshl_b32 s{T0}, s{sROT1}, 6
s_add_u32 s{T0}, s{T0}, {L_TB}
v_add_u32 v9, s{T0}, v9""")
A(f"""v_lshlrev_b32 v5, 13, v4
s_lshl_b32 s{T0}, s{sWAVE}, 15
s_lshl_b32 s{T1}, s{sR}, 8
s_add_u32 s{T0}, s{T0}, s{T1}
v_add_u32 v5, s{T0}, v5
s_and_b32 s{T1}, s{sWAVE}, 1
s_lshl_b32 s{T1}, s{T1}, 2
v_xor_b32 v7, s{T1}, v3
v_lshl_add_u32 v5, v7, 4, v5
v_add_u32 v6, {X1P}, v5
v_add_u32 v5, {X1S}, v5
v_and_b32 v7, 1, v4
v_lshlrev_b32 v8, 10, v4
v_lshl_add_u32 v8, v3, 2, v8
v_add_u32 v8, {L_X}, v8""")
for sg in range(4):
    A(f"v_xor_b32 v10, {sg}, v7\nv_lshl_add_u32 v{16+sg}, v10, 6, v8")
A(f"v_xor_b32 v10, s{sWAVE}, v7\nv_lshl_add_u32 v141, v10, 6, v8\nv_subrev_u32 v141, {L_X-L_XP}, v141")
A(f"""v_lshlrev_b32 v10, 4, v2
s_lshl_b32 s{T0}, s{sWAVE}, 10
v_add_u32 v11, s{T0}, v10
s_mul_i32 s{T0}, s{sFG}, {2*86*1024}
s_add_u32 s{T0}, s{T0}, {W2P}
v_add_u32 v20, s{T0}, v11
v_add_u32 v21, {86*1024}, v20
s_mul_i32 s{T0}, s{sR}, {2*86*1024}
s_add_u32 s{T0}, s{T0}, {HID}
v_add_u32 v22, s{T0}, v11
v_add_u32 v23, {86*1024}, v22
v_add_u32 v12, {F2}, v13
s_mul_i32 s{T0}, s{sWAVE}, 384
s_add_u32 s{T0}, s{T0}, {L_BB}
v_lshl_add_u32 v14, v4, 4, s{T0}
""")
vm.wait("st2", extra="lgkmcnt(0)")
A("s_barrier")
set_flag(0, F2, f"s_mov_b32 s{T0}, s2", 10, 11)
stamp("flag2")
MBF = 64
for t in range(16):
    A(f"ds_read_b128 v[{MBF+4*t}:{MBF+4*t+3}], v9 offset:{64*t}")
MD = 24
for i in range(12): A(f"v_mov_b32 v{MD+i}, 0")
A("s_waitcnt lgkmcnt(0)")
for t in range(16):
    vm.wait(f"w1_{t}")
    for j in range(3):
        A(f"v_mfma_f32_16x16x32_bf16 v[{MD+4*j}:{MD+4*j+3}], a[{(t*3+j)*4}:{(t*3+j)*4+3}], v[{MBF+4*t}:{MBF+4*t+3}], v[{MD+4*j}:{MD+4*j+3}]")
stamp("MB pass done")
def w2reg(i, cb):
    k = 2 * i + cb
    return f"a[{192+4*k}:{195+4*k}]" if k < 16 else f"v[{252-4*(k-16)}:{255-4*(k-16)}]"
w2q = [(i, cb) for i in range(22) for cb in range(2)]
def w2_issue(n):
    for _ in range(n):
        if not w2q: return
        i, cb = w2q.pop(0)
        vm.op(f"buffer_load_dwordx4 {w2reg(i,cb)}, v{20+cb}, {W4}, s{ROT2[i]} offen sc1{' nt' if P('NTW',0) else ''}", "w2")
A("s_nop 7\ns_nop 1")
Bq = 36
for j in range(3):
    for r in range(4):
        A(f"v_mov_b32_dpp v{Bq+4*j+r}, v{MD+4*j+r} row_newbcast:0 row_mask:0xf bank_mask:0xf")
        A(f"v_mov_b32_dpp v{Bq+12+4*j+r}, v{MD+4*j+r} row_newbcast:1 row_mask:0xf bank_mask:0xf")
for j in range(3):
    A(f"""v_lshlrev_b32 v60, 16, v{B1R+2*j}
    v_and_b32 v61, 0xffff0000, v{B1R+2*j}
    v_lshlrev_b32 v62, 16, v{B1R+2*j+1}
    v_and_b32 v63, 0xffff0000, v{B1R+2*j+1}
    v_pk_add_f32 v[{Bq+4*j}:{Bq+4*j+1}], v[{Bq+4*j}:{Bq+4*j+1}], v[60:61]
    v_pk_add_f32 v[{Bq+4*j+2}:{Bq+4*j+3}], v[{Bq+4*j+2}:{Bq+4*j+3}], v[62:63]""")
A(f"s_mov_b32 s{SX}, 0x00010001\ns_mov_b32 s{SX+1}, 0x00010001\ns_mov_b64 exec, s[{SX}:{SX+1}]")
for i in range(6):
    A(f"ds_write_b128 v14, v[{Bq+4*i}:{Bq+4*i+3}] offset:{64*i}")
A("s_mov_b64 exec, -1")
G1 = 24; SAC = 128
A("s_waitcnt lgkmcnt(0)")
for i in range(48): A(f"v_mov_b32 v{G1+i}, 0")
stamp("pre poll2")
w2e = capture(lambda: w2_issue(P("W2_EARLY", 0)))
A(f"s_cmp_eq_u32 s{sWAVE}, 0\ns_cbranch_scc1 p2w0")
for x in w2e: A(x)
A("s_branch p2join\np2w0:")
poll(12, 4, 4096, 136, "p2")
for x in w2e: A(x)
A("p2join:")
A(f"""s_cmp_lg_u32 s2, 0
s_cbranch_scc1 noep
s_cmp_lg_u32 s{sWAVE}, 0
s_cbranch_scc1 noep
v_mov_b32 v10, {EPOCH}
v_mov_b32 v11, s{sEP}
s_mov_b64 exec, 1
buffer_store_dword v11, v10, {W4}, 0 offen sc1
s_mov_b64 exec, -1
noep:
s_barrier""")
stamp("poll2 done")
A(f"s_lshl_b32 s{T5}, s{sWAVE}, 10\ns_add_u32 s{T5}, s{T5}, {L_X}")
for c in range(16):
    A(f"""s_add_u32 s{T0}, s{T5}, {4096*c}
    s_mov_b32 m0, s{T0}
    s_lshl_b32 s{T1}, s{ROT1[c]}, 7""")
    vm.op(f"buffer_load_dwordx4 v5, {W4}, s{T1} offen sc1{' nt' if P('NTX',0) else ''} lds", f"x{c//4}")
A(f"s_sub_u32 s{T5}, s{T5}, {L_X - L_XP}")
def xp_issue(c):
    A(f"""s_add_u32 s{T0}, s{T5}, {4096*c}
    s_mov_b32 m0, s{T0}
    s_lshl_b32 s{T1}, s{ROT1[c]}, 7""")
    vm.op(f"buffer_load_dwordx4 v6, {W4}, s{T1} offen sc1{' nt' if P('NTX',0) else ''} lds", f"p{c//4}")
BF = [72, 88]; PF = [104, 112]; ONE = 120; D1 = 136; D2 = 128
def bl(t, st):
    for sg in range(4):
        r = BF[st] + 4 * sg
        A(f"ds_read2st64_b32 v[{r}:{r+1}], v{16+sg} offset0:{16*t} offset1:{16*t+1}")
        A(f"ds_read2st64_b32 v[{r+2}:{r+3}], v{16+sg} offset0:{16*t+2} offset1:{16*t+3}")
def pl(u, r):
    A(f"ds_read2st64_b32 v[{r}:{r+1}], v141 offset0:{16*u} offset1:{16*u+1}")
    A(f"ds_read2st64_b32 v[{r+2}:{r+3}], v141 offset0:{16*u+2} offset1:{16*u+3}")
for i in range(4): A(f"v_mov_b32 v{ONE+i}, s{sONES}\nv_mov_b32 v{D1+i}, 0\nv_mov_b32 v{D2+i}, 0")
vm.wait("x0"); A("s_barrier")
stamp("x chunk0")
W2_T0, W2_EVERY = P("W2_T0", 1), P("W2_EVERY", 3)
xpq = list(range(16))
SAC = 128
BFP = [72, 80]
PFX = [[88, 92], [96, 100]]
def blp(p, t, st):
    for k in range(2):
        sg = 2 * p + k; r = BFP[st] + 4 * k
        A(f"ds_read2st64_b32 v[{r}:{r+1}], v{16+sg} offset0:{16*t} offset1:{16*t+1}")
        A(f"ds_read2st64_b32 v[{r+2}:{r+3}], v{16+sg} offset0:{16*t+2} offset1:{16*t+3}")
A(f"""v_lshrrev_b32 v5, 1, v4
v_lshlrev_b32 v5, 9, v5
v_lshl_add_u32 v5, v3, 4, v5
v_and_b32 v7, 1, v4
v_lshl_add_u32 v5, v7, 3, v5
s_mul_i32 s{T0}, s{sR}, {2*86*1024}
s_lshl_b32 s{T1}, s46, 10
s_add_u32 s{T0}, s{T0}, s{T1}
s_add_u32 s{T0}, s{T0}, {HID}
v_add_u32 v8, s{T0}, v5
v_add_u32 v9, 4096, v8
v_add_u32 v10, 8192, v8
v_add_u32 v10, s47, v10
v_min_u32 v15, 7, v2
v_lshlrev_b32 v15, 6, v15
s_lshl_b32 s{T0}, s{sR}, 9
v_add_u32 v15, s{T0}, v15""")
def epi(p):
    BBr, CSr = 104, 116
    for j in range(3):
        seqs = []
        for k in range(2):
            sg = 2 * p + k
            c = G1 + (j * 4 + sg) * 4
            sp = SAC + 2 * sg
            TT = 72 + 4 * k
            sq = []
            for hh in range(2):
                sq.append(f"v_pk_fma_f32 v[{TT+2*hh}:{TT+2*hh+1}], v[{CSr+4*j+2*hh}:{CSr+4*j+2*hh+1}], v[{sp}:{sp+1}], v[{BBr+4*j+2*hh}:{BBr+4*j+2*hh+1}] op_sel:[0,1,0] op_sel_hi:[1,1,1] neg_lo:[0,1,0] neg_hi:[0,1,0]")
            for hh in range(2):
                sq.append(f"v_pk_fma_f32 v[{c+2*hh}:{c+2*hh+1}], v[{c+2*hh}:{c+2*hh+1}], v[{sp}:{sp+1}], v[{TT+2*hh}:{TT+2*hh+1}] op_sel_hi:[1,0,1]")
            for r in range(4): sq.append(f"v_max_f32 v{c+r}, 0, v{c+r}")
            sq += [f"v_pk_mul_f32 v[{c}:{c+1}], v[{c}:{c+1}], v[{c}:{c+1}]",
                   f"v_pk_mul_f32 v[{c+2}:{c+3}], v[{c+2}:{c+3}], v[{c+2}:{c+3}]",
                   f"v_cvt_pk_bf16_f32 v{c}, v{c}, v{c+1}",
                   f"v_cvt_pk_bf16_f32 v{c+1}, v{c+2}, v{c+3}"]
            seqs.append(sq)
        for grp in zip(*seqs):
            for x in grp: A(x)
        for k in range(2):
            c = G1 + (j * 4 + 2 * p + k) * 4
            vm.op(f"buffer_store_dwordx2 v[{c}:{c+1}], v{8+j}, {W4}, {'s%d'%T3 if p else '0'} offen offset:{256*k} sc1 {os.environ.get('F_ST3', '')}", f"st3{p}")
fidx = f"s_lshl_b32 s{T0}, s{sR}, 3\ns_add_u32 s{T0}, s{T0}, s{sFG}"
for p in range(2):
    blp(p, 0, 0)
    for t in range(16):
        st = t & 1
        lds = []
        if p == 0 and t in (3, 7, 11):
            vm.wait(*{3: ["x1"], 7: ["x2", "p1"], 11: ["x3", "p3"]}[t]); A("s_barrier")
        if p == 1 and t == P("F3A_T", 5):
            vm.wait("st30"); A("s_barrier")
            set_flag(0, F3, fidx, 92, 93)
        if t + 1 < 16: lds += capture(lambda: blp(p, t + 1, st ^ 1))
        if p == 0 and 8 <= t + 1 < 16:
            for k in range(2): lds += capture(lambda: pl(2 * (t + 1 - 8) + k, PFX[st ^ 1][k]))
        A("s_waitcnt lgkmcnt(0)")
        mfs = []
        for j in range(3):
            for k in range(2):
                c = G1 + (j * 4 + 2 * p + k) * 4
                mfs.append(f"v_mfma_f32_16x16x32_bf16 v[{c}:{c+3}], a[{(t*3+j)*4}:{(t*3+j)*4+3}], v[{BFP[st]+4*k}:{BFP[st]+4*k+3}], v[{c}:{c+3}]")
        if p == 0 and t >= 8:
            for k in range(2):
                q_ = PFX[st][k]
                mfs.insert(0, f"v_mfma_f32_16x16x32_bf16 v[{D1}:{D1+3}], v[{ONE}:{ONE+3}], v[{q_}:{q_+3}], v[{D1}:{D1+3}]")
                mfs.insert(0, f"v_mfma_f32_16x16x32_bf16 v[{D2}:{D2+3}], v[{q_}:{q_+3}], v[{q_}:{q_+3}], v[{D2}:{D2+3}]")
        for mf, x in enumerate(mfs, 1):
            A(x)
            for _ in range(2):
                if lds: A(lds.pop(0))
            if mf % 2 == 0 and xpq: xp_issue(xpq.pop(0))
            elif (p == 1 or t >= W2_T0) and mf % W2_EVERY == 0: w2_issue(1)
        assert not lds
    if p == 0:
        A(f"""v_and_b32 v124, 3, v3
        v_lshrrev_b32 v125, 2, v3
        v_cmp_eq_u32 s[{SX}:{SX+1}], v125, v4
        v_lshlrev_b32 v90, 3, v3
        s_lshl_b32 s{T0}, s{sWAVE}, 7
        s_add_u32 s{T0}, s{T0}, {L_ST}
        v_add_u32 v91, s{T0}, v90
        v_add_u32 v90, {L_ST}, v90
        v_cmp_eq_u32 vcc, 1, v124
        s_nop 1
        v_cndmask_b32 v{D2}, v{D2}, v{D2+1}, vcc
        v_cmp_eq_u32 vcc, 2, v124
        s_nop 1
        v_cndmask_b32 v{D2}, v{D2}, v{D2+2}, vcc
        v_cmp_eq_u32 vcc, 3, v124
        s_nop 1
        v_cndmask_b32 v{D2}, v{D2}, v{D2+3}, vcc""")
        ln_final(D1, D2, 88, 89)
        A(f"""v_sub_f32 v89, v89, v{M1R}
        v_mul_f32 v89, v89, v88
        s_mov_b64 exec, s[{SX}:{SX+1}]
        ds_write_b64 v91, v[88:89]
        s_mov_b64 exec, -1""")
        for i in range(6):
            A(f"ds_read_b128 v[{104+4*i}:{107+4*i}], v14 offset:{64*i}")
        A(f"s_mov_b32 s{T3}, {86*1024}\ns_waitcnt lgkmcnt(0)\ns_barrier")
        for sg in range(4):
            A(f"ds_read_b64 v[{SAC+2*sg}:{SAC+2*sg+1}], v90 offset:{128*sg}")
        A("s_waitcnt lgkmcnt(0)")
        stamp("gemm1 pass A done")
    else:
        A("s_nop 7")
        stamp("gemm1 pass B done")
    epi(p)
stamp("st3 issued")
XR, BR, GR = 96, 104, 112
A(f"""v_and_b32 v8, 31, v2
v_lshrrev_b32 v9, 5, v2
s_lshr_b32 s{T0}, s{sWAVE}, 1
s_and_b32 s{T1}, s{sWAVE}, 1
s_lshl_b32 s{T2}, s{sFG}, 7
s_lshl_b32 s{T4}, s{T1}, 6
s_add_u32 s{T2}, s{T2}, s{T4}
v_lshlrev_b32 v10, 3, v9
v_add_u32 v10, s{T2}, v10
v_lshlrev_b32 v11, 1, v10
v_add_u32 v11, {L_TGB}, v11
s_lshl_b32 s{T4}, s{sR}, 6
s_lshl_b32 s{T5}, s{T0}, 5
s_add_u32 s{T4}, s{T4}, s{T5}
v_add_u32 v12, s{T4}, v8
v_lshlrev_b32 v19, 11, v10
v_lshl_add_u32 v19, v12, 2, v19
v_add_u32 v19, {X1P}, v19
v_lshl_add_u32 v12, v12, 10, v10
v_add_u32 v16, {F3}, v15
v_add_u32 v17, {F3B}, v15""")
vm.op(f"buffer_load_dword v18, v16, {W4}, 0 offen sc1", "f3a")
w2_issue(99)
vm.wait("st31")
A("s_barrier")
set_flag(0, F3B, fidx, 92, 93)
stamp("flag3")
G2 = 24
for i in range(64): A(f"v_mov_b32 v{G2+i}, 0")
def fcheck(tag, reg, addr, lab):
    vm.wait(tag)
    A(f"""v_cmp_ne_u32 vcc, s{sEP}, v{reg}
    s_nop 1
    s_cbranch_vccz {lab}_done""")
    poll(addr, 1, 0, reg, lab, only_wave0=False)
fcheck("f3a", 18, 16, "p3a")
stamp("poll3 done")
HD = P("HD", 6)
hq = [(sb, i) for sb in range(2) for i in range(22)]
def h_issue():
    sb, i = hq.pop(0)
    vm.op(f"buffer_load_dwordx4 a[{(22*sb+i)*4}:{(22*sb+i)*4+3}], v{22+sb}, {W4}, s{ROT2[i]} offen sc1{' nt' if P('NTH',0) else ''}", f"h{sb}_{i}")
for _ in range(HD): h_issue()
for q in range(4):
    A(f"ds_read_b128 v[{GR+4*q}:{GR+4*q+3}], v11 offset:{32*q}")
F3B_I = P("F3B_I", 12)
for sb in range(2):
    for i in range(22):
        vm.wait(f"h{sb}_{i}")
        for cb in range(2):
            c = G2 + 16 * (2 * sb + cb)
            A(f"v_mfma_f32_32x32x16_bf16 v[{c}:{c+15}], {w2reg(i,cb)}, a[{(22*sb+i)*4}:{(22*sb+i)*4+3}], v[{c}:{c+15}]")
        if sb == 0 and i == F3B_I: vm.op(f"buffer_load_dword v18, v17, {W4}, 0 offen sc1", "f3b")
        if hq and hq[0] == (1, 0): fcheck("f3b", 18, 17, "p3b")
        if hq: h_issue()
        if sb == 1 and i == 2:
            for q in range(4):
                for pp in range(2):
                    A(f"s_mov_b32 s{T1}, {8192*(4*q+pp)}")
                    vm.op(f"buffer_load_dword v{XR+2*q+pp}, v19, {W4}, s{T1} offen sc1", "xr")
            for q in range(4):
                vm.op(f"buffer_load_dwordx2 v[{BR+2*q}:{BR+2*q+1}], v10, s[{SM2}:{SM2+3}], 0 offen offset:{16*q}", "xr")
vm.wait("xr")
stamp("gemm2 mfma done")
A(f"""s_nop 7
s_nop 3
v_lshlrev_b32 v13, 4, v2""")
for T in range(4):
    lab = A.label("skip")
    A(f"""s_cmp_eq_u32 s{sWAVE}, {T}
    s_cbranch_scc1 {lab}
    s_sub_u32 s{T0}, s{sWAVE}, {T+1}
    s_and_b32 s{T0}, s{T0}, 3
    s_lshl_b32 s{T0}, s{T0}, 12
    s_add_u32 s{T0}, s{T0}, {L_RED + T*12288}
    v_add_u32 v14, s{T0}, v13""")
    for q in range(4):
        A(f"ds_write_b128 v14, v[{G2+16*T+4*q}:{G2+16*T+4*q+3}] offset:{1024*q}")
    A(f"{lab}:")
OWN = 144
for T in range(4):
    lab = A.label("mv")
    A(f"s_cmp_lg_u32 s{sWAVE}, {T}\ns_cbranch_scc1 {lab}")
    for i in range(16): A(f"v_mov_b32 v{OWN+i}, v{G2+16*T+i}")
    A(f"{lab}:")
A(f"""s_mul_i32 s{T0}, s{sWAVE}, 12288
s_add_u32 s{T0}, s{T0}, {L_RED}
v_add_u32 v14, s{T0}, v13
s_waitcnt lgkmcnt(0)
s_barrier""")
for q in range(4):
    for sl in range(3):
        A(f"ds_read_b128 v[{G2+16*sl+4*q}:{G2+16*sl+4*q+3}], v14 offset:{4096*sl+1024*q}")
U = 160
for q in range(4):
    c = OWN + 4 * q
    A(f"""v_lshlrev_b32 v{U}, 16, v{BR+2*q}
    v_and_b32 v{U+1}, 0xffff0000, v{BR+2*q}
    v_lshlrev_b32 v{U+2}, 16, v{BR+2*q+1}
    v_and_b32 v{U+3}, 0xffff0000, v{BR+2*q+1}
    v_pk_add_f32 v[{c}:{c+1}], v[{c}:{c+1}], v[{U}:{U+1}]
    v_pk_add_f32 v[{c+2}:{c+3}], v[{c+2}:{c+3}], v[{U+2}:{U+3}]
    v_lshlrev_b32 v{U}, 16, v{XR+2*q}
    v_and_b32 v{U+1}, 0xffff0000, v{XR+2*q}
    v_lshlrev_b32 v{U+2}, 16, v{XR+2*q+1}
    v_and_b32 v{U+3}, 0xffff0000, v{XR+2*q+1}
    s_waitcnt lgkmcnt({3*(3-q)})""")
    for sl in range(3):
        for hh in range(2):
            A(f"v_pk_add_f32 v[{c+2*hh}:{c+2*hh+1}], v[{c+2*hh}:{c+2*hh+1}], v[{G2+16*sl+4*q+2*hh}:{G2+16*sl+4*q+2*hh+1}]")
    A(f"""v_pk_fma_f32 v[{c}:{c+1}], v[{c}:{c+1}], v[{GR+4*q}:{GR+4*q+1}], v[{U}:{U+1}]
    v_pk_fma_f32 v[{c+2}:{c+3}], v[{c+2}:{c+3}], v[{GR+4*q+2}:{GR+4*q+3}], v[{U+2}:{U+3}]
    v_cvt_pk_bf16_f32 v{c}, v{c}, v{c+1}
    v_cvt_pk_bf16_f32 v{c+1}, v{c+2}, v{c+3}
    buffer_store_dwordx2 v[{c}:{c+1}], v12, s[{SOUT}:{SOUT+3}], 0 offen offset:{16*q}{' nt' if P('NTO',0) else ''}""")
if STAMP:
    stamp("out issued")
    A("s_waitcnt vmcnt(0)")
    stamp("end")
    A("s_memtime s[100:101]\ns_waitcnt lgkmcnt(0)\nv_writelane_b32 v143, s100, 63")
    A(f"""v_lshlrev_b32 v1, 2, v2
    s_lshl_b32 s{T0}, s2, 10
    s_lshl_b32 s{T1}, s{sWAVE}, 8
    s_add_u32 s{T0}, s{T0}, s{T1}
    s_add_u32 s{T0}, s{T0}, {TS}
    v_add_u32 v1, s{T0}, v1
    buffer_store_dword v143, v1, {W4}, 0 offen""")
    if os.environ.get("DBGOUT"):
        sel = [1, 2, 4, 6, 7, 8, 9, 10, 12, 13, 15, 16, 17, 20, 22, 24]
        A(f"""s_cmp_lg_u32 s2, {os.environ['DBGOUT']}
        s_cbranch_scc1 k_done
        s_cmp_lg_u32 s{sWAVE}, 0
        s_cbranch_scc1 k_done
        s_load_dwordx2 s[8:9], s[0:1], 112
        v_readlane_b32 s{T1}, v143, 0
        s_waitcnt lgkmcnt(0)
        s_mov_b32 s10, 256
        s_mov_b32 s11, 0x00020000
        v_mov_b32 v5, 0""")
        for i, k in enumerate(sel):
            A(f"v_readlane_b32 s{T0}, v143, {k}\ns_sub_u32 s{T0}, s{T0}, s{T1}\nv_writelane_b32 v5, s{T0}, {i}")
        A(f"""v_lshlrev_b32 v6, 2, v2
        s_mov_b64 exec, 0xffff
        buffer_store_dword v5, v6, s[8:11], 0 offen""")
A("k_done:\ns_endpgm\nk_end:")

hdr = f"; @launch grid=(256,1,1) block=(256,1,1) lds={LDS_SZ}\n.amdgcn_target \"amdgcn-amd-amdhsa--gfx950\"\n.text\n"
out = hdr + A.text() + '.section .rodata,"a"\n' + A.kd(name, 256, 102, accum=256, agpr=256)
open(sys.argv[1], "w").write(out)
print("stamps", nst[0], "lds", LDS_SZ, file=sys.stderr)
```

```python
import sys, os
from asmlib import *

STAMP = os.environ.get("STAMP") == "1"
def P(n, d): return int(os.environ.get(n, d))
S, D, F = 2048, 512, 1376
UR, QP, X1P, X1S, HID, W1P, W2P = 0x0, 0x200000, 0x400000, 0x600000, 0x800000, 0xE00000, 0x1000000
MODF, ST1 = 0x1200000, 0x1210000
F1A, F1B, F2, F3, EPOCH, F3B = 0x1300000, 0x1304000, 0x1308000, 0x130C000, 0x1310000, 0x1314000
TS = 0x1400000
WS_SZ = 0x1500000
OOB = 0x40000000
SZ_SD = S * D * 2
SZ_W = D * F * 2
POLL_MAX = 200000

OSZ = 2368; USZ = 2 * OSZ
L_U = 0
L_KF = 9472; KFSZ = 8256
L_MODP = L_KF + 2 * KFSZ
L_XP = 0
L_X = 65536
L_RED = L_X
L_TB = 131072
L_TC2 = L_TB + 2048 + 64
L_TGB = L_TC2 + 2048 + 64
L_BB = L_TGB + 2048
L_ST = L_BB + 4 * 384
LDS_SZ = L_ST + 512
assert LDS_SZ <= 160 * 1024 and L_MODP + 4096 <= 65536

WS, SK, SV, SQ, SM1, SKF, SM2, SC, SWM, SPK, SOUT = 4, 8, 12, 16, 20, 24, 28, 32, 36, 40, 48
sWAVE, sXG, sJ, sEP = 52, 53, 54, 55
sR, sFG, sD0, sONES, sM = 96, 97, 98, 99, 3
T0, T1, T2, T3, T4, T5 = 56, 57, 58, 59, 60, 61
SX = 62
ROT1 = [64 + i for i in range(16)]
ROT2 = [80 + i for i in range(16)] + [8 + i for i in range(6)]
sROT1 = 14

A = Asm()
name = "adaLN_cond__ssm_conv_h3__dense_activation_squared_relu__prompt_kernel"
W4 = f"s[{WS}:{WS+3}]"

class VM:
    def __init__(self): self.q = []
    def op(self, text, tag):
        A(text); self.q.append(tag)
    def wait(self, *tags, extra=""):
        last = max((i for i, t in enumerate(self.q) if t in tags), default=-1)
        n = len(self.q) - 1 - last
        if last >= 0:
            assert n <= 63, (tags, n)
            A(f"s_waitcnt vmcnt({n}) {extra}".rstrip())
            self.q = self.q[last + 1:]
        elif extra:
            A(f"s_waitcnt {extra}")
vm = VM()

nst = [0]
def stamp(label=""):
    if not STAMP: return
    i = nst[0]; nst[0] += 1
    print(f"stamp {i}: {label}", file=sys.stderr)
    A(f"""s_memrealtime s[100:101]
    s_waitcnt lgkmcnt(0)
    v_writelane_b32 v143, s100, {i}""")

def rnd1(r):
    A(f"v_cvt_pk_bf16_f32 v{r}, v{r}, v{r}\nv_lshlrev_b32 v{r}, 16, v{r}")
def capture(fn):
    save = A.lines; A.lines = []
    fn()
    tmp = [x.strip() for x in A.lines]; A.lines = save
    return tmp

def poll(addr_v, nloads, stride_imm, dst, lab, only_wave0=True):
    if only_wave0:
        A(f"s_cmp_lg_u32 s{sWAVE}, 0\ns_cbranch_scc1 {lab}_done")
    A(f"s_mov_b32 s{T0}, 0\n{lab}:")
    for k in range(nloads):
        A(f"s_mov_b32 s{T1}, {k*stride_imm}\nbuffer_load_dword v{dst+k}, v{addr_v}, {W4}, s{T1} offen sc1")
    A("s_waitcnt vmcnt(0)")
    for k in range(nloads):
        A(f"v_xor_b32 v{dst+k}, s{sEP}, v{dst+k}")
    for k in range(1, nloads):
        A(f"v_or_b32 v{dst}, v{dst}, v{dst+k}")
    A(f"""v_cmp_ne_u32 vcc, 0, v{dst}
    s_add_u32 s{T0}, s{T0}, 1
    s_cmp_ge_u32 s{T0}, {POLL_MAX}
    s_cbranch_scc1 {lab}_done
    s_cbranch_vccz {lab}_done
    s_mov_b64 exec, vcc
    s_sleep {P("PSLEEP", 2)}
    s_branch {lab}
    {lab}_done:
    s_mov_b64 exec, -1""")

def set_flag(wave, base, idx_code, va, vd, pre=""):
    lab = A.label("fl")
    A(f"""s_cmp_lg_u32 s{sWAVE}, {wave}
    s_cbranch_scc1 {lab}
    {pre}
    {idx_code}
    s_lshl_b32 s{T0}, s{T0}, 6
    s_add_u32 s{T0}, s{T0}, {base}
    v_mov_b32 v{va}, s{T0}
    v_mov_b32 v{vd}, s{sEP}
    s_mov_b64 exec, 1
    buffer_store_dword v{vd}, v{va}, {W4}, 0 offen sc1
    s_mov_b64 exec, -1
    {lab}:""".replace("    \n", ""))

def ln_final(sm, sq, rs_out, m_out):
    A(f"""v_mul_f32 v{m_out}, 0x3b000000, v{sm}
    v_mul_f32 v{rs_out}, 0x3b000000, v{sq}
    v_fma_f32 v{rs_out}, -v{m_out}, v{m_out}, v{rs_out}
    v_max_f32 v{rs_out}, 0, v{rs_out}""")
    rnd1(rs_out); rnd1(m_out)
    A(f"v_add_f32 v{rs_out}, 0x3727c5ac, v{rs_out}")
    rnd1(rs_out)
    A(f"v_sqrt_f32 v{rs_out}, v{rs_out}\ns_nop 0")
    rnd1(rs_out)
    A(f"v_rcp_f32 v{rs_out}, v{rs_out}\ns_nop 0")

A.kernel_begin(name)
NCP = P("NCP", 6)
A(f"""s_cmp_ge_u32 s2, 256
s_cbranch_scc1 k_done
s_load_dwordx16 s[64:79], s[0:1], 0
s_load_dwordx16 s[80:95], s[0:1], 64
s_getpc_b64 s[48:49]
k_pc:""")
A(f"""
v_lshrrev_b32 v1, 6, v0
v_and_b32 v2, 63, v0
v_readfirstlane_b32 s{sWAVE}, v1
s_and_b32 s{sXG}, s2, 7
s_lshr_b32 s{sJ}, s2, 3
v_and_b32 v3, 15, v2
v_lshrrev_b32 v4, 4, v2
s_lshr_b32 s{T0}, s{sJ}, 3
s_lshl_b32 s{T0}, s{T0}, 3
s_add_u32 s{sR}, s{sXG}, s{T0}
s_and_b32 s{sFG}, s{sJ}, 7
s_lshl_b32 s{sD0}, s{sXG}, 6
s_lshl_b32 s{T0}, s{sJ}, 1
s_add_u32 s{sD0}, s{sD0}, s{T0}
s_mov_b32 s{sONES}, 0x3f803f80""")
stamp("start")
if STAMP: A("s_memtime s[100:101]\ns_waitcnt lgkmcnt(0)\nv_writelane_b32 v143, s100, 62")
KT, VT, QT, US, QS, PKT = L_X, L_X + 9216, L_X + 17408, L_X + 25600, L_X + 33792, L_X + 41984
A(f"""v_lshrrev_b32 v5, 3, v2
v_lshlrev_b32 v5, 10, v5
v_and_b32 v6, 7, v2
v_lshl_add_u32 v5, v6, 4, v5          ; (l>>3)*1024 + (l&7)*16
s_lshl_b32 s{T0}, s{sJ}, 16
s_lshl_b32 s{T1}, s{sXG}, 7
s_add_u32 s{T0}, s{T0}, s{T1}
v_add_u32 v7, s{T0}, v5
v_subrev_u32 v7, 8192, v7
s_lshl_b32 s{T1}, s{sWAVE}, 14
s_add_u32 s{T0}, s{T0}, s{T1}
v_add_u32 v5, s{T0}, v5
v_and_b32 v12, 31, v0                 ; cp
v_lshrrev_b32 v13, 5, v0              ; rg
v_lshlrev_b32 v8, 4, v12
s_lshl_b32 s{T0}, s{sXG}, 9
v_add_u32 v8, s{T0}, v8
s_lshl_b32 s{T4}, s{sWAVE}, 11         ; 2048*w
s_movk_i32 s{T5}, 8192
s_waitcnt lgkmcnt(0)""")
if P("TLBT", 0):
    for p in (66, 68, 64, 70, 72, 74, 86, 88, 78, 82, 80, 84, 90):
        A(f"s_load_dword s0, s[{p}:{p+1}], 0")
    A(f"s_add_u32 s76, s88, 0x200000\ns_addc_u32 s77, s89, 0\ns_load_dword s0, s[76:77], 0")
    A(f"s_mov_b32 s76, s94\ns_mov_b32 s77, s95")
    for pg in range(10):
        A(f"s_load_dword s0, s[76:77], 0")
        if pg < 9: A(f"s_add_u32 s76, s76, 0x200000\ns_addc_u32 s77, s77, 0")
A.srd(SK, 66, SZ_SD); A.srd(SV, 68, SZ_SD); A.srd(SM1, 70, 4096); A.srd(SQ, 64, SZ_SD)
A(f"""s_cmp_lg_u32 s{sWAVE}, 3
s_cbranch_scc1 nohalo
s_mov_b32 m0, {KT}
s_nop 0
buffer_load_dwordx4 v7, s[{SK}:{SK+3}], 0 offen lds
nohalo:""")
W = 44
NTQ = lambda srd: ' nt' if (P('NT', 1) and (srd != SQ or P('NTQ', 1))) else ''
for (base, srd, tag) in ((KT + 1024, SK, "k"), (VT, SV, "k"), (QT, SQ, "k")):
    for i in range(2):
        A(f"s_add_u32 s{T0}, s{T4}, {base + 1024*i}\ns_mov_b32 m0, s{T0}\ns_nop 0")
        vm.op(f"buffer_load_dwordx4 v5, s[{srd}:{srd+3}], {'s%d'%T5 if i else '0'} offen{NTQ(srd)} lds", tag)
vm.op(f"buffer_load_dwordx4 v[{W}:{W+3}], v8, s[{SM1}:{SM1+3}], 0 offen", "k")
A(f"""s_mul_i32 s{T0}, s{sJ}, 43
s_lshr_b32 s{T0}, s{T0}, 8              ; j/6
s_mul_i32 s{T0}, s{T0}, 6
s_sub_u32 s{T0}, s{sJ}, s{T0}           ; j%6
s_lshl_b32 s{T0}, s{T0}, 12
v_lshl_add_u32 v9, v0, 4, s{T0}
v_min_u32 v9, k_end-k_pc-16, v9""")
vm.op(f"global_load_dwordx4 a[0:3], v9, s[48:49]", "code")
A.srd(WS, 94, WS_SZ); A.srd(SKF, 72, SZ_SD); A.srd(SM2, 74, 1024); A.srd(SC, 86, 1024); A.srd(SWM, 88, 512 * 3072 * 2)
A.srd(SOUT, 90, SZ_SD)
A(f"v_mov_b32 v142, {EPOCH}")
vm.op(f"buffer_load_dword v142, v142, {W4}, 0 offen sc1", "ep")
KF0, DD, SR, CC, WM = 48, 58, 60, 68, 72
PS, PA, PD = 88, 92, 90
A(f"""s_sub_u32 s{T0}, s2, 74
v_lshlrev_b32 v{PD}, 4, v2
v_bfe_u32 v9, v2, 2, 2                ; r
v_and_b32 v10, 3, v2                  ; c
s_cmp_lt_u32 s{T0}, 96
s_cbranch_scc0 pk_w2""")
A.srd(SPK, 78, SZ_W)
A(f"""s_and_b32 s{T1}, s{T0}, 15              ; t
s_lshr_b32 s{T2}, s{T0}, 4              ; Fgb
v_lshrrev_b32 v11, 5, v2
v_bfe_u32 v14, v2, 1, 4
s_and_b32 s{T3}, s{sWAVE}, 1
s_lshl_b32 s{T3}, s{T3}, 2
v_or_b32 v15, s{T3}, v11
v_xor_b32 v14, v14, v15               ; i' even
v_xor_b32 v15, 2, v14                 ; i' odd
v_mul_u32_u24 v11, 2752, v11
v_and_b32 v16, 1, v2
v_lshl_add_u32 v11, v16, 4, v11
s_mul_i32 s{T3}, s{T1}, {32*2752}
s_mul_i32 s{T4}, s{sWAVE}, {8*2752}
s_add_u32 s{T3}, s{T3}, s{T4}
s_lshl_b32 s{T4}, s{T2}, 9
s_add_u32 s{T3}, s{T3}, s{T4}
v_add_u32 v11, s{T3}, v11
v_lshl_add_u32 v{PS}, v14, 5, v11
v_lshl_add_u32 v{PS+1}, v15, 5, v11
s_movk_i32 s44, 5504
v_and_b32 v14, 1, v4
v_lshl_or_b32 v14, v14, 2, v9
v_lshl_add_u32 v15, v4, 3, v9
v_lshlrev_b32 v15, 9, v15
v_lshl_add_u32 v15, v10, 3, v15
v_add_u32 v15, {PKT}, v15
s_lshl_b32 s{T3}, s{sWAVE}, 2
v_xor_b32 v14, s{T3}, v14""")
for u in range(4):
    A(f"""v_xor_b32 v16, {u}, v14
    v_lshl_add_u32 v{PA+u}, v16, 5, v15
    v_add_u32 v{PA+4+u}, 2048, v{PA+u}""")
A(f"""s_lshl_b32 s{T2}, s{T2}, 2
s_add_u32 s{T2}, s{T2}, s{sWAVE}        ; Fg
s_lshl_b32 s{T3}, s{T2}, 16
s_lshl_b32 s{T4}, s{T1}, 10
s_add_u32 s{T3}, s{T3}, s{T4}
s_add_u32 s{T3}, s{T3}, {W1P}
s_cmp_ge_u32 s{T2}, 22
s_cselect_b32 s{T3}, {OOB}, s{T3}
v_add_u32 v{PD}, s{T3}, v{PD}
s_movk_i32 s45, 16384
s_cmp_eq_u32 s{T2}, 21
s_cselect_b32 s46, {OOB}, 0
s_branch pk_go
pk_w2:""")
A.srd(SPK, 82, SZ_W)
A(f"""s_sub_u32 s{T1}, s2, 170                ; F
v_bfe_u32 v14, v2, 2, 2
v_xor_b32 v14, v14, v4
v_lshlrev_b32 v11, 10, v4
v_lshl_add_u32 v11, v14, 6, v11
v_lshl_add_u32 v11, v10, 4, v11
s_lshl_b32 s{T3}, s{T1}, 14
s_lshl_b32 s{T4}, s{sWAVE}, 8
s_add_u32 s{T3}, s{T3}, s{T4}
s_cmp_ge_u32 s{T1}, 86
s_cselect_b32 s{T3}, {OOB}, s{T3}
v_add_u32 v{PS}, s{T3}, v11
v_mov_b32 v{PS+1}, v{PS}
s_movk_i32 s44, 4096
v_lshrrev_b32 v14, 1, v4
v_lshl_add_u32 v14, v14, 3, v9
v_lshlrev_b32 v14, 8, v14
v_and_b32 v15, 1, v4
v_lshl_add_u32 v14, v15, 5, v14
v_lshl_add_u32 v14, v10, 3, v14
s_lshl_b32 s{T3}, s{sWAVE}, 12
s_add_u32 s{T3}, s{T3}, {PKT}
v_add_u32 v14, s{T3}, v14""")
for u in range(4):
    A(f"""v_xor_b32 v16, {u}, v9
    v_lshl_add_u32 v{PA+u}, v16, 6, v14
    v_add_u32 v{PA+4+u}, 1024, v{PA+u}""")
A(f"""s_mul_i32 s{T3}, s{sWAVE}, {4*86*1024}
s_lshl_b32 s{T4}, s{T1}, 10
s_add_u32 s{T3}, s{T3}, s{T4}
s_add_u32 s{T3}, s{T3}, {W2P}
s_cmp_ge_u32 s{T1}, 86
s_cselect_b32 s{T3}, {OOB}, s{T3}
v_add_u32 v{PD}, s{T3}, v{PD}
s_mov_b32 s45, {86*1024}
s_mov_b32 s46, 0
pk_go:
s_lshl_b32 s{T4}, s{sWAVE}, 12
s_mov_b32 s47, 0""")
def j_kf():
    A(f"""v_lshlrev_b32 v25, 4, v0
    s_lshl_b32 s{T0}, s{sD0}, 12
    v_add_u32 v25, s{T0}, v25
    s_movk_i32 s{T1}, 4096""")
    vm.op(f"buffer_load_dwordx4 v[{KF0}:{KF0+3}], v25, s[{SKF}:{SKF+3}], 0 offen{' nt' if P('NT',1) else ''}", "kf")
    vm.op(f"buffer_load_dwordx4 v[{KF0+4}:{KF0+7}], v25, s[{SKF}:{SKF+3}], s{T1} offen{' nt' if P('NT',1) else ''}", "kf")
    A(f"s_lshl_b32 s{T0}, s{sD0}, 1\nv_mov_b32 v25, s{T0}")
    vm.op(f"buffer_load_dword v{DD}, v25, s[{SM2}:{SM2+3}], 0 offen", "D")
def j_pk():
    A(f"s_lshl_b32 s{T4}, s{sWAVE}, 12\ns_mov_b32 s47, 0")
    for i in range(4):
        A(f"s_add_u32 s{T0}, s{T4}, {PKT + 1024*i}\ns_mov_b32 m0, s{T0}\ns_nop 0")
        vm.op(f"buffer_load_dwordx4 v{PS+(i&1)}, s[{SPK}:{SPK+3}], s47 offen{' nt' if P('NT',1) else ''} lds", "pk")
        if i < 3: A(f"s_add_u32 s47, s47, s44")
def j_mod():
    A(f"""s_mul_i32 s{T0}, s2, 1366
    s_lshr_b32 s{T0}, s{T0}, 16
    s_mul_i32 s{T1}, s{T0}, 48
    s_sub_u32 s{T1}, s2, s{T1}
    s_mul_i32 s{sM}, s{T0}, 12288
    s_lshl_b32 s{T2}, s{T1}, 8
    s_add_u32 s{sM}, s{sM}, s{T2}
    s_add_u32 s{sM}, s{sM}, {MODF}
    s_cmp_ge_u32 s2, 192
    s_cselect_b32 s{sM}, {OOB}, s{sM}
    s_mul_i32 s{T2}, s{T0}, {128*6144}
    s_lshl_b32 s{T3}, s{T1}, 7
    s_add_u32 s{T2}, s{T2}, s{T3}
    s_cmp_ge_u32 s2, 192
    s_cselect_b32 s{T2}, {OOB}, s{T2}
    v_and_b32 v22, 7, v0
    v_lshrrev_b32 v23, 3, v0
    v_mul_u32_u24 v24, {4*6144}, v23
    v_lshl_add_u32 v24, v22, 4, v24
    v_add_u32 v24, s{T2}, v24
    v_lshlrev_b32 v23, 3, v23
    s_lshl_b32 s{T0}, s{T0}, 8
    v_add_u32 v23, s{T0}, v23""")
    vm.op(f"buffer_load_dwordx2 v[{CC}:{CC+1}], v23, s[{SC}:{SC+3}], 0 offen", "c")
    for i in range(4):
        A(f"s_mov_b32 s{T0}, {6144*i}")
        vm.op(f"buffer_load_dwordx4 v[{WM+4*i}:{WM+4*i+3}], v24, s[{SWM}:{SWM+3}], s{T0} offen{' nt' if P('NT',1) else ''}", "wm")
def j_st():
    A(f"""v_lshlrev_b32 v22, 4, v2
    s_lshl_b32 s{T0}, s2, 13
    s_lshl_b32 s{T1}, s{sWAVE}, 11
    s_add_u32 s{T0}, s{T0}, s{T1}
    v_add_u32 v22, s{T0}, v22""")
    vm.op(f"buffer_load_dwordx4 v[{SR}:{SR+3}], v22, s[{SQ}:{SQ+3}], 0 offen{' nt' if P('NTS',1) else ''}", "sr")
    vm.op(f"buffer_load_dwordx4 v[{SR+4}:{SR+7}], v22, s[{SQ}:{SQ+3}], 0 offen offset:1024{' nt' if P('NTS',1) else ''}", "sr")
JOBS = dict(kf=j_kf, pk=j_pk, mod=j_mod, st=j_st)
ORD = os.environ.get("ORD", "mod/kf,pk,st/").split("/")
for j_ in ORD[0].split(","):
    if j_: JOBS[j_]()
A(f"""v_lshlrev_b32 v5, 10, v13
v_lshl_add_u32 v5, v12, 2, v5
v_add_u32 v6, {KT + 5*128 + 1024}, v5
v_add_u32 v5, {KT + 5*128}, v5
v_subrev_u32 v7, {KT + 5*128 - VT}, v5
v_add_u32 v8, {QT - VT}, v7
v_and_b32 v9, 7, v12
v_sub_u32 v10, 7, v13
v_xor_b32 v10, v10, v9
v_lshlrev_b32 v14, 8, v12
v_lshl_add_u32 v15, v10, 4, v14
v_add_u32 v15, {US}, v15
v_lshlrev_b32 v10, 1, v13
v_xor_b32 v10, v10, v9
v_lshl_add_u32 v16, v10, 4, v14
v_add_u32 v16, {QS}, v16
v_xor_b32 v17, 16, v16
v_lshrrev_b32 v9, 3, v0               ; ch
v_and_b32 v10, 7, v0
v_bfe_u32 v11, v0, 4, 3
v_xor_b32 v11, v11, v10
v_lshlrev_b32 v18, 7, v9
v_lshl_add_u32 v18, v11, 4, v18
v_add_u32 v18, {US}, v18
v_lshlrev_b32 v19, 12, v9
v_lshl_add_u32 v19, v10, 4, v19
s_lshl_b32 s{T0}, s{sXG}, 18
s_lshl_b32 s{T1}, s{sJ}, 7
s_sub_u32 s{T0}, s{T0}, s{T1}
s_add_u32 s{T0}, s{T0}, 3968
v_add_u32 v19, s{T0}, v19
v_lshrrev_b32 v9, 4, v0
v_and_b32 v11, 7, v9
v_xor_b32 v11, v11, v3
v_lshlrev_b32 v20, 8, v9
v_lshl_add_u32 v20, v11, 4, v20
v_add_u32 v20, {QS}, v20
v_lshlrev_b32 v21, 13, v9
v_lshl_add_u32 v21, v3, 4, v21
s_lshl_b32 s{T0}, s{sXG}, 18
s_lshl_b32 s{T1}, s{sJ}, 8
s_add_u32 s{T0}, s{T0}, s{T1}
s_add_u32 s{T0}, s{T0}, {QP}
v_add_u32 v21, s{T0}, v21""")
stamp("issued")
vm.wait("k")
A("s_barrier")
stamp("kvq in lds")
KR, VR, QR = 144, 156, 164
for j in range(0, 8, 2):
    A(f"ds_read2_b32 v[{KR+j}:{KR+j+1}], v5 offset0:{32*j} offset1:{32*j+32}")
A(f"ds_read2_b32 v[{KR+8}:{KR+9}], v6 offset0:0 offset1:32\nds_read_b32 v{KR+10}, v6 offset:256")
for j in range(0, 8, 2):
    A(f"ds_read2_b32 v[{VR+j}:{VR+j+1}], v7 offset0:{32*j} offset1:{32*j+32}")
for j in range(0, 8, 2):
    A(f"ds_read2_b32 v[{QR+j}:{QR+j+1}], v8 offset0:{32*j} offset1:{32*j+32}")
for j_ in ORD[1].split(","):
    if j_: JOBS[j_]()
WF, KFF, O = 100, 108, 172
KV = [180 + 2 * r for r in range(8)]
A(f"""v_lshlrev_b32 v{WF+0}, 16, v{W+0}
v_lshlrev_b32 v{WF+1}, 16, v{W+2}
v_and_b32 v{WF+2}, 0xffff0000, v{W+0}
v_and_b32 v{WF+3}, 0xffff0000, v{W+2}
v_lshlrev_b32 v{WF+4}, 16, v{W+1}
v_lshlrev_b32 v{WF+5}, 16, v{W+3}
v_and_b32 v{WF+6}, 0xffff0000, v{W+1}
v_and_b32 v{WF+7}, 0xffff0000, v{W+3}
s_waitcnt lgkmcnt(8)""")
for j in range(11):
    A(f"v_lshlrev_b32 v{KFF+2*j}, 16, v{KR+j}\nv_and_b32 v{KFF+2*j+1}, 0xffff0000, v{KR+j}")
A(f"""s_waitcnt lgkmcnt(0)
ds_write_b128 v16, v[{QR}:{QR+3}]
ds_write_b128 v17, v[{QR+4}:{QR+7}]""")
for r in range(8):
    A(f"v_pk_mul_f32 v[{KV[r]}:{KV[r]+1}], v[{KFF+2*r}:{KFF+2*r+1}], v[{WF+6}:{WF+7}]")
for t in range(1, 4):
    for r in range(8):
        A(f"v_pk_fma_f32 v[{KV[r]}:{KV[r]+1}], v[{KFF+2*(r+t)}:{KFF+2*(r+t)+1}], v[{WF+2*(3-t)}:{WF+2*(3-t)+1}], v[{KV[r]}:{KV[r]+1}]")
for r in range(8):
    A(f"v_lshlrev_b32 v{KFF+2*r}, 16, v{VR+r}\nv_and_b32 v{KFF+2*r+1}, 0xffff0000, v{VR+r}")
for r in range(8):
    A(f"v_pk_mul_f32 v[{KV[r]}:{KV[r]+1}], v[{KV[r]}:{KV[r]+1}], v[{KFF+2*r}:{KFF+2*r+1}]")
for e in range(2):
    for j in range(4):
        A(f"v_cvt_pk_bf16_f32 v{O+4*e+j}, v{KV[7-2*j]+e}, v{KV[6-2*j]+e}")
    A(f"ds_write_b128 v15, v[{O+4*e}:{O+4*e+3}] offset:{128*e}")
A(f"""s_mov_b32 s{T1}, 131072
s_waitcnt lgkmcnt(0)
s_barrier
ds_read_b128 v[144:147], v18
ds_read_b128 v[148:151], v18 offset:4096
ds_read_b128 v[152:155], v20
ds_read_b128 v[156:159], v20 offset:4096
s_waitcnt lgkmcnt(3)""")
vm.op(f"buffer_store_dwordx4 v[144:147], v19, {W4}, 0 offen {'' if P('PLAIN_UQ',0) else 'sc1'} {os.environ.get('F_ST1', '')}", "st1")
A("s_waitcnt lgkmcnt(2)")
vm.op(f"buffer_store_dwordx4 v[148:151], v19, {W4}, s{T1} offen {'' if P('PLAIN_UQ',0) else 'sc1'} {os.environ.get('F_ST1', '')}", "st1")
A("s_waitcnt lgkmcnt(1)")
vm.op(f"buffer_store_dwordx4 v[152:155], v21, {W4}, 0 offen {'' if P('PLAIN_UQ',0) else 'sc1'} {os.environ.get('F_ST1', '')}", "st1")
A("s_waitcnt lgkmcnt(0)")
vm.op(f"buffer_store_dwordx4 v[156:159], v21, {W4}, s{T1} offen {'' if P('PLAIN_UQ',0) else 'sc1'} {os.environ.get('F_ST1', '')}", "st1")
for j_ in ORD[2].split(","):
    if j_: JOBS[j_]()
stamp("st1 issued")
vm.wait("kf", "D")
A(f"""v_lshlrev_b32 v9, 4, v0
v_mov_b32 v120, 0
v_mov_b32 v121, 0
v_mov_b32 v122, 0
v_mov_b32 v123, 0
ds_write_b128 v9, v[{KF0}:{KF0+3}] offset:{L_KF + 32}
ds_write_b128 v9, v[{KF0+4}:{KF0+7}] offset:{L_KF + KFSZ + 32}
v_mul_u32_u24 v22, {OSZ}, v4
v_lshl_add_u32 v22, v3, 4, v22
v_lshrrev_b32 v10, 1, v2
v_and_b32 v10, 3, v10
v_mul_u32_u24 v10, 4128, v10
v_and_b32 v11, 1, v2
v_lshl_add_u32 v10, v11, 4, v10
ds_write_b128 v22, v[120:123] offset:{L_U + 2048}
ds_write_b128 v10, v[120:123] offset:{L_KF}""")
vm.wait("c")
A(f"""v_lshlrev_b32 v{CC+2}, 16, v{CC+1}
v_and_b32 v{CC+3}, 0xffff0000, v{CC+1}
v_and_b32 v{CC+1}, 0xffff0000, v{CC}
v_lshlrev_b32 v{CC}, 16, v{CC}""")
for i in range(4): A(f"v_mul_f32 v{100+i}, 0xbfb8aa3b, v{CC+i}")
for i in range(4): A(f"v_exp_f32 v{100+i}, v{100+i}")
for i in range(4): A(f"v_add_f32 v{100+i}, 1.0, v{100+i}")
for i in range(4): A(f"v_rcp_f32 v{100+i}, v{100+i}")
for i in range(4): A(f"v_mul_f32 v{CC+i}, v{CC+i}, v{100+i}")
for i in range(0, 4, 2):
    A(f"""v_cvt_pk_bf16_f32 v100, v{CC+i}, v{CC+i+1}
    v_lshlrev_b32 v{CC+i}, 16, v100
    v_and_b32 v{CC+i+1}, 0xffff0000, v100""")
MA = 104
vm.wait("wm")
for i in range(4):
    for j in range(4):
        t = 112 + 2 * (j % 2)
        A(f"v_lshlrev_b32 v{t}, 16, v{WM+4*i+j}\nv_and_b32 v{t+1}, 0xffff0000, v{WM+4*i+j}")
        if i == 0:
            A(f"v_pk_mul_f32 v[{MA+2*j}:{MA+2*j+1}], v[{t}:{t+1}], v[{CC}:{CC+1}] op_sel_hi:[1,0]")
        else:
            sel = "op_sel_hi:[1,0,1]" if i % 2 == 0 else "op_sel:[0,1,0] op_sel_hi:[1,1,1]"
            A(f"v_pk_fma_f32 v[{MA+2*j}:{MA+2*j+1}], v[{t}:{t+1}], v[{CC+(i//2)*2}:{CC+(i//2)*2+1}], v[{MA+2*j}:{MA+2*j+1}] {sel}")
A(f"""v_lshrrev_b32 v11, 4, v0
v_lshlrev_b32 v11, 8, v11
v_and_b32 v10, 7, v0
v_lshl_add_u32 v11, v10, 5, v11""")
for j in range(8):
    A(f"v_add_f32_dpp v{MA+j}, v{MA+j}, v{MA+j} row_shr:8 row_mask:0xf bank_mask:0xf bound_ctrl:0")
A(f"""v_cmp_le_u32 vcc, 8, v3
s_and_saveexec_b64 s[{SX}:{SX+1}], vcc
ds_write_b128 v11, v[{MA}:{MA+3}] offset:{L_MODP}
ds_write_b128 v11, v[{MA+4}:{MA+7}] offset:{L_MODP+16}
s_mov_b64 exec, s[{SX}:{SX+1}]""")
vm.wait("st1", "pk", "ep", extra="lgkmcnt(0)")
A(f"v_readfirstlane_b32 s{sEP}, v142\ns_barrier\ns_add_u32 s{sEP}, s{sEP}, 0x9e3779b9")
set_flag(0, F1A, f"s_lshl_b32 s{T0}, s{sXG}, 5\ns_add_u32 s{T0}, s{T0}, s{sJ}", 10, 11)
stamp("flag1a")
PKR = 144
for u in range(4):
    A(f"ds_read_b64_tr_b16 v[{PKR+4*u}:{PKR+4*u+1}], v{PA+u}\nds_read_b64_tr_b16 v[{PKR+4*u+2}:{PKR+4*u+3}], v{PA+4+u}")
KFM = 56
A(f"""ds_read_b32 v{KFM}, v9 offset:{L_KF + 28}
ds_read_b32 v{KFM+1}, v9 offset:{L_KF + KFSZ + 28}
s_mov_b32 s47, 0""")
for u in range(4):
    A(f"s_waitcnt lgkmcnt({8-2*u})")
    vm.op(f"buffer_store_dwordx4 v[{PKR+4*u}:{PKR+4*u+3}], v{PD}, {W4}, s47 offen sc1 {os.environ.get('F_ST1B', '')}", "st1b")
    if u < 3:
        A(f"s_add_u32 s47, s47, s45")
        if u == 1: A(f"s_add_u32 s47, s47, s46")
A(f"""s_cmp_lg_u32 s{sWAVE}, 1
s_cbranch_scc1 modf_done
v_lshlrev_b32 v11, 2, v2""")
for p in range(16):
    A(f"ds_read_b32 v{160+p}, v11 offset:{L_MODP+256*p}")
A("s_waitcnt lgkmcnt(0)")
for st in (8, 4, 2, 1):
    for p in range(st):
        A(f"v_add_f32 v{160+p}, v{160+p}, v{160+p+st}")
A(f"""v_add_u32 v10, s{sM}, v11
buffer_store_dword v160, v10, {W4}, 0 offen sc1
modf_done:""")
SA = 100
vm.wait("sr")
for i in range(4): A(f"v_mov_b32 v{SA+i}, 0")
for j in range(4):
    for rr in range(2):
        A(f"""v_dot2_f32_bf16 v{SA+2*rr}, v{SR+4*rr+j}, s{sONES}, v{SA+2*rr}
        v_dot2_f32_bf16 v{SA+2*rr+1}, v{SR+4*rr+j}, v{SR+4*rr+j}, v{SA+2*rr+1}""")
A("s_waitcnt lgkmcnt(0)")
for c in range(2):
    o = 124 + 4 * c
    A(f"v_alignbit_b32 v{o}, v{KF0+4*c}, v{KFM+c}, 16")
    for j in range(1, 4):
        A(f"v_alignbit_b32 v{o+j}, v{KF0+4*c+j}, v{KF0+4*c+j-1}, 16")
    A(f"ds_write_b128 v9, v[{o}:{o+3}] offset:{L_KF + c*KFSZ + 4128 + 32}")
for ctrl in ("row_shr:1", "row_shr:2", "row_shr:4", "row_shr:8"):
    for j in range(4):
        A(f"v_add_f32_dpp v{SA+j}, v{SA+j}, v{SA+j} {ctrl} row_mask:0xf bank_mask:0xf bound_ctrl:0")
for j in range(4):
    A(f"v_add_f32_dpp v{SA+j}, v{SA+j}, v{SA+j} row_bcast:15 row_mask:0xa bank_mask:0xf")
for j in range(4):
    A(f"v_add_f32_dpp v{SA+j}, v{SA+j}, v{SA+j} row_bcast:31 row_mask:0xc bank_mask:0xf")
a_ = capture(lambda: ln_final(SA, SA + 1, 104, 105)); b_ = capture(lambda: ln_final(SA + 2, SA + 3, 106, 107))
for x, y in zip(a_, b_):
    A(x)
    if y != "s_nop 0": A(y)
A(f"""s_lshl_b32 s{T0}, s2, 6
s_lshl_b32 s{T1}, s{sWAVE}, 4
s_add_u32 s{T0}, s{T0}, s{T1}
s_add_u32 s{T0}, s{T0}, {ST1}
v_mov_b32 v9, s{T0}
s_mov_b32 s{SX}, 0
s_mov_b32 s{SX+1}, 0x80000000
s_mov_b64 exec, s[{SX}:{SX+1}]""")
vm.op(f"buffer_store_dwordx4 v[104:107], v9, {W4}, 0 offen sc1 {os.environ.get('F_ST1B', '')}", "st1b")
A("s_mov_b64 exec, -1")
stamp("p1b stores issued")
sCH, sHF = 44, 45
A.srd(SM1, 80, F * 2); A.srd(SM2, 84, 1024)
A(f"""s_lshr_b32 s{sCH}, s{sWAVE}, 1
s_and_b32 s{sHF}, s{sWAVE}, 1
v_min_u32 v12, 31, v2
v_lshlrev_b32 v12, 6, v12
s_lshl_b32 s{T0}, s{sXG}, 11
s_add_u32 s{T0}, s{T0}, {F1A}
v_add_u32 v12, s{T0}, v12
v_lshlrev_b32 v13, 6, v2
v_lshlrev_b32 v5, 4, v0
s_lshl_b32 s{T0}, s{sD0}, 12
v_add_u32 v5, s{T0}, v5
v_add_u32 v6, 4096, v5
v_and_b32 v7, 1, v0
v_mul_u32_u24 v7, {OSZ}, v7
v_lshrrev_b32 v8, 1, v0
v_lshl_add_u32 v7, v8, 4, v7
v_lshlrev_b32 v15, 1, v4
v_sub_u32 v15, v15, v3
v_lshlrev_b32 v15, 4, v15
s_mul_i32 s{T0}, s{sCH}, {USZ}
s_lshl_b32 s{T1}, s{sHF}, 7
s_add_u32 s{T0}, s{T0}, s{T1}
s_add_u32 s{T0}, s{T0}, {L_U + 240}
v_add_u32 v15, s{T0}, v15
v_and_b32 v8, 1, v3
v_mul_u32_u24 v8, 4130, v8
v_lshlrev_b32 v16, 6, v4
v_lshl_add_u32 v16, v3, 1, v16
v_sub_u32 v16, v16, v8
s_mul_i32 s{T0}, s{sCH}, {KFSZ}
s_lshl_b32 s{T1}, s{sHF}, 8
s_add_u32 s{T0}, s{T0}, s{T1}
s_add_u32 s{T0}, s{T0}, {L_KF + 4132}
v_add_u32 v16, s{T0}, v16
v_add_u32 v17, 1024, v16
v_add_u32 v18, 2048, v16
v_add_u32 v19, 3072, v16
v_lshlrev_b32 v20, 16, v{DD}
v_and_b32 v21, 0xffff0000, v{DD}
v_lshlrev_b32 v8, 6, v3
v_lshl_add_u32 v8, v4, 4, v8          ; 64a' + 16g
s_lshl_b32 s{T0}, s{sD0}, 12
s_lshl_b32 s{T1}, s{sWAVE}, 11
s_add_u32 s{T0}, s{T0}, s{T1}
v_add_u32 v14, s{T0}, v8
v_lshlrev_b32 v63, 1, v8
s_lshl_b32 s{T0}, s{sWAVE}, 12
s_add_u32 s{T0}, s{T0}, {ST1}
v_add_u32 v63, s{T0}, v63
v_lshrrev_b32 v9, 2, v3
v_cmp_eq_u32 vcc, 3, v9
v_lshlrev_b32 v23, 11, v9
v_and_b32 v10, 3, v3
v_cndmask_b32 v11, 0, 1, vcc
v_lshl_add_u32 v23, v11, 11, v23
v_mul_u32_u24 v10, 12288, v10
s_lshl_b32 s{T0}, s{sD0}, 2
s_add_u32 s{T0}, s{T0}, {MODF}
v_add3_u32 v23, v23, v10, s{T0}
v_and_b32 v9, 1, v9
v_cvt_f32_u32 v62, v9
v_lshlrev_b32 v10, 4, v2
s_mul_i32 s{T0}, s{sFG}, 11
s_add_u32 s46, s{T0}, s{sWAVE}         ; F0
s_lshl_b32 s{T0}, s46, 14
s_add_u32 s{T0}, s{T0}, {W1P}
v_add_u32 v248, s{T0}, v10
v_add_u32 v249, 0x10000, v248
v_add_u32 v250, 0x20000, v248
s_add_u32 s{T0}, s46, 8
s_cmp_ge_u32 s{T0}, 86
s_cselect_b32 s47, {OOB}, 0
s_cmp_eq_u32 s{sWAVE}, 3
s_cselect_b32 s47, {OOB}, s47
v_add_u32 v250, s47, v250
""")
vm.wait("st1b", extra="lgkmcnt(0)")
A("s_barrier")
set_flag(1, F1B, f"s_mov_b32 s{T0}, s2", 10, 11, pre="s_waitcnt vmcnt(0)")
stamp("flag1b")
ACC = 24
AB = [64, 96]; BB_ = [144, 176]
UL, QE, SE, ME = 208, 216, 224, 240
def aload(o, st):
    for q in range(8):
        r = AB[st] + 4 * q; base = 128 * (q & 1) + 4 * o
        A(f"ds_read2_b32 v[{r}:{r+1}], v{16+(q>>1)} offset0:{base} offset1:{base+1}")
        A(f"ds_read2_b32 v[{r+2}:{r+3}], v{16+(q>>1)} offset0:{base+2} offset1:{base+3}")
def bload(o, st):
    for dl in range(8):
        r = BB_[st] + 4 * dl
        A(f"ds_read_b128 v[{r}:{r+3}], v15 offset:{(o&1)*OSZ + 16*(112-16*dl+(o>>1))}")
aload(0, 0)
for i in range(32): A(f"v_mov_b32 v{ACC+i}, 0")
sal = []
sal += [f"s_lshr_b32 s{T4}, s{sJ}, 3", f"s_mul_i32 s{T4}, s{T4}, {P('RRB', 0)}", f"s_mul_i32 s15, s{sFG}, {P('RFG', 1)}", f"s_lshl_b32 s{sROT1}, s{T4}, 1", f"s_add_u32 s{sROT1}, s{sROT1}, s15",
        f"s_lshl_b32 s{sROT1}, s{sROT1}, 1", f"s_and_b32 s{sROT1}, s{sROT1}, 15"]
for t in range(16):
    sal += [f"s_add_u32 s{ROT1[t]}, s{sROT1}, {t}", f"s_and_b32 s{ROT1[t]}, s{ROT1[t]}, 15", f"s_lshl_b32 s{ROT1[t]}, s{ROT1[t]}, 10"]
sal += [f"s_mul_i32 s{T4}, s{T4}, 11", f"s_lshr_b32 s{T4}, s{T4}, 1", f"s_mul_i32 s{T5}, s{sFG}, {3*P('RFG', 1)}", f"s_add_u32 s{T4}, s{T4}, s{T5}",
        f"s_cmp_ge_u32 s{sWAVE}, 2", f"s_cselect_b32 s{T5}, 21, 99",
        f"s_cmp_ge_u32 s{T4}, 22", f"s_cselect_b32 s15, 22, 0", f"s_sub_u32 s{T4}, s{T4}, s15"]
for i in range(22):
    r = ROT2[i]
    sal += [(f"s_lshl_b32 s{r}, s{T4}, 12", f"s_cmp_eq_u32 s{T4}, s{T5}", f"s_cselect_b32 s{r}, {OOB}, s{r}"),
            (f"s_add_u32 s{T4}, s{T4}, 1", f"s_cmp_eq_u32 s{T4}, 22", f"s_cselect_b32 s{T4}, 0, s{T4}")]
for x in sal: A(x if isinstance(x, str) else "\n".join(x))
sal = []
poll(12, 1, 0, 22, "p1a")
A("s_barrier")
stamp("poll1a done")
vm.op(f"buffer_load_dwordx4 v[{UL}:{UL+3}], v5, {W4}, 0 offen sc1{' nt' if P('NTU',0) else ''}", "u")
vm.op(f"buffer_load_dwordx4 v[{UL+4}:{UL+7}], v6, {W4}, 0 offen sc1{' nt' if P('NTU',0) else ''}", "u")
A(f"s_mov_b32 s{T2}, {QP}")
for jn in range(2):
    vm.op(f"buffer_load_dwordx4 v[{QE+4*jn}:{QE+4*jn+3}], v14, {W4}, s{T2} offen offset:{1024*jn} sc1", "qe")
for k in range(4):
    A(f"s_mov_b32 s{T1}, {F1B + 4096*k}")
    vm.op(f"buffer_load_dword v{56+k}, v13, {W4}, s{T1} offen sc1", "f1b")
vm.wait("u")
A(f"""ds_write_b128 v7, v[{UL}:{UL+3}] offset:{L_U}
ds_write_b128 v7, v[{UL+4}:{UL+7}] offset:{L_U+USZ}
s_waitcnt lgkmcnt(0)
s_barrier""")
bload(0, 0)
stamp("u in lds")
w1q = [(t, j) for t in range(16) for j in range(3)]
def w1_issue(n):
    for _ in range(n):
        if not w1q: return
        t, j = w1q.pop(0)
        vm.op(f"buffer_load_dwordx4 a[{(t*3+j)*4}:{(t*3+j)*4+3}], v{248+j}, {W4}, s{ROT1[t]} offen sc1{' nt' if P('NTW',0) else ''}", f"w1_{t}")
def me_final():
    vm.wait("me")
    for sh in (1, 2):
        A("s_nop 1")
        for k in range(2):
            A(f"v_add_f32_dpp v{UL+k}, v{UL+k}, v{UL+k} row_shr:{sh} row_mask:0xf bank_mask:0xf bound_ctrl:0")
    A(f"""v_cvt_pk_bf16_f32 v{UL+2}, v{UL}, v{UL+1}
    v_lshlrev_b32 v{UL}, 16, v{UL+2}
    v_and_b32 v{UL+1}, 0xffff0000, v{UL+2}
    v_add_f32 v{UL}, v{UL}, v62
    v_add_f32 v{UL+1}, v{UL+1}, v62
    v_cvt_pk_bf16_f32 v{UL+2}, v{UL}, v{UL+1}
    v_lshlrev_b32 v{UL}, 16, v{UL+2}
    v_and_b32 v{UL+1}, 0xffff0000, v{UL+2}
    s_nop 1""")
    for i in range(4):
        for k in range(2):
            A(f"v_mov_b32_dpp v{ME+2*i+k}, v{UL+k} row_newbcast:{4*i+3} row_mask:0xf bank_mask:0xf")
for o in range(4):
    st = o & 1
    A("s_waitcnt lgkmcnt(0)")
    lds = []
    if o + 1 < 4:
        lds = capture(lambda: (bload(o + 1, st ^ 1), aload(o + 1, st ^ 1)))
    side = []; cnt = 0
    if o == 3: side = capture(me_final)
    for dl in range(8):
        for q in range(8 - dl):
            n = q + dl
            A(f"v_mfma_f32_16x16x32_bf16 v[{ACC+4*n}:{ACC+4*n+3}], v[{AB[st]+4*q}:{AB[st]+4*q+3}], v[{BB_[st]+4*dl}:{BB_[st]+4*dl+3}], v[{ACC+4*n}:{ACC+4*n+3}]")
            cnt += 1
            if lds: A(lds.pop(0))
            if o > P("F1B_O", 0) and o >= P("W1_O0", 1) and cnt % P("W1_EVERY", 6) == 0: w1_issue(1)
            for _ in range(2 if o == 0 else 1):
                if sal:
                    x = sal.pop(0)
                    A(x if isinstance(x, str) else "\n".join(x))
            if side: A(side.pop(0))
    for x in side: A(x)
    if o == P("F1B_O", 0):
        vm.wait("f1b")
        A(f"""v_xor_b32 v56, s{sEP}, v56
        v_xor_b32 v57, s{sEP}, v57
        v_xor_b32 v58, s{sEP}, v58
        v_xor_b32 v59, s{sEP}, v59
        v_or3_b32 v56, v56, v57, v58
        v_or_b32 v56, v56, v59
        v_cmp_ne_u32 vcc, 0, v56
        s_nop 1
        s_cbranch_vccz p1b_done
        v_add_u32 v22, {F1B}, v13""")
        poll(22, 4, 4096, 56, "p1b", only_wave0=False)
        vm.op(f"buffer_load_dwordx2 v[{UL}:{UL+1}], v23, {W4}, 0 offen sc1", "me")
        for jn in range(2):
            for hh in range(2):
                vm.op(f"buffer_load_dwordx4 v[{SE+8*jn+4*hh}:{SE+8*jn+4*hh+3}], v63, {W4}, 0 offen offset:{2048*jn+16*hh} sc1", "se")
        if P("WTOUCH", 0):
            A(f"""s_mul_i32 s{T0}, s{sJ}, 44032
            v_lshlrev_b32 v22, 7, v0
            v_add_u32 v22, s{T0}, v22
            v_add_u32 v60, 32768, v22
            v_cmp_gt_u32 vcc, 88, v0
            v_mov_b32 v61, {OOB}
            s_mov_b32 s{T0}, {W1P}
            s_mov_b32 s{T1}, {W2P}
            v_cndmask_b32 v60, v61, v60, vcc""")
            for (ad, so) in ((22, T0), (60, T0), (22, T1), (60, T1)):
                vm.op(f"buffer_load_dword v61, v{ad}, {W4}, s{so} offen sc1", "touch")
        A(f"""v_lshlrev_b32 v128, 3, v0
        v_add_u32 v128, {MODF + 3*2048}, v128
        v_lshlrev_b32 v129, 3, v4
        s_lshl_b32 s{T0}, s46, 5
        v_add_u32 v129, s{T0}, v129
        v_lshlrev_b32 v130, 3, v3
        s_lshl_b32 s{T0}, s{sR}, 9
        s_lshl_b32 s{T1}, s{sWAVE}, 7
        s_add_u32 s{T0}, s{T0}, s{T1}
        s_add_u32 s{T0}, s{T0}, {ST1 + 4}
        v_add_u32 v130, s{T0}, v130""")
        for ks in range(4):
            A(f"s_mov_b32 s{T1}, {12288*ks}\ns_mov_b32 s{T0}, {12288*ks+4096}")
            for sec in range(3):
                so, off = (T1, 2048 * sec) if sec < 2 else (T0, 0)
                vm.op(f"buffer_load_dwordx2 a[{192+8*sec+2*ks}:{192+8*sec+2*ks+1}], v128, {W4}, s{so} offen offset:{off} sc1", "tp")
        for j in range(3):
            vm.op(f"buffer_load_dwordx2 a[{216+2*j}:{217+2*j}], v129, s[{SM1}:{SM1+3}], 0 offen offset:{128*j}", "tp")
        vm.op(f"buffer_load_dword v140, v130, {W4}, 0 offen sc1", "tp")
        stamp("flag1b all seen")
assert not sal
stamp("conv mfma done")
A(f"""v_lshlrev_b32 v9, 4, v2
s_lshl_b32 s{T0}, s{sWAVE}, 13
s_add_u32 s{T0}, s{T0}, {L_RED}
v_add_u32 v10, s{T0}, v9
s_lshl_b32 s{T0}, s{sWAVE}, 11
s_add_u32 s{T0}, s{T0}, {L_RED}
v_add_u32 v11, s{T0}, v9
v_lshrrev_b32 v5, 1, v4
v_sub_u32 v5, 1, v5
v_mul_u32_u24 v5, {OSZ}, v5
v_lshlrev_b32 v6, 4, v3
v_sub_u32 v5, v5, v6
v_and_b32 v6, 1, v4
v_lshlrev_b32 v6, 3, v6
v_sub_u32 v5, v5, v6
s_lshl_b32 s{T0}, s{sWAVE}, 9
s_sub_u32 s{T0}, {L_U + 16*(127-16) + 8}, s{T0}
v_add_u32 v5, s{T0}, v5""")
for n in range(8):
    A(f"ds_write_b128 v10, v[{ACC+4*n}:{ACC+4*n+3}] offset:{1024*n}")
UE = 128
for jn in range(2):
    for c in range(2):
        A(f"ds_read_b64 v[{UE+4*jn+2*c}:{UE+4*jn+2*c+1}], v5 offset:{256*(1-jn) + c*USZ}")
A("s_waitcnt lgkmcnt(0)\ns_barrier")
RR = 64
for jn in range(2):
    for src in range(4):
        r = RR + 16 * jn + 4 * src
        A(f"ds_read_b128 v[{r}:{r+3}], v11 offset:{8192*src + 1024*jn}")
vm.wait("qe", "se", "me")
XO, XS = 112, 120
SAp, C1p, GAp, C2p = ME, ME + 2, ME + 4, ME + 6
A(f"s_mov_b32 s{T2}, {X1S}\ns_mov_b32 s{T3}, {X1P}")
for jn in range(2):
    A(f"s_waitcnt lgkmcnt({4*(1-jn)})")
    seqs = []
    for r in range(4):
        Y, QF, QC, H, X = [24 + 10 * r + 2 * k for k in range(5)]
        b = RR + 16 * jn
        dw = 1 if r < 2 else 0
        sq = []
        for c in range(2):
            src = UE + 4 * jn + 2 * c + dw
            sq.append(f"v_and_b32 v{X+c}, 0xffff0000, v{src}" if r % 2 == 0 else f"v_lshlrev_b32 v{X+c}, 16, v{src}")
        st = SE + 8 * jn + 2 * r
        sq += f"""v_add_f32 v{Y}, v{b+r}, v{b+4+r}
        v_add_f32 v{Y+1}, v{b+8+r}, v{b+12+r}
        v_lshlrev_b32 v{QF}, 16, v{QE+4*jn+r}
        v_and_b32 v{QF+1}, 0xffff0000, v{QE+4*jn+r}
        v_pk_fma_f32 v[{Y}:{Y+1}], v[{X}:{X+1}], v[20:21], v[{Y}:{Y+1}]
        v_pk_add_f32 v[{QC}:{QC+1}], v[{QF}:{QF+1}], v[{st}:{st+1}] op_sel:[0,1] op_sel_hi:[1,1] neg_lo:[0,1] neg_hi:[0,1]
        v_pk_mul_f32 v[{H}:{H+1}], v[{QC}:{QC+1}], v[{st}:{st+1}] op_sel_hi:[1,0]
        v_pk_fma_f32 v[{H}:{H+1}], v[{H}:{H+1}], v[{C1p}:{C1p+1}], v[{SAp}:{SAp+1}]
        v_pk_mul_f32 v[{H}:{H+1}], v[{H}:{H+1}], v[{Y}:{Y+1}]
        v_pk_fma_f32 v[{QC}:{QC+1}], v[{H}:{H+1}], v[{GAp}:{GAp+1}], v[{QC}:{QC+1}]
        v_pk_fma_f32 v[{QF}:{QF+1}], v[{H}:{H+1}], v[{GAp}:{GAp+1}], v[{QF}:{QF+1}]
        v_pk_mul_f32 v[{QC}:{QC+1}], v[{QC}:{QC+1}], v[{C2p}:{C2p+1}]
        v_cvt_pk_bf16_f32 v{XO+4*jn+r}, v{QF}, v{QF+1}
        v_cvt_pk_bf16_f32 v{XS+4*jn+r}, v{QC}, v{QC+1}""".split("\n")
        seqs.append(sq)
    for gi, grp in enumerate(zip(*seqs)):
        for x in grp: A(x)
        if gi < P("W1_EPI", 8): w1_issue(1)
    vm.op(f"buffer_store_dwordx4 v[{XS+4*jn}:{XS+4*jn+3}], v14, {W4}, s{T2} offen offset:{1024*jn} sc1 {os.environ.get('F_ST2', '')}", "st2")
    vm.op(f"buffer_store_dwordx4 v[{XO+4*jn}:{XO+4*jn+3}], v14, {W4}, s{T3} offen offset:{1024*jn} sc1 {os.environ.get('F_ST2', '')}", "st2")
stamp("st2 issued")
w1_issue(99)
TP, B1R, M1R = 144, 208, 140
vm.wait("tp")
for i in range(24): A(f"v_accvgpr_read_b32 v{TP+i}, a{192+i}")
for i in range(6): A(f"v_accvgpr_read_b32 v{B1R+i}, a{216+i}")
for sec in range(3):
    b = TP + 8 * sec
    A(f"""v_pk_add_f32 v[{b}:{b+1}], v[{b}:{b+1}], v[{b+2}:{b+3}]
    v_pk_add_f32 v[{b+4}:{b+5}], v[{b+4}:{b+5}], v[{b+6}:{b+7}]""")
for sec in range(3):
    b = TP + 8 * sec
    A(f"""v_pk_add_f32 v[{b}:{b+1}], v[{b}:{b+1}], v[{b+4}:{b+5}]
    v_cvt_pk_bf16_f32 v{b+2}, v{b}, v{b+1}""")
A(f"""v_lshlrev_b32 v{TP+8}, 16, v{TP+10}
v_and_b32 v{TP+9}, 0xffff0000, v{TP+10}
v_lshlrev_b32 v{TP+16}, 16, v{TP+18}
v_and_b32 v{TP+17}, 0xffff0000, v{TP+18}
v_add_f32 v{TP+8}, 1.0, v{TP+8}
v_add_f32 v{TP+9}, 1.0, v{TP+9}
v_cvt_pk_bf16_f32 v{TP+10}, v{TP+8}, v{TP+9}
v_lshlrev_b32 v9, 2, v0
v_add_u32 v9, {L_TB}, v9
v_lshlrev_b32 v10, 3, v0
v_add_u32 v10, {L_TGB}, v10
ds_write_b32 v9, v{TP+2}
ds_write_b32 v9, v{TP+2} offset:1024
ds_write_b32 v9, v{TP+10} offset:{L_TC2-L_TB}
ds_write_b32 v9, v{TP+10} offset:{L_TC2-L_TB+1024}
ds_write_b64 v10, v[{TP+16}:{TP+17}]
v_and_b32 v9, 1, v3
v_mul_u32_u24 v9, {L_TC2-L_TB}, v9
v_lshl_add_u32 v9, v4, 4, v9
s_lshl_b32 s{T0}, s{sROT1}, 6
s_add_u32 s{T0}, s{T0}, {L_TB}
v_add_u32 v9, s{T0}, v9""")
A(f"""v_lshlrev_b32 v5, 13, v4
s_lshl_b32 s{T0}, s{sWAVE}, 15
s_lshl_b32 s{T1}, s{sR}, 8
s_add_u32 s{T0}, s{T0}, s{T1}
v_add_u32 v5, s{T0}, v5
s_and_b32 s{T1}, s{sWAVE}, 1
s_lshl_b32 s{T1}, s{T1}, 2
v_xor_b32 v7, s{T1}, v3
v_lshl_add_u32 v5, v7, 4, v5
v_add_u32 v6, {X1P}, v5
v_add_u32 v5, {X1S}, v5
v_and_b32 v7, 1, v4
v_lshlrev_b32 v8, 10, v4
v_lshl_add_u32 v8, v3, 2, v8
v_add_u32 v8, {L_X}, v8""")
for sg in range(4):
    A(f"v_xor_b32 v10, {sg}, v7\nv_lshl_add_u32 v{16+sg}, v10, 6, v8")
A(f"v_xor_b32 v10, s{sWAVE}, v7\nv_lshl_add_u32 v141, v10, 6, v8\nv_subrev_u32 v141, {L_X-L_XP}, v141")
A(f"""v_lshlrev_b32 v10, 4, v2
s_lshl_b32 s{T0}, s{sWAVE}, 10
v_add_u32 v11, s{T0}, v10
s_mul_i32 s{T0}, s{sFG}, {2*86*1024}
s_add_u32 s{T0}, s{T0}, {W2P}
v_add_u32 v20, s{T0}, v11
v_add_u32 v21, {86*1024}, v20
s_mul_i32 s{T0}, s{sR}, {2*86*1024}
s_add_u32 s{T0}, s{T0}, {HID}
v_add_u32 v22, s{T0}, v11
v_add_u32 v23, {86*1024}, v22
v_add_u32 v12, {F2}, v13
s_mul_i32 s{T0}, s{sWAVE}, 384
s_add_u32 s{T0}, s{T0}, {L_BB}
v_lshl_add_u32 v14, v4, 4, s{T0}
""")
vm.wait("st2", extra="lgkmcnt(0)")
A("s_barrier")
set_flag(0, F2, f"s_mov_b32 s{T0}, s2", 10, 11)
stamp("flag2")
MBF = 64
for t in range(16):
    A(f"ds_read_b128 v[{MBF+4*t}:{MBF+4*t+3}], v9 offset:{64*t}")
MD = 24
for i in range(12): A(f"v_mov_b32 v{MD+i}, 0")
A("s_waitcnt lgkmcnt(0)")
for t in range(16):
    vm.wait(f"w1_{t}")
    for j in range(3):
        A(f"v_mfma_f32_16x16x32_bf16 v[{MD+4*j}:{MD+4*j+3}], a[{(t*3+j)*4}:{(t*3+j)*4+3}], v[{MBF+4*t}:{MBF+4*t+3}], v[{MD+4*j}:{MD+4*j+3}]")
stamp("MB pass done")
def w2reg(i, cb):
    k = 2 * i + cb
    return f"a[{192+4*k}:{195+4*k}]" if k < 16 else f"v[{252-4*(k-16)}:{255-4*(k-16)}]"
w2q = [(i, cb) for i in range(22) for cb in range(2)]
def w2_issue(n):
    for _ in range(n):
        if not w2q: return
        i, cb = w2q.pop(0)
        vm.op(f"buffer_load_dwordx4 {w2reg(i,cb)}, v{20+cb}, {W4}, s{ROT2[i]} offen sc1{' nt' if P('NTW',0) else ''}", "w2")
A("s_nop 7\ns_nop 1")
Bq = 36
for j in range(3):
    for r in range(4):
        A(f"v_mov_b32_dpp v{Bq+4*j+r}, v{MD+4*j+r} row_newbcast:0 row_mask:0xf bank_mask:0xf")
        A(f"v_mov_b32_dpp v{Bq+12+4*j+r}, v{MD+4*j+r} row_newbcast:1 row_mask:0xf bank_mask:0xf")
for j in range(3):
    A(f"""v_lshlrev_b32 v60, 16, v{B1R+2*j}
    v_and_b32 v61, 0xffff0000, v{B1R+2*j}
    v_lshlrev_b32 v62, 16, v{B1R+2*j+1}
    v_and_b32 v63, 0xffff0000, v{B1R+2*j+1}
    v_pk_add_f32 v[{Bq+4*j}:{Bq+4*j+1}], v[{Bq+4*j}:{Bq+4*j+1}], v[60:61]
    v_pk_add_f32 v[{Bq+4*j+2}:{Bq+4*j+3}], v[{Bq+4*j+2}:{Bq+4*j+3}], v[62:63]""")
A(f"s_mov_b32 s{SX}, 0x00010001\ns_mov_b32 s{SX+1}, 0x00010001\ns_mov_b64 exec, s[{SX}:{SX+1}]")
for i in range(6):
    A(f"ds_write_b128 v14, v[{Bq+4*i}:{Bq+4*i+3}] offset:{64*i}")
A("s_mov_b64 exec, -1")
G1 = 24; SAC = 128
A("s_waitcnt lgkmcnt(0)")
for i in range(48): A(f"v_mov_b32 v{G1+i}, 0")
stamp("pre poll2")
w2e = capture(lambda: w2_issue(P("W2_EARLY", 0)))
A(f"s_cmp_eq_u32 s{sWAVE}, 0\ns_cbranch_scc1 p2w0")
for x in w2e: A(x)
A("s_branch p2join\np2w0:")
poll(12, 4, 4096, 136, "p2")
for x in w2e: A(x)
A("p2join:")
A(f"""s_cmp_lg_u32 s2, 0
s_cbranch_scc1 noep
s_cmp_lg_u32 s{sWAVE}, 0
s_cbranch_scc1 noep
v_mov_b32 v10, {EPOCH}
v_mov_b32 v11, s{sEP}
s_mov_b64 exec, 1
buffer_store_dword v11, v10, {W4}, 0 offen sc1
s_mov_b64 exec, -1
noep:
s_barrier""")
stamp("poll2 done")
A(f"s_lshl_b32 s{T5}, s{sWAVE}, 10\ns_add_u32 s{T5}, s{T5}, {L_X}")
def xs_issue(c):
    A(f"""s_add_u32 s{T0}, s{T5}, {4096*c + L_X - L_XP}
    s_mov_b32 m0, s{T0}
    s_lshl_b32 s{T1}, s{ROT1[c]}, 7""")
    vm.op(f"buffer_load_dwordx4 v5, {W4}, s{T1} offen sc1 lds", f"x{c//4}")
A(f"s_sub_u32 s{T5}, s{T5}, {L_X - L_XP}")
XS0 = P("XS0", 16)
for c in range(XS0): xs_issue(c)
def xp_issue(c):
    A(f"""s_add_u32 s{T0}, s{T5}, {4096*c}
    s_mov_b32 m0, s{T0}
    s_lshl_b32 s{T1}, s{ROT1[c]}, 7""")
    vm.op(f"buffer_load_dwordx4 v6, {W4}, s{T1} offen sc1{' nt' if P('NTX',0) else ''} lds", f"p{c//4}")
for c in range(P("XP0", 0)): xp_issue(c)
BF = [72, 88]; PF = [104, 112]; ONE = 120; D1 = 136; D2 = 128
def bl(t, st):
    for sg in range(4):
        r = BF[st] + 4 * sg
        A(f"ds_read2st64_b32 v[{r}:{r+1}], v{16+sg} offset0:{16*t} offset1:{16*t+1}")
        A(f"ds_read2st64_b32 v[{r+2}:{r+3}], v{16+sg} offset0:{16*t+2} offset1:{16*t+3}")
def pl(u, r):
    A(f"ds_read2st64_b32 v[{r}:{r+1}], v141 offset0:{16*u} offset1:{16*u+1}")
    A(f"ds_read2st64_b32 v[{r+2}:{r+3}], v141 offset0:{16*u+2} offset1:{16*u+3}")
for i in range(4): A(f"v_mov_b32 v{ONE+i}, s{sONES}\nv_mov_b32 v{D1+i}, 0\nv_mov_b32 v{D2+i}, 0")
vm.wait("x0"); A("s_barrier")
stamp("x chunk0")
W2_T0, W2_EVERY = P("W2_T0", 1), P("W2_EVERY", 4)
xpq = [("s", c) for c in range(XS0, 16)] + [("p", c) for c in range(P("XP0", 0), 16)]
for _ in range(P("XBURST", 0)):
    k_, c_ = xpq.pop(0); (xs_issue if k_ == "s" else xp_issue)(c_)
SAC = 128
BFP = [72, 80]
PFX = [[88, 92], [96, 100]]
def blp(p, t, st):
    for k in range(2):
        sg = 2 * p + k; r = BFP[st] + 4 * k
        A(f"ds_read2st64_b32 v[{r}:{r+1}], v{16+sg} offset0:{16*t} offset1:{16*t+1}")
        A(f"ds_read2st64_b32 v[{r+2}:{r+3}], v{16+sg} offset0:{16*t+2} offset1:{16*t+3}")
A(f"""v_lshrrev_b32 v11, 1, v4
v_lshlrev_b32 v11, 9, v11
v_lshl_add_u32 v11, v3, 4, v11
v_and_b32 v7, 1, v4
v_lshl_add_u32 v11, v7, 3, v11
s_mul_i32 s{T0}, s{sR}, {2*86*1024}
s_lshl_b32 s{T1}, s46, 10
s_add_u32 s{T0}, s{T0}, s{T1}
s_add_u32 s{T0}, s{T0}, {HID}
v_add_u32 v8, s{T0}, v11
v_add_u32 v9, 4096, v8
v_add_u32 v10, 8192, v8
v_add_u32 v10, s47, v10
v_min_u32 v15, 7, v2
v_lshlrev_b32 v15, 6, v15
s_lshl_b32 s{T0}, s{sR}, 9
v_add_u32 v15, s{T0}, v15""")
def epi(p):
    BBr, CSr = 104, 116
    for j in range(3):
        seqs = []
        for k in range(2):
            sg = 2 * p + k
            c = G1 + (j * 4 + sg) * 4
            sp = SAC + 2 * sg
            TT = 72 + 4 * k
            sq = []
            for hh in range(2):
                sq.append(f"v_pk_fma_f32 v[{TT+2*hh}:{TT+2*hh+1}], v[{CSr+4*j+2*hh}:{CSr+4*j+2*hh+1}], v[{sp}:{sp+1}], v[{BBr+4*j+2*hh}:{BBr+4*j+2*hh+1}] op_sel:[0,1,0] op_sel_hi:[1,1,1] neg_lo:[0,1,0] neg_hi:[0,1,0]")
            for hh in range(2):
                sq.append(f"v_pk_fma_f32 v[{c+2*hh}:{c+2*hh+1}], v[{c+2*hh}:{c+2*hh+1}], v[{sp}:{sp+1}], v[{TT+2*hh}:{TT+2*hh+1}] op_sel_hi:[1,0,1]")
            for r in range(4): sq.append(f"v_max_f32 v{c+r}, 0, v{c+r}")
            sq += [f"v_pk_mul_f32 v[{c}:{c+1}], v[{c}:{c+1}], v[{c}:{c+1}]",
                   f"v_pk_mul_f32 v[{c+2}:{c+3}], v[{c+2}:{c+3}], v[{c+2}:{c+3}]",
                   f"v_cvt_pk_bf16_f32 v{c}, v{c}, v{c+1}",
                   f"v_cvt_pk_bf16_f32 v{c+1}, v{c+2}, v{c+3}"]
            seqs.append(sq)
        for grp in zip(*seqs):
            for x in grp: A(x)
        for k in range(2):
            c = G1 + (j * 4 + 2 * p + k) * 4
            vm.op(f"buffer_store_dwordx2 v[{c}:{c+1}], v{8+j}, {W4}, {'s%d'%T3 if p else '0'} offen offset:{256*k} sc1 {os.environ.get('F_ST3', '')}", f"st3{p}")
fidx = f"s_lshl_b32 s{T0}, s{sR}, 3\ns_add_u32 s{T0}, s{T0}, s{sFG}"
for p in range(2):
    blp(p, 0, 0)
    for t in range(16):
        st = t & 1
        lds = []
        if p == 0 and t in (3, 7, 11):
            vm.wait(*{3: ["x1"], 7: ["x2", "p1"], 11: ["x3", "p3"]}[t]); A("s_barrier")
        if p == 1 and t == P("F3A_T", 5):
            vm.wait("st30"); A("s_barrier")
            set_flag(0, F3, fidx, 92, 93)
        if t + 1 < 16: lds += capture(lambda: blp(p, t + 1, st ^ 1))
        if p == 0 and 8 <= t + 1 < 16:
            for k in range(2): lds += capture(lambda: pl(2 * (t + 1 - 8) + k, PFX[st ^ 1][k]))
        A("s_waitcnt lgkmcnt(0)")
        mfs = []
        for j in range(3):
            for k in range(2):
                c = G1 + (j * 4 + 2 * p + k) * 4
                mfs.append(f"v_mfma_f32_16x16x32_bf16 v[{c}:{c+3}], a[{(t*3+j)*4}:{(t*3+j)*4+3}], v[{BFP[st]+4*k}:{BFP[st]+4*k+3}], v[{c}:{c+3}]")
        if p == 0 and t >= 8:
            for k in range(2):
                q_ = PFX[st][k]
                mfs.insert(0, f"v_mfma_f32_16x16x32_bf16 v[{D1}:{D1+3}], v[{ONE}:{ONE+3}], v[{q_}:{q_+3}], v[{D1}:{D1+3}]")
                mfs.insert(0, f"v_mfma_f32_16x16x32_bf16 v[{D2}:{D2+3}], v[{q_}:{q_+3}], v[{q_}:{q_+3}], v[{D2}:{D2+3}]")
        for mf, x in enumerate(mfs, 1):
            A(x)
            for _ in range(2):
                if lds: A(lds.pop(0))
            if mf % 2 == 0 and xpq:
                k_, c_ = xpq.pop(0); (xs_issue if k_ == "s" else xp_issue)(c_)
            elif (p == 1 or t >= W2_T0) and mf % W2_EVERY == 0: w2_issue(1)
        assert not lds
    if p == 0:
        A(f"""v_and_b32 v124, 3, v3
        v_lshrrev_b32 v125, 2, v3
        v_cmp_eq_u32 s[{SX}:{SX+1}], v125, v4
        v_lshlrev_b32 v90, 3, v3
        s_lshl_b32 s{T0}, s{sWAVE}, 7
        s_add_u32 s{T0}, s{T0}, {L_ST}
        v_add_u32 v91, s{T0}, v90
        v_add_u32 v90, {L_ST}, v90
        v_cmp_eq_u32 vcc, 1, v124
        s_nop 1
        v_cndmask_b32 v{D2}, v{D2}, v{D2+1}, vcc
        v_cmp_eq_u32 vcc, 2, v124
        s_nop 1
        v_cndmask_b32 v{D2}, v{D2}, v{D2+2}, vcc
        v_cmp_eq_u32 vcc, 3, v124
        s_nop 1
        v_cndmask_b32 v{D2}, v{D2}, v{D2+3}, vcc""")
        ln_final(D1, D2, 88, 89)
        A(f"""v_sub_f32 v89, v89, v{M1R}
        v_mul_f32 v89, v89, v88
        s_mov_b64 exec, s[{SX}:{SX+1}]
        ds_write_b64 v91, v[88:89]
        s_mov_b64 exec, -1""")
        for i in range(6):
            A(f"ds_read_b128 v[{104+4*i}:{107+4*i}], v14 offset:{64*i}")
        A(f"s_mov_b32 s{T3}, {86*1024}\ns_waitcnt lgkmcnt(0)\ns_barrier")
        for sg in range(4):
            A(f"ds_read_b64 v[{SAC+2*sg}:{SAC+2*sg+1}], v90 offset:{128*sg}")
        A("s_waitcnt lgkmcnt(0)")
        stamp("gemm1 pass A done")
    else:
        A("s_nop 7")
        stamp("gemm1 pass B done")
    epi(p)
stamp("st3 issued")
XR, BR, GR = 96, 104, 112
A(f"""v_and_b32 v8, 31, v2
v_lshrrev_b32 v9, 5, v2
s_lshr_b32 s{T0}, s{sWAVE}, 1
s_and_b32 s{T1}, s{sWAVE}, 1
s_lshl_b32 s{T2}, s{sFG}, 7
s_lshl_b32 s{T4}, s{T1}, 6
s_add_u32 s{T2}, s{T2}, s{T4}
v_lshlrev_b32 v10, 3, v9
v_add_u32 v10, s{T2}, v10
v_lshlrev_b32 v11, 1, v10
v_add_u32 v11, {L_TGB}, v11
s_lshl_b32 s{T4}, s{sR}, 6
s_lshl_b32 s{T5}, s{T0}, 5
s_add_u32 s{T4}, s{T4}, s{T5}
v_add_u32 v12, s{T4}, v8
v_lshlrev_b32 v19, 11, v10
v_lshl_add_u32 v19, v12, 2, v19
v_add_u32 v19, {X1P}, v19
v_lshl_add_u32 v12, v12, 10, v10
v_add_u32 v16, {F3}, v15
v_add_u32 v17, {F3B}, v15""")
vm.op(f"buffer_load_dword v18, v16, {W4}, 0 offen sc1", "f3a")
w2_issue(99)
vm.wait("st31")
A("s_barrier")
set_flag(0, F3B, fidx, 92, 93)
stamp("flag3")
G2 = 24
for i in range(64): A(f"v_mov_b32 v{G2+i}, 0")
def fcheck(tag, reg, addr, lab):
    vm.wait(tag)
    A(f"""v_cmp_ne_u32 vcc, s{sEP}, v{reg}
    s_nop 1
    s_cbranch_vccz {lab}_done""")
    poll(addr, 1, 0, reg, lab, only_wave0=False)
fcheck("f3a", 18, 16, "p3a")
stamp("poll3 done")
HD = P("HD", 6)
hq = [(sb, i) for sb in range(2) for i in range(22)]
def h_issue():
    sb, i = hq.pop(0)
    vm.op(f"buffer_load_dwordx4 a[{(22*sb+i)*4}:{(22*sb+i)*4+3}], v{22+sb}, {W4}, s{ROT2[i]} offen sc1{' nt' if P('NTH',0) else ''}", f"h{sb}_{i}")
for _ in range(HD): h_issue()
for q in range(4):
    A(f"ds_read_b128 v[{GR+4*q}:{GR+4*q+3}], v11 offset:{32*q}")
F3B_I = P("F3B_I", 12)
for sb in range(2):
    for i in range(22):
        vm.wait(f"h{sb}_{i}")
        for cb in range(2):
            c = G2 + 16 * (2 * sb + cb)
            A(f"v_mfma_f32_32x32x16_bf16 v[{c}:{c+15}], {w2reg(i,cb)}, a[{(22*sb+i)*4}:{(22*sb+i)*4+3}], v[{c}:{c+15}]")
        if sb == 0 and i == F3B_I: vm.op(f"buffer_load_dword v18, v17, {W4}, 0 offen sc1", "f3b")
        if hq and hq[0] == (1, 0): fcheck("f3b", 18, 17, "p3b")
        if hq: h_issue()
        if sb == 1 and i == 2:
            for q in range(4):
                for pp in range(2):
                    A(f"s_mov_b32 s{T1}, {8192*(4*q+pp)}")
                    vm.op(f"buffer_load_dword v{XR+2*q+pp}, v19, {W4}, s{T1} offen sc1", "xr")
            for q in range(4):
                vm.op(f"buffer_load_dwordx2 v[{BR+2*q}:{BR+2*q+1}], v10, s[{SM2}:{SM2+3}], 0 offen offset:{16*q}", "xr")
vm.wait("xr")
stamp("gemm2 mfma done")
A(f"""s_nop 7
s_nop 3
v_lshlrev_b32 v13, 4, v2""")
for T in range(4):
    lab = A.label("skip")
    A(f"""s_cmp_eq_u32 s{sWAVE}, {T}
    s_cbranch_scc1 {lab}
    s_sub_u32 s{T0}, s{sWAVE}, {T+1}
    s_and_b32 s{T0}, s{T0}, 3
    s_lshl_b32 s{T0}, s{T0}, 12
    s_add_u32 s{T0}, s{T0}, {L_RED + T*12288}
    v_add_u32 v14, s{T0}, v13""")
    for q in range(4):
        A(f"ds_write_b128 v14, v[{G2+16*T+4*q}:{G2+16*T+4*q+3}] offset:{1024*q}")
    A(f"{lab}:")
OWN = 144
for T in range(4):
    lab = A.label("mv")
    A(f"s_cmp_lg_u32 s{sWAVE}, {T}\ns_cbranch_scc1 {lab}")
    for i in range(16): A(f"v_mov_b32 v{OWN+i}, v{G2+16*T+i}")
    A(f"{lab}:")
A(f"""s_mul_i32 s{T0}, s{sWAVE}, 12288
s_add_u32 s{T0}, s{T0}, {L_RED}
v_add_u32 v14, s{T0}, v13
s_waitcnt lgkmcnt(0)
s_barrier""")
for q in range(4):
    for sl in range(3):
        A(f"ds_read_b128 v[{G2+16*sl+4*q}:{G2+16*sl+4*q+3}], v14 offset:{4096*sl+1024*q}")
U = 160
for q in range(4):
    c = OWN + 4 * q
    A(f"""v_lshlrev_b32 v{U}, 16, v{BR+2*q}
    v_and_b32 v{U+1}, 0xffff0000, v{BR+2*q}
    v_lshlrev_b32 v{U+2}, 16, v{BR+2*q+1}
    v_and_b32 v{U+3}, 0xffff0000, v{BR+2*q+1}
    v_pk_add_f32 v[{c}:{c+1}], v[{c}:{c+1}], v[{U}:{U+1}]
    v_pk_add_f32 v[{c+2}:{c+3}], v[{c+2}:{c+3}], v[{U+2}:{U+3}]
    v_lshlrev_b32 v{U}, 16, v{XR+2*q}
    v_and_b32 v{U+1}, 0xffff0000, v{XR+2*q}
    v_lshlrev_b32 v{U+2}, 16, v{XR+2*q+1}
    v_and_b32 v{U+3}, 0xffff0000, v{XR+2*q+1}
    s_waitcnt lgkmcnt({3*(3-q)})""")
    for sl in range(3):
        for hh in range(2):
            A(f"v_pk_add_f32 v[{c+2*hh}:{c+2*hh+1}], v[{c+2*hh}:{c+2*hh+1}], v[{G2+16*sl+4*q+2*hh}:{G2+16*sl+4*q+2*hh+1}]")
    A(f"""v_pk_fma_f32 v[{c}:{c+1}], v[{c}:{c+1}], v[{GR+4*q}:{GR+4*q+1}], v[{U}:{U+1}]
    v_pk_fma_f32 v[{c+2}:{c+3}], v[{c+2}:{c+3}], v[{GR+4*q+2}:{GR+4*q+3}], v[{U+2}:{U+3}]
    v_cvt_pk_bf16_f32 v{c}, v{c}, v{c+1}
    v_cvt_pk_bf16_f32 v{c+1}, v{c+2}, v{c+3}
    buffer_store_dwordx2 v[{c}:{c+1}], v12, s[{SOUT}:{SOUT+3}], 0 offen offset:{16*q}{' nt' if P('NTO',0) else ''}""")
if STAMP:
    stamp("out issued")
    A("s_waitcnt vmcnt(0)")
    stamp("end")
    A("s_memtime s[100:101]\ns_waitcnt lgkmcnt(0)\nv_writelane_b32 v143, s100, 63")
    A(f"""v_lshlrev_b32 v1, 2, v2
    s_lshl_b32 s{T0}, s2, 10
    s_lshl_b32 s{T1}, s{sWAVE}, 8
    s_add_u32 s{T0}, s{T0}, s{T1}
    s_add_u32 s{T0}, s{T0}, {TS}
    v_add_u32 v1, s{T0}, v1
    buffer_store_dword v143, v1, {W4}, 0 offen""")
    if os.environ.get("DBGOUT"):
        sel = [1, 2, 4, 6, 7, 8, 9, 10, 12, 13, 15, 16, 17, 20, 22, 24]
        A(f"""s_cmp_lg_u32 s2, {os.environ['DBGOUT']}
        s_cbranch_scc1 k_done
        s_cmp_lg_u32 s{sWAVE}, 0
        s_cbranch_scc1 k_done
        s_load_dwordx2 s[8:9], s[0:1], 112
        v_readlane_b32 s{T1}, v143, 0
        s_waitcnt lgkmcnt(0)
        s_mov_b32 s10, 256
        s_mov_b32 s11, 0x00020000
        v_mov_b32 v5, 0""")
        for i, k in enumerate(sel):
            A(f"v_readlane_b32 s{T0}, v143, {k}\ns_sub_u32 s{T0}, s{T0}, s{T1}\nv_writelane_b32 v5, s{T0}, {i}")
        A(f"""v_lshlrev_b32 v6, 2, v2
        s_mov_b64 exec, 0xffff
        buffer_store_dword v5, v6, s[8:11], 0 offen""")
A("k_done:\ns_endpgm\nk_end:")

hdr = f"; @launch grid=(256,1,1) block=(256,1,1) lds={LDS_SZ}\n.amdgcn_target \"amdgcn-amd-amdhsa--gfx950\"\n.text\n"
out = hdr + A.text() + '.section .rodata,"a"\n' + A.kd(name, 256, 102, accum=256, agpr=256)
open(sys.argv[1], "w").write(out)
print("stamps", nst[0], "lds", LDS_SZ, file=sys.stderr)
```

```python
import sys, os
from asmlib import *

STAMP = os.environ.get("STAMP") == "1"
def P(n, d): return int(os.environ.get(n, d))
S, D, F = 2048, 512, 1376
UR, QP, X1P, X1S, HID, W1P, W2P = 0x0, 0x200000, 0x400000, 0x600000, 0x800000, 0xE00000, 0x1000000
MODF, ST1 = 0x1200000, 0x1210000
F1A, F1B, F2, F3, EPOCH, F3B = 0x1300000, 0x1304000, 0x1308000, 0x130C000, 0x1310000, 0x1314000
TS = 0x1400000
WS_SZ = 0x1500000
OOB = 0x40000000
SZ_SD = S * D * 2
SZ_W = D * F * 2
POLL_MAX = 200000

OSZ = 2368; USZ = 2 * OSZ
L_U = 0
L_KF = 9472; KFSZ = 8256
L_MODP = L_KF + 2 * KFSZ
L_XP = 0
L_X = 65536
L_RED = L_X
L_TB = 131072
L_TC2 = L_TB + 2048 + 64
L_TGB = L_TC2 + 2048 + 64
L_BB = L_TGB + 2048
L_ST = L_BB + 4 * 384
LDS_SZ = L_ST + 512
assert LDS_SZ <= 160 * 1024 and L_MODP + 4096 <= 65536

WS, SK, SV, SQ, SM1, SKF, SM2, SC, SWM, SPK, SOUT = 4, 8, 12, 16, 20, 24, 28, 32, 36, 40, 48
sWAVE, sXG, sJ, sEP = 52, 53, 54, 55
sR, sFG, sD0, sONES, sM = 96, 97, 98, 99, 3
T0, T1, T2, T3, T4, T5 = 56, 57, 58, 59, 60, 61
SX = 62
ROT1 = [64 + i for i in range(16)]
ROT2 = [80 + i for i in range(16)] + [8 + i for i in range(6)]
sROT1 = 14

A = Asm()
name = "adaLN_cond__ssm_conv_h3__dense_activation_squared_relu__prompt_kernel"
W4 = f"s[{WS}:{WS+3}]"

class VM:
    def __init__(self): self.q = []
    def op(self, text, tag):
        A(text); self.q.append(tag)
    def wait(self, *tags, extra=""):
        last = max((i for i, t in enumerate(self.q) if t in tags), default=-1)
        n = len(self.q) - 1 - last
        if last >= 0:
            assert n <= 63, (tags, n)
            A(f"s_waitcnt vmcnt({n}) {extra}".rstrip())
            self.q = self.q[last + 1:]
        elif extra:
            A(f"s_waitcnt {extra}")
vm = VM()

nst = [0]
def stamp(label=""):
    if not STAMP: return
    i = nst[0]; nst[0] += 1
    print(f"stamp {i}: {label}", file=sys.stderr)
    A(f"""s_memrealtime s[100:101]
    s_waitcnt lgkmcnt(0)
    v_writelane_b32 v143, s100, {i}""")

def rnd1(r):
    A(f"v_cvt_pk_bf16_f32 v{r}, v{r}, v{r}\nv_lshlrev_b32 v{r}, 16, v{r}")
def capture(fn):
    save = A.lines; A.lines = []
    fn()
    tmp = [x.strip() for x in A.lines]; A.lines = save
    return tmp

def poll(addr_v, nloads, stride_imm, dst, lab, only_wave0=True):
    if only_wave0:
        A(f"s_cmp_lg_u32 s{sWAVE}, 0\ns_cbranch_scc1 {lab}_done")
    A(f"s_mov_b32 s{T0}, 0\n{lab}:")
    for k in range(nloads):
        A(f"s_mov_b32 s{T1}, {k*stride_imm}\nbuffer_load_dword v{dst+k}, v{addr_v}, {W4}, s{T1} offen sc1")
    A("s_waitcnt vmcnt(0)")
    for k in range(nloads):
        A(f"v_xor_b32 v{dst+k}, s{sEP}, v{dst+k}")
    for k in range(1, nloads):
        A(f"v_or_b32 v{dst}, v{dst}, v{dst+k}")
    A(f"""v_cmp_ne_u32 vcc, 0, v{dst}
    s_add_u32 s{T0}, s{T0}, 1
    s_cmp_ge_u32 s{T0}, {POLL_MAX}
    s_cbranch_scc1 {lab}_done
    s_cbranch_vccz {lab}_done
    s_mov_b64 exec, vcc
    s_sleep {P("PSLEEP", 2)}
    s_branch {lab}
    {lab}_done:
    s_mov_b64 exec, -1""")

def set_flag(wave, base, idx_code, va, vd, pre=""):
    lab = A.label("fl")
    A(f"""s_cmp_lg_u32 s{sWAVE}, {wave}
    s_cbranch_scc1 {lab}
    {pre}
    {idx_code}
    s_lshl_b32 s{T0}, s{T0}, 6
    s_add_u32 s{T0}, s{T0}, {base}
    v_mov_b32 v{va}, s{T0}
    v_mov_b32 v{vd}, s{sEP}
    s_mov_b64 exec, 1
    buffer_store_dword v{vd}, v{va}, {W4}, 0 offen sc1
    s_mov_b64 exec, -1
    {lab}:""".replace("    \n", ""))

def ln_final(sm, sq, rs_out, m_out):
    A(f"""v_mul_f32 v{m_out}, 0x3b000000, v{sm}
    v_mul_f32 v{rs_out}, 0x3b000000, v{sq}
    v_fma_f32 v{rs_out}, -v{m_out}, v{m_out}, v{rs_out}
    v_max_f32 v{rs_out}, 0, v{rs_out}""")
    rnd1(rs_out); rnd1(m_out)
    A(f"v_add_f32 v{rs_out}, 0x3727c5ac, v{rs_out}")
    rnd1(rs_out)
    A(f"v_sqrt_f32 v{rs_out}, v{rs_out}\ns_nop 0")
    rnd1(rs_out)
    A(f"v_rcp_f32 v{rs_out}, v{rs_out}\ns_nop 0")

A.kernel_begin(name)
NCP = P("NCP", 6)
A(f"""s_cmp_ge_u32 s2, 256
s_cbranch_scc1 k_done
s_load_dwordx16 s[64:79], s[0:1], 0
s_load_dwordx16 s[80:95], s[0:1], 64
s_getpc_b64 s[48:49]
k_pc:""")
A(f"""
v_lshrrev_b32 v1, 6, v0
v_and_b32 v2, 63, v0
v_readfirstlane_b32 s{sWAVE}, v1
s_and_b32 s{sXG}, s2, 7
s_lshr_b32 s{sJ}, s2, 3
v_and_b32 v3, 15, v2
v_lshrrev_b32 v4, 4, v2
s_lshr_b32 s{T0}, s{sJ}, 3
s_lshl_b32 s{T0}, s{T0}, 3
s_add_u32 s{sR}, s{sXG}, s{T0}
s_and_b32 s{sFG}, s{sJ}, 7
s_lshl_b32 s{sD0}, s{sXG}, 6
s_lshl_b32 s{T0}, s{sJ}, 1
s_add_u32 s{sD0}, s{sD0}, s{T0}
s_mov_b32 s{sONES}, 0x3f803f80""")
stamp("start")
if STAMP: A("s_memtime s[100:101]\ns_waitcnt lgkmcnt(0)\nv_writelane_b32 v143, s100, 62")
KT, VT, QT, US, QS, PKT = L_X, L_X + 9216, L_X + 17408, L_X + 25600, L_X + 33792, L_X + 41984
A(f"""v_lshrrev_b32 v5, 3, v2
v_lshlrev_b32 v5, 10, v5
v_and_b32 v6, 7, v2
v_lshl_add_u32 v5, v6, 4, v5          ; (l>>3)*1024 + (l&7)*16
s_lshl_b32 s{T0}, s{sJ}, 16
s_lshl_b32 s{T1}, s{sXG}, 7
s_add_u32 s{T0}, s{T0}, s{T1}
v_add_u32 v7, s{T0}, v5
v_subrev_u32 v7, 8192, v7
s_lshl_b32 s{T1}, s{sWAVE}, 14
s_add_u32 s{T0}, s{T0}, s{T1}
v_add_u32 v5, s{T0}, v5
v_and_b32 v12, 31, v0                 ; cp
v_lshrrev_b32 v13, 5, v0              ; rg
v_lshlrev_b32 v8, 4, v12
s_lshl_b32 s{T0}, s{sXG}, 9
v_add_u32 v8, s{T0}, v8
s_lshl_b32 s{T4}, s{sWAVE}, 11         ; 2048*w
s_movk_i32 s{T5}, 8192
s_waitcnt lgkmcnt(0)""")
if P("TLBT", 0):
    for p in (66, 68, 64, 70, 72, 74, 86, 88, 78, 82, 80, 84, 90):
        A(f"s_load_dword s0, s[{p}:{p+1}], 0")
    A(f"s_add_u32 s76, s88, 0x200000\ns_addc_u32 s77, s89, 0\ns_load_dword s0, s[76:77], 0")
    A(f"s_mov_b32 s76, s94\ns_mov_b32 s77, s95")
    for pg in range(10):
        A(f"s_load_dword s0, s[76:77], 0")
        if pg < 9: A(f"s_add_u32 s76, s76, 0x200000\ns_addc_u32 s77, s77, 0")
A.srd(SK, 66, SZ_SD); A.srd(SV, 68, SZ_SD); A.srd(SM1, 70, 4096); A.srd(SQ, 64, SZ_SD)
A(f"""s_cmp_lg_u32 s{sWAVE}, 3
s_cbranch_scc1 nohalo
s_mov_b32 m0, {KT}
s_nop 0
buffer_load_dwordx4 v7, s[{SK}:{SK+3}], 0 offen lds
nohalo:""")
W = 44
NTQ = lambda srd: ' nt' if (P('NT', 1) and (srd != SQ or P('NTQ', 1))) else ''
for (base, srd, tag) in ((KT + 1024, SK, "k"), (VT, SV, "k"), (QT, SQ, "k")):
    for i in range(2):
        A(f"s_add_u32 s{T0}, s{T4}, {base + 1024*i}\ns_mov_b32 m0, s{T0}\ns_nop 0")
        vm.op(f"buffer_load_dwordx4 v5, s[{srd}:{srd+3}], {'s%d'%T5 if i else '0'} offen{NTQ(srd)} lds", tag)
vm.op(f"buffer_load_dwordx4 v[{W}:{W+3}], v8, s[{SM1}:{SM1+3}], 0 offen", "k")
A(f"""s_mul_i32 s{T0}, s{sJ}, 43
s_lshr_b32 s{T0}, s{T0}, 8              ; j/6
s_mul_i32 s{T0}, s{T0}, 6
s_sub_u32 s{T0}, s{sJ}, s{T0}           ; j%6
s_lshl_b32 s{T0}, s{T0}, 12
v_lshl_add_u32 v9, v0, 4, s{T0}
v_min_u32 v9, k_end-k_pc-16, v9""")
vm.op(f"global_load_dwordx4 a[0:3], v9, s[48:49]", "code")
A.srd(WS, 94, WS_SZ); A.srd(SKF, 72, SZ_SD); A.srd(SM2, 74, 1024); A.srd(SC, 86, 1024); A.srd(SWM, 88, 512 * 3072 * 2)
A.srd(SOUT, 90, SZ_SD)
A(f"v_mov_b32 v142, {EPOCH}")
vm.op(f"buffer_load_dword v142, v142, {W4}, 0 offen sc1", "ep")
KF0, DD, SR, CC, WM = 48, 58, 60, 68, 72
PS, PA, PD = 88, 92, 90
A(f"""s_sub_u32 s{T0}, s2, 74
v_lshlrev_b32 v{PD}, 4, v2
v_bfe_u32 v9, v2, 2, 2                ; r
v_and_b32 v10, 3, v2                  ; c
s_cmp_lt_u32 s{T0}, 96
s_cbranch_scc0 pk_w2""")
A.srd(SPK, 78, SZ_W)
A(f"""s_and_b32 s{T1}, s{T0}, 15              ; t
s_lshr_b32 s{T2}, s{T0}, 4              ; Fgb
v_lshrrev_b32 v11, 5, v2
v_bfe_u32 v14, v2, 1, 4
s_and_b32 s{T3}, s{sWAVE}, 1
s_lshl_b32 s{T3}, s{T3}, 2
v_or_b32 v15, s{T3}, v11
v_xor_b32 v14, v14, v15               ; i' even
v_xor_b32 v15, 2, v14                 ; i' odd
v_mul_u32_u24 v11, 2752, v11
v_and_b32 v16, 1, v2
v_lshl_add_u32 v11, v16, 4, v11
s_mul_i32 s{T3}, s{T1}, {32*2752}
s_mul_i32 s{T4}, s{sWAVE}, {8*2752}
s_add_u32 s{T3}, s{T3}, s{T4}
s_lshl_b32 s{T4}, s{T2}, 9
s_add_u32 s{T3}, s{T3}, s{T4}
v_add_u32 v11, s{T3}, v11
v_lshl_add_u32 v{PS}, v14, 5, v11
v_lshl_add_u32 v{PS+1}, v15, 5, v11
s_movk_i32 s44, 5504
v_and_b32 v14, 1, v4
v_lshl_or_b32 v14, v14, 2, v9
v_lshl_add_u32 v15, v4, 3, v9
v_lshlrev_b32 v15, 9, v15
v_lshl_add_u32 v15, v10, 3, v15
v_add_u32 v15, {PKT}, v15
s_lshl_b32 s{T3}, s{sWAVE}, 2
v_xor_b32 v14, s{T3}, v14""")
for u in range(4):
    A(f"""v_xor_b32 v16, {u}, v14
    v_lshl_add_u32 v{PA+u}, v16, 5, v15
    v_add_u32 v{PA+4+u}, 2048, v{PA+u}""")
A(f"""s_lshl_b32 s{T2}, s{T2}, 2
s_add_u32 s{T2}, s{T2}, s{sWAVE}        ; Fg
s_lshl_b32 s{T3}, s{T2}, 16
s_lshl_b32 s{T4}, s{T1}, 10
s_add_u32 s{T3}, s{T3}, s{T4}
s_add_u32 s{T3}, s{T3}, {W1P}
s_cmp_ge_u32 s{T2}, 22
s_cselect_b32 s{T3}, {OOB}, s{T3}
v_add_u32 v{PD}, s{T3}, v{PD}
s_movk_i32 s45, 16384
s_cmp_eq_u32 s{T2}, 21
s_cselect_b32 s46, {OOB}, 0
s_branch pk_go
pk_w2:""")
A.srd(SPK, 82, SZ_W)
A(f"""s_sub_u32 s{T1}, s2, 170                ; F
v_bfe_u32 v14, v2, 2, 2
v_xor_b32 v14, v14, v4
v_lshlrev_b32 v11, 10, v4
v_lshl_add_u32 v11, v14, 6, v11
v_lshl_add_u32 v11, v10, 4, v11
s_lshl_b32 s{T3}, s{T1}, 14
s_lshl_b32 s{T4}, s{sWAVE}, 8
s_add_u32 s{T3}, s{T3}, s{T4}
s_cmp_ge_u32 s{T1}, 86
s_cselect_b32 s{T3}, {OOB}, s{T3}
v_add_u32 v{PS}, s{T3}, v11
v_mov_b32 v{PS+1}, v{PS}
s_movk_i32 s44, 4096
v_lshrrev_b32 v14, 1, v4
v_lshl_add_u32 v14, v14, 3, v9
v_lshlrev_b32 v14, 8, v14
v_and_b32 v15, 1, v4
v_lshl_add_u32 v14, v15, 5, v14
v_lshl_add_u32 v14, v10, 3, v14
s_lshl_b32 s{T3}, s{sWAVE}, 12
s_add_u32 s{T3}, s{T3}, {PKT}
v_add_u32 v14, s{T3}, v14""")
for u in range(4):
    A(f"""v_xor_b32 v16, {u}, v9
    v_lshl_add_u32 v{PA+u}, v16, 6, v14
    v_add_u32 v{PA+4+u}, 1024, v{PA+u}""")
A(f"""s_mul_i32 s{T3}, s{sWAVE}, {4*86*1024}
s_lshl_b32 s{T4}, s{T1}, 10
s_add_u32 s{T3}, s{T3}, s{T4}
s_add_u32 s{T3}, s{T3}, {W2P}
s_cmp_ge_u32 s{T1}, 86
s_cselect_b32 s{T3}, {OOB}, s{T3}
v_add_u32 v{PD}, s{T3}, v{PD}
s_mov_b32 s45, {86*1024}
s_mov_b32 s46, 0
pk_go:
s_lshl_b32 s{T4}, s{sWAVE}, 12
s_mov_b32 s47, 0""")
def j_kf():
    A(f"""v_lshlrev_b32 v25, 4, v0
    s_lshl_b32 s{T0}, s{sD0}, 12
    v_add_u32 v25, s{T0}, v25
    s_movk_i32 s{T1}, 4096""")
    vm.op(f"buffer_load_dwordx4 v[{KF0}:{KF0+3}], v25, s[{SKF}:{SKF+3}], 0 offen{' nt' if P('NT',1) else ''}", "kf")
    vm.op(f"buffer_load_dwordx4 v[{KF0+4}:{KF0+7}], v25, s[{SKF}:{SKF+3}], s{T1} offen{' nt' if P('NT',1) else ''}", "kf")
    A(f"s_lshl_b32 s{T0}, s{sD0}, 1\nv_mov_b32 v25, s{T0}")
    vm.op(f"buffer_load_dword v{DD}, v25, s[{SM2}:{SM2+3}], 0 offen", "D")
def j_pk():
    A(f"s_lshl_b32 s{T4}, s{sWAVE}, 12\ns_mov_b32 s47, 0")
    for i in range(4):
        A(f"s_add_u32 s{T0}, s{T4}, {PKT + 1024*i}\ns_mov_b32 m0, s{T0}\ns_nop 0")
        vm.op(f"buffer_load_dwordx4 v{PS+(i&1)}, s[{SPK}:{SPK+3}], s47 offen{' nt' if P('NT',1) else ''} lds", "pk")
        if i < 3: A(f"s_add_u32 s47, s47, s44")
def j_mod():
    A(f"""s_mul_i32 s{T0}, s2, 1366
    s_lshr_b32 s{T0}, s{T0}, 16
    s_mul_i32 s{T1}, s{T0}, 48
    s_sub_u32 s{T1}, s2, s{T1}
    s_mul_i32 s{sM}, s{T0}, 12288
    s_lshl_b32 s{T2}, s{T1}, 8
    s_add_u32 s{sM}, s{sM}, s{T2}
    s_add_u32 s{sM}, s{sM}, {MODF}
    s_cmp_ge_u32 s2, 192
    s_cselect_b32 s{sM}, {OOB}, s{sM}
    s_mul_i32 s{T2}, s{T0}, {128*6144}
    s_lshl_b32 s{T3}, s{T1}, 7
    s_add_u32 s{T2}, s{T2}, s{T3}
    s_cmp_ge_u32 s2, 192
    s_cselect_b32 s{T2}, {OOB}, s{T2}
    v_and_b32 v22, 7, v0
    v_lshrrev_b32 v23, 3, v0
    v_mul_u32_u24 v24, {4*6144}, v23
    v_lshl_add_u32 v24, v22, 4, v24
    v_add_u32 v24, s{T2}, v24
    v_lshlrev_b32 v23, 3, v23
    s_lshl_b32 s{T0}, s{T0}, 8
    v_add_u32 v23, s{T0}, v23""")
    vm.op(f"buffer_load_dwordx2 v[{CC}:{CC+1}], v23, s[{SC}:{SC+3}], 0 offen", "c")
    for i in range(4):
        A(f"s_mov_b32 s{T0}, {6144*i}")
        vm.op(f"buffer_load_dwordx4 v[{WM+4*i}:{WM+4*i+3}], v24, s[{SWM}:{SWM+3}], s{T0} offen{' nt' if P('NT',1) else ''}", "wm")
def j_st():
    A(f"""v_lshlrev_b32 v22, 4, v2
    s_lshl_b32 s{T0}, s2, 13
    s_lshl_b32 s{T1}, s{sWAVE}, 11
    s_add_u32 s{T0}, s{T0}, s{T1}
    v_add_u32 v22, s{T0}, v22""")
    vm.op(f"buffer_load_dwordx4 v[{SR}:{SR+3}], v22, s[{SQ}:{SQ+3}], 0 offen{' nt' if P('NTS',1) else ''}", "sr")
    vm.op(f"buffer_load_dwordx4 v[{SR+4}:{SR+7}], v22, s[{SQ}:{SQ+3}], 0 offen offset:1024{' nt' if P('NTS',1) else ''}", "sr")
JOBS = dict(kf=j_kf, pk=j_pk, mod=j_mod, st=j_st)
ORD = os.environ.get("ORD", "mod/kf,pk,st/").split("/")
for j_ in ORD[0].split(","):
    if j_: JOBS[j_]()
A(f"""v_lshlrev_b32 v5, 10, v13
v_lshl_add_u32 v5, v12, 2, v5
v_add_u32 v6, {KT + 5*128 + 1024}, v5
v_add_u32 v5, {KT + 5*128}, v5
v_subrev_u32 v7, {KT + 5*128 - VT}, v5
v_add_u32 v8, {QT - VT}, v7
v_and_b32 v9, 7, v12
v_sub_u32 v10, 7, v13
v_xor_b32 v10, v10, v9
v_lshlrev_b32 v14, 8, v12
v_lshl_add_u32 v15, v10, 4, v14
v_add_u32 v15, {US}, v15
v_lshlrev_b32 v10, 1, v13
v_xor_b32 v10, v10, v9
v_lshl_add_u32 v16, v10, 4, v14
v_add_u32 v16, {QS}, v16
v_xor_b32 v17, 16, v16
v_lshrrev_b32 v9, 3, v0               ; ch
v_and_b32 v10, 7, v0
v_bfe_u32 v11, v0, 4, 3
v_xor_b32 v11, v11, v10
v_lshlrev_b32 v18, 7, v9
v_lshl_add_u32 v18, v11, 4, v18
v_add_u32 v18, {US}, v18
v_lshlrev_b32 v19, 12, v9
v_lshl_add_u32 v19, v10, 4, v19
s_lshl_b32 s{T0}, s{sXG}, 18
s_lshl_b32 s{T1}, s{sJ}, 7
s_sub_u32 s{T0}, s{T0}, s{T1}
s_add_u32 s{T0}, s{T0}, 3968
v_add_u32 v19, s{T0}, v19
v_lshrrev_b32 v9, 4, v0
v_and_b32 v11, 7, v9
v_xor_b32 v11, v11, v3
v_lshlrev_b32 v20, 8, v9
v_lshl_add_u32 v20, v11, 4, v20
v_add_u32 v20, {QS}, v20
v_lshlrev_b32 v21, 13, v9
v_lshl_add_u32 v21, v3, 4, v21
s_lshl_b32 s{T0}, s{sXG}, 18
s_lshl_b32 s{T1}, s{sJ}, 8
s_add_u32 s{T0}, s{T0}, s{T1}
s_add_u32 s{T0}, s{T0}, {QP}
v_add_u32 v21, s{T0}, v21""")
stamp("issued")
vm.wait("k")
A("s_barrier")
stamp("kvq in lds")
KR, VR, QR = 144, 156, 164
for j in range(0, 8, 2):
    A(f"ds_read2_b32 v[{KR+j}:{KR+j+1}], v5 offset0:{32*j} offset1:{32*j+32}")
A(f"ds_read2_b32 v[{KR+8}:{KR+9}], v6 offset0:0 offset1:32\nds_read_b32 v{KR+10}, v6 offset:256")
for j in range(0, 8, 2):
    A(f"ds_read2_b32 v[{VR+j}:{VR+j+1}], v7 offset0:{32*j} offset1:{32*j+32}")
for j in range(0, 8, 2):
    A(f"ds_read2_b32 v[{QR+j}:{QR+j+1}], v8 offset0:{32*j} offset1:{32*j+32}")
for j_ in ORD[1].split(","):
    if j_: JOBS[j_]()
WF, KFF, O = 100, 108, 172
KV = [180 + 2 * r for r in range(8)]
A(f"""v_lshlrev_b32 v{WF+0}, 16, v{W+0}
v_lshlrev_b32 v{WF+1}, 16, v{W+2}
v_and_b32 v{WF+2}, 0xffff0000, v{W+0}
v_and_b32 v{WF+3}, 0xffff0000, v{W+2}
v_lshlrev_b32 v{WF+4}, 16, v{W+1}
v_lshlrev_b32 v{WF+5}, 16, v{W+3}
v_and_b32 v{WF+6}, 0xffff0000, v{W+1}
v_and_b32 v{WF+7}, 0xffff0000, v{W+3}
s_waitcnt lgkmcnt(8)""")
for j in range(11):
    A(f"v_lshlrev_b32 v{KFF+2*j}, 16, v{KR+j}\nv_and_b32 v{KFF+2*j+1}, 0xffff0000, v{KR+j}")
A(f"""s_waitcnt lgkmcnt(0)
ds_write_b128 v16, v[{QR}:{QR+3}]
ds_write_b128 v17, v[{QR+4}:{QR+7}]""")
for r in range(8):
    A(f"v_pk_mul_f32 v[{KV[r]}:{KV[r]+1}], v[{KFF+2*r}:{KFF+2*r+1}], v[{WF+6}:{WF+7}]")
for t in range(1, 4):
    for r in range(8):
        A(f"v_pk_fma_f32 v[{KV[r]}:{KV[r]+1}], v[{KFF+2*(r+t)}:{KFF+2*(r+t)+1}], v[{WF+2*(3-t)}:{WF+2*(3-t)+1}], v[{KV[r]}:{KV[r]+1}]")
for r in range(8):
    A(f"v_lshlrev_b32 v{KFF+2*r}, 16, v{VR+r}\nv_and_b32 v{KFF+2*r+1}, 0xffff0000, v{VR+r}")
for r in range(8):
    A(f"v_pk_mul_f32 v[{KV[r]}:{KV[r]+1}], v[{KV[r]}:{KV[r]+1}], v[{KFF+2*r}:{KFF+2*r+1}]")
for e in range(2):
    for j in range(4):
        A(f"v_cvt_pk_bf16_f32 v{O+4*e+j}, v{KV[7-2*j]+e}, v{KV[6-2*j]+e}")
    A(f"ds_write_b128 v15, v[{O+4*e}:{O+4*e+3}] offset:{128*e}")
A(f"""s_mov_b32 s{T1}, 131072
s_waitcnt lgkmcnt(0)
s_barrier
ds_read_b128 v[144:147], v18
ds_read_b128 v[148:151], v18 offset:4096
ds_read_b128 v[152:155], v20
ds_read_b128 v[156:159], v20 offset:4096
s_waitcnt lgkmcnt(3)""")
vm.op(f"buffer_store_dwordx4 v[144:147], v19, {W4}, 0 offen {'' if P('PLAIN_UQ',0) else 'sc1'} {os.environ.get('F_ST1', '')}", "st1")
A("s_waitcnt lgkmcnt(2)")
vm.op(f"buffer_store_dwordx4 v[148:151], v19, {W4}, s{T1} offen {'' if P('PLAIN_UQ',0) else 'sc1'} {os.environ.get('F_ST1', '')}", "st1")
A("s_waitcnt lgkmcnt(1)")
vm.op(f"buffer_store_dwordx4 v[152:155], v21, {W4}, 0 offen {'' if P('PLAIN_UQ',0) else 'sc1'} {os.environ.get('F_ST1', '')}", "st1")
A("s_waitcnt lgkmcnt(0)")
vm.op(f"buffer_store_dwordx4 v[156:159], v21, {W4}, s{T1} offen {'' if P('PLAIN_UQ',0) else 'sc1'} {os.environ.get('F_ST1', '')}", "st1")
for j_ in ORD[2].split(","):
    if j_: JOBS[j_]()
stamp("st1 issued")
vm.wait("kf", "D")
A(f"""v_lshlrev_b32 v9, 4, v0
v_mov_b32 v120, 0
v_mov_b32 v121, 0
v_mov_b32 v122, 0
v_mov_b32 v123, 0
ds_write_b128 v9, v[{KF0}:{KF0+3}] offset:{L_KF + 32}
ds_write_b128 v9, v[{KF0+4}:{KF0+7}] offset:{L_KF + KFSZ + 32}
v_mul_u32_u24 v22, {OSZ}, v4
v_lshl_add_u32 v22, v3, 4, v22
v_lshrrev_b32 v10, 1, v2
v_and_b32 v10, 3, v10
v_mul_u32_u24 v10, 4128, v10
v_and_b32 v11, 1, v2
v_lshl_add_u32 v10, v11, 4, v10
ds_write_b128 v22, v[120:123] offset:{L_U + 2048}
ds_write_b128 v10, v[120:123] offset:{L_KF}""")
vm.wait("c")
A(f"""v_lshlrev_b32 v{CC+2}, 16, v{CC+1}
v_and_b32 v{CC+3}, 0xffff0000, v{CC+1}
v_and_b32 v{CC+1}, 0xffff0000, v{CC}
v_lshlrev_b32 v{CC}, 16, v{CC}""")
for i in range(4): A(f"v_mul_f32 v{100+i}, 0xbfb8aa3b, v{CC+i}")
for i in range(4): A(f"v_exp_f32 v{100+i}, v{100+i}")
for i in range(4): A(f"v_add_f32 v{100+i}, 1.0, v{100+i}")
for i in range(4): A(f"v_rcp_f32 v{100+i}, v{100+i}")
for i in range(4): A(f"v_mul_f32 v{CC+i}, v{CC+i}, v{100+i}")
for i in range(0, 4, 2):
    A(f"""v_cvt_pk_bf16_f32 v100, v{CC+i}, v{CC+i+1}
    v_lshlrev_b32 v{CC+i}, 16, v100
    v_and_b32 v{CC+i+1}, 0xffff0000, v100""")
MA = 104
vm.wait("wm")
for i in range(4):
    for j in range(4):
        t = 112 + 2 * (j % 2)
        A(f"v_lshlrev_b32 v{t}, 16, v{WM+4*i+j}\nv_and_b32 v{t+1}, 0xffff0000, v{WM+4*i+j}")
        if i == 0:
            A(f"v_pk_mul_f32 v[{MA+2*j}:{MA+2*j+1}], v[{t}:{t+1}], v[{CC}:{CC+1}] op_sel_hi:[1,0]")
        else:
            sel = "op_sel_hi:[1,0,1]" if i % 2 == 0 else "op_sel:[0,1,0] op_sel_hi:[1,1,1]"
            A(f"v_pk_fma_f32 v[{MA+2*j}:{MA+2*j+1}], v[{t}:{t+1}], v[{CC+(i//2)*2}:{CC+(i//2)*2+1}], v[{MA+2*j}:{MA+2*j+1}] {sel}")
A(f"""v_lshrrev_b32 v11, 4, v0
v_lshlrev_b32 v11, 8, v11
v_and_b32 v10, 7, v0
v_lshl_add_u32 v11, v10, 5, v11""")
for j in range(8):
    A(f"v_add_f32_dpp v{MA+j}, v{MA+j}, v{MA+j} row_shr:8 row_mask:0xf bank_mask:0xf bound_ctrl:0")
A(f"""v_cmp_le_u32 vcc, 8, v3
s_and_saveexec_b64 s[{SX}:{SX+1}], vcc
ds_write_b128 v11, v[{MA}:{MA+3}] offset:{L_MODP}
ds_write_b128 v11, v[{MA+4}:{MA+7}] offset:{L_MODP+16}
s_mov_b64 exec, s[{SX}:{SX+1}]""")
vm.wait("st1", "pk", "ep", extra="lgkmcnt(0)")
A(f"v_readfirstlane_b32 s{sEP}, v142\ns_barrier\ns_add_u32 s{sEP}, s{sEP}, 0x9e3779b9")
set_flag(0, F1A, f"s_lshl_b32 s{T0}, s{sXG}, 5\ns_add_u32 s{T0}, s{T0}, s{sJ}", 10, 11)
stamp("flag1a")
PKR = 144
for u in range(4):
    A(f"ds_read_b64_tr_b16 v[{PKR+4*u}:{PKR+4*u+1}], v{PA+u}\nds_read_b64_tr_b16 v[{PKR+4*u+2}:{PKR+4*u+3}], v{PA+4+u}")
KFM = 56
A(f"""ds_read_b32 v{KFM}, v9 offset:{L_KF + 28}
ds_read_b32 v{KFM+1}, v9 offset:{L_KF + KFSZ + 28}
s_mov_b32 s47, 0""")
for u in range(4):
    A(f"s_waitcnt lgkmcnt({8-2*u})")
    vm.op(f"buffer_store_dwordx4 v[{PKR+4*u}:{PKR+4*u+3}], v{PD}, {W4}, s47 offen sc1 {os.environ.get('F_ST1B', '')}", "st1b")
    if u < 3:
        A(f"s_add_u32 s47, s47, s45")
        if u == 1: A(f"s_add_u32 s47, s47, s46")
A(f"""s_cmp_lg_u32 s{sWAVE}, 1
s_cbranch_scc1 modf_done
v_lshlrev_b32 v11, 2, v2""")
for p in range(16):
    A(f"ds_read_b32 v{160+p}, v11 offset:{L_MODP+256*p}")
A("s_waitcnt lgkmcnt(0)")
for st in (8, 4, 2, 1):
    for p in range(st):
        A(f"v_add_f32 v{160+p}, v{160+p}, v{160+p+st}")
A(f"""v_add_u32 v10, s{sM}, v11
buffer_store_dword v160, v10, {W4}, 0 offen sc1
modf_done:""")
SA = 100
vm.wait("sr")
for i in range(4): A(f"v_mov_b32 v{SA+i}, 0")
for j in range(4):
    for rr in range(2):
        A(f"""v_dot2_f32_bf16 v{SA+2*rr}, v{SR+4*rr+j}, s{sONES}, v{SA+2*rr}
        v_dot2_f32_bf16 v{SA+2*rr+1}, v{SR+4*rr+j}, v{SR+4*rr+j}, v{SA+2*rr+1}""")
A("s_waitcnt lgkmcnt(0)")
for c in range(2):
    o = 124 + 4 * c
    A(f"v_alignbit_b32 v{o}, v{KF0+4*c}, v{KFM+c}, 16")
    for j in range(1, 4):
        A(f"v_alignbit_b32 v{o+j}, v{KF0+4*c+j}, v{KF0+4*c+j-1}, 16")
    A(f"ds_write_b128 v9, v[{o}:{o+3}] offset:{L_KF + c*KFSZ + 4128 + 32}")
for ctrl in ("row_shr:1", "row_shr:2", "row_shr:4", "row_shr:8"):
    for j in range(4):
        A(f"v_add_f32_dpp v{SA+j}, v{SA+j}, v{SA+j} {ctrl} row_mask:0xf bank_mask:0xf bound_ctrl:0")
for j in range(4):
    A(f"v_add_f32_dpp v{SA+j}, v{SA+j}, v{SA+j} row_bcast:15 row_mask:0xa bank_mask:0xf")
for j in range(4):
    A(f"v_add_f32_dpp v{SA+j}, v{SA+j}, v{SA+j} row_bcast:31 row_mask:0xc bank_mask:0xf")
a_ = capture(lambda: ln_final(SA, SA + 1, 104, 105)); b_ = capture(lambda: ln_final(SA + 2, SA + 3, 106, 107))
for x, y in zip(a_, b_):
    A(x)
    if y != "s_nop 0": A(y)
A(f"""s_lshl_b32 s{T0}, s2, 6
s_lshl_b32 s{T1}, s{sWAVE}, 4
s_add_u32 s{T0}, s{T0}, s{T1}
s_add_u32 s{T0}, s{T0}, {ST1}
v_mov_b32 v9, s{T0}
s_mov_b32 s{SX}, 0
s_mov_b32 s{SX+1}, 0x80000000
s_mov_b64 exec, s[{SX}:{SX+1}]""")
vm.op(f"buffer_store_dwordx4 v[104:107], v9, {W4}, 0 offen sc1 {os.environ.get('F_ST1B', '')}", "st1b")
A("s_mov_b64 exec, -1")
stamp("p1b stores issued")
sCH, sHF = 44, 45
A.srd(SM1, 80, F * 2); A.srd(SM2, 84, 1024)
A(f"""s_lshr_b32 s{sCH}, s{sWAVE}, 1
s_and_b32 s{sHF}, s{sWAVE}, 1
v_min_u32 v12, 31, v2
v_lshlrev_b32 v12, 6, v12
s_lshl_b32 s{T0}, s{sXG}, 11
s_add_u32 s{T0}, s{T0}, {F1A}
v_add_u32 v12, s{T0}, v12
v_lshlrev_b32 v13, 6, v2
v_lshlrev_b32 v5, 4, v0
s_lshl_b32 s{T0}, s{sD0}, 12
v_add_u32 v5, s{T0}, v5
v_add_u32 v6, 4096, v5
v_and_b32 v7, 1, v0
v_mul_u32_u24 v7, {OSZ}, v7
v_lshrrev_b32 v8, 1, v0
v_lshl_add_u32 v7, v8, 4, v7
v_lshlrev_b32 v15, 1, v4
v_sub_u32 v15, v15, v3
v_lshlrev_b32 v15, 4, v15
s_mul_i32 s{T0}, s{sCH}, {USZ}
s_lshl_b32 s{T1}, s{sHF}, 7
s_add_u32 s{T0}, s{T0}, s{T1}
s_add_u32 s{T0}, s{T0}, {L_U + 240}
v_add_u32 v15, s{T0}, v15
v_and_b32 v8, 1, v3
v_mul_u32_u24 v8, 4130, v8
v_lshlrev_b32 v16, 6, v4
v_lshl_add_u32 v16, v3, 1, v16
v_sub_u32 v16, v16, v8
s_mul_i32 s{T0}, s{sCH}, {KFSZ}
s_lshl_b32 s{T1}, s{sHF}, 8
s_add_u32 s{T0}, s{T0}, s{T1}
s_add_u32 s{T0}, s{T0}, {L_KF + 4132}
v_add_u32 v16, s{T0}, v16
v_add_u32 v17, 1024, v16
v_add_u32 v18, 2048, v16
v_add_u32 v19, 3072, v16
v_lshlrev_b32 v20, 16, v{DD}
v_and_b32 v21, 0xffff0000, v{DD}
v_lshlrev_b32 v8, 6, v3
v_lshl_add_u32 v8, v4, 4, v8          ; 64a' + 16g
s_lshl_b32 s{T0}, s{sD0}, 12
s_lshl_b32 s{T1}, s{sWAVE}, 11
s_add_u32 s{T0}, s{T0}, s{T1}
v_add_u32 v14, s{T0}, v8
v_lshlrev_b32 v63, 1, v8
s_lshl_b32 s{T0}, s{sWAVE}, 12
s_add_u32 s{T0}, s{T0}, {ST1}
v_add_u32 v63, s{T0}, v63
v_lshrrev_b32 v9, 2, v3
v_cmp_eq_u32 vcc, 3, v9
v_lshlrev_b32 v23, 11, v9
v_and_b32 v10, 3, v3
v_cndmask_b32 v11, 0, 1, vcc
v_lshl_add_u32 v23, v11, 11, v23
v_mul_u32_u24 v10, 12288, v10
s_lshl_b32 s{T0}, s{sD0}, 2
s_add_u32 s{T0}, s{T0}, {MODF}
v_add3_u32 v23, v23, v10, s{T0}
v_and_b32 v9, 1, v9
v_cvt_f32_u32 v62, v9
v_lshlrev_b32 v10, 4, v2
s_mul_i32 s{T0}, s{sFG}, 11
s_add_u32 s46, s{T0}, s{sWAVE}         ; F0
s_lshl_b32 s{T0}, s46, 14
s_add_u32 s{T0}, s{T0}, {W1P}
v_add_u32 v248, s{T0}, v10
v_add_u32 v249, 0x10000, v248
v_add_u32 v250, 0x20000, v248
s_add_u32 s{T0}, s46, 8
s_cmp_ge_u32 s{T0}, 86
s_cselect_b32 s47, {OOB}, 0
s_cmp_eq_u32 s{sWAVE}, 3
s_cselect_b32 s47, {OOB}, s47
v_add_u32 v250, s47, v250
""")
vm.wait("st1b", extra="lgkmcnt(0)")
A("s_barrier")
set_flag(1, F1B, f"s_mov_b32 s{T0}, s2", 10, 11, pre="s_waitcnt vmcnt(0)")
stamp("flag1b")
ACC = 24
AB = [64, 96]; BB_ = [144, 176]
UL, QE, SE, ME = 208, 216, 224, 240
def aload(o, st):
    for q in range(8):
        r = AB[st] + 4 * q; base = 128 * (q & 1) + 4 * o
        A(f"ds_read2_b32 v[{r}:{r+1}], v{16+(q>>1)} offset0:{base} offset1:{base+1}")
        A(f"ds_read2_b32 v[{r+2}:{r+3}], v{16+(q>>1)} offset0:{base+2} offset1:{base+3}")
def bload(o, st):
    for dl in range(8):
        r = BB_[st] + 4 * dl
        A(f"ds_read_b128 v[{r}:{r+3}], v15 offset:{(o&1)*OSZ + 16*(112-16*dl+(o>>1))}")
aload(0, 0)
for i in range(32): A(f"v_mov_b32 v{ACC+i}, 0")
sal = []
sal += [f"s_lshr_b32 s{T4}, s{sJ}, 3", f"s_mul_i32 s{T4}, s{T4}, {P('RRB', 0)}", f"s_mul_i32 s15, s{sFG}, {P('RFG', 1)}", f"s_lshl_b32 s{sROT1}, s{T4}, 1", f"s_add_u32 s{sROT1}, s{sROT1}, s15",
        f"s_lshl_b32 s{sROT1}, s{sROT1}, 1", f"s_and_b32 s{sROT1}, s{sROT1}, 15"]
for t in range(16):
    sal += [f"s_add_u32 s{ROT1[t]}, s{sROT1}, {t}", f"s_and_b32 s{ROT1[t]}, s{ROT1[t]}, 15", f"s_lshl_b32 s{ROT1[t]}, s{ROT1[t]}, 10"]
sal += [f"s_mul_i32 s{T4}, s{T4}, 11", f"s_lshr_b32 s{T4}, s{T4}, 1", f"s_mul_i32 s{T5}, s{sFG}, {3*P('RFG', 1)}", f"s_add_u32 s{T4}, s{T4}, s{T5}",
        f"s_cmp_ge_u32 s{sWAVE}, 2", f"s_cselect_b32 s{T5}, 21, 99",
        f"s_cmp_ge_u32 s{T4}, 22", f"s_cselect_b32 s15, 22, 0", f"s_sub_u32 s{T4}, s{T4}, s15"]
for i in range(22):
    r = ROT2[i]
    sal += [(f"s_lshl_b32 s{r}, s{T4}, 12", f"s_cmp_eq_u32 s{T4}, s{T5}", f"s_cselect_b32 s{r}, {OOB}, s{r}"),
            (f"s_add_u32 s{T4}, s{T4}, 1", f"s_cmp_eq_u32 s{T4}, 22", f"s_cselect_b32 s{T4}, 0, s{T4}")]
for x in sal: A(x if isinstance(x, str) else "\n".join(x))
sal = []
poll(12, 1, 0, 22, "p1a")
A("s_barrier")
stamp("poll1a done")
vm.op(f"buffer_load_dwordx4 v[{UL}:{UL+3}], v5, {W4}, 0 offen sc1{' nt' if P('NTU',0) else ''}", "u")
vm.op(f"buffer_load_dwordx4 v[{UL+4}:{UL+7}], v6, {W4}, 0 offen sc1{' nt' if P('NTU',0) else ''}", "u")
A(f"s_mov_b32 s{T2}, {QP}")
for jn in range(2):
    vm.op(f"buffer_load_dwordx4 v[{QE+4*jn}:{QE+4*jn+3}], v14, {W4}, s{T2} offen offset:{1024*jn} sc1", "qe")
for k in range(4):
    A(f"s_mov_b32 s{T1}, {F1B + 4096*k}")
    vm.op(f"buffer_load_dword v{56+k}, v13, {W4}, s{T1} offen sc1", "f1b")
vm.wait("u")
A(f"""ds_write_b128 v7, v[{UL}:{UL+3}] offset:{L_U}
ds_write_b128 v7, v[{UL+4}:{UL+7}] offset:{L_U+USZ}
s_waitcnt lgkmcnt(0)
s_barrier""")
bload(0, 0)
stamp("u in lds")
w1q = [(t, j) for t in range(16) for j in range(3)]
def w1_issue(n):
    for _ in range(n):
        if not w1q: return
        t, j = w1q.pop(0)
        vm.op(f"buffer_load_dwordx4 a[{(t*3+j)*4}:{(t*3+j)*4+3}], v{248+j}, {W4}, s{ROT1[t]} offen sc1{' nt' if P('NTW',0) else ''}", f"w1_{t}")
def me_final():
    vm.wait("me")
    for sh in (1, 2):
        A("s_nop 1")
        for k in range(2):
            A(f"v_add_f32_dpp v{UL+k}, v{UL+k}, v{UL+k} row_shr:{sh} row_mask:0xf bank_mask:0xf bound_ctrl:0")
    A(f"""v_cvt_pk_bf16_f32 v{UL+2}, v{UL}, v{UL+1}
    v_lshlrev_b32 v{UL}, 16, v{UL+2}
    v_and_b32 v{UL+1}, 0xffff0000, v{UL+2}
    v_add_f32 v{UL}, v{UL}, v62
    v_add_f32 v{UL+1}, v{UL+1}, v62
    v_cvt_pk_bf16_f32 v{UL+2}, v{UL}, v{UL+1}
    v_lshlrev_b32 v{UL}, 16, v{UL+2}
    v_and_b32 v{UL+1}, 0xffff0000, v{UL+2}
    s_nop 1""")
    for i in range(4):
        for k in range(2):
            A(f"v_mov_b32_dpp v{ME+2*i+k}, v{UL+k} row_newbcast:{4*i+3} row_mask:0xf bank_mask:0xf")
for o in range(4):
    st = o & 1
    A("s_waitcnt lgkmcnt(0)")
    lds = []
    if o + 1 < 4:
        lds = capture(lambda: (bload(o + 1, st ^ 1), aload(o + 1, st ^ 1)))
    side = []; cnt = 0
    if o == 3: side = capture(me_final)
    for dl in range(8):
        for q in range(8 - dl):
            n = q + dl
            A(f"v_mfma_f32_16x16x32_bf16 v[{ACC+4*n}:{ACC+4*n+3}], v[{AB[st]+4*q}:{AB[st]+4*q+3}], v[{BB_[st]+4*dl}:{BB_[st]+4*dl+3}], v[{ACC+4*n}:{ACC+4*n+3}]")
            cnt += 1
            if lds: A(lds.pop(0))
            if o > P("F1B_O", 0) and o >= P("W1_O0", 1) and cnt % P("W1_EVERY", 6) == 0: w1_issue(1)
            for _ in range(2 if o == 0 else 1):
                if sal:
                    x = sal.pop(0)
                    A(x if isinstance(x, str) else "\n".join(x))
            if side: A(side.pop(0))
    for x in side: A(x)
    if o == P("F1B_O", 0):
        vm.wait("f1b")
        A(f"""v_xor_b32 v56, s{sEP}, v56
        v_xor_b32 v57, s{sEP}, v57
        v_xor_b32 v58, s{sEP}, v58
        v_xor_b32 v59, s{sEP}, v59
        v_or3_b32 v56, v56, v57, v58
        v_or_b32 v56, v56, v59
        v_cmp_ne_u32 vcc, 0, v56
        s_nop 1
        s_cbranch_vccz p1b_done
        v_add_u32 v22, {F1B}, v13""")
        poll(22, 4, 4096, 56, "p1b", only_wave0=False)
        vm.op(f"buffer_load_dwordx2 v[{UL}:{UL+1}], v23, {W4}, 0 offen sc1", "me")
        for jn in range(2):
            for hh in range(2):
                vm.op(f"buffer_load_dwordx4 v[{SE+8*jn+4*hh}:{SE+8*jn+4*hh+3}], v63, {W4}, 0 offen offset:{2048*jn+16*hh} sc1", "se")
        if P("WTOUCH", 0):
            A(f"""s_mul_i32 s{T0}, s{sJ}, 44032
            v_lshlrev_b32 v22, 7, v0
            v_add_u32 v22, s{T0}, v22
            v_add_u32 v60, 32768, v22
            v_cmp_gt_u32 vcc, 88, v0
            v_mov_b32 v61, {OOB}
            s_mov_b32 s{T0}, {W1P}
            s_mov_b32 s{T1}, {W2P}
            v_cndmask_b32 v60, v61, v60, vcc""")
            for (ad, so) in ((22, T0), (60, T0), (22, T1), (60, T1)):
                vm.op(f"buffer_load_dword v61, v{ad}, {W4}, s{so} offen sc1", "touch")
        A(f"""v_lshlrev_b32 v128, 3, v0
        v_add_u32 v128, {MODF + 3*2048}, v128
        v_lshlrev_b32 v129, 3, v4
        s_lshl_b32 s{T0}, s46, 5
        v_add_u32 v129, s{T0}, v129
        v_lshlrev_b32 v130, 3, v3
        s_lshl_b32 s{T0}, s{sR}, 9
        s_lshl_b32 s{T1}, s{sWAVE}, 7
        s_add_u32 s{T0}, s{T0}, s{T1}
        s_add_u32 s{T0}, s{T0}, {ST1 + 4}
        v_add_u32 v130, s{T0}, v130""")
        for ks in range(4):
            A(f"s_mov_b32 s{T1}, {12288*ks}\ns_mov_b32 s{T0}, {12288*ks+4096}")
            for sec in range(3):
                so, off = (T1, 2048 * sec) if sec < 2 else (T0, 0)
                vm.op(f"buffer_load_dwordx2 a[{192+8*sec+2*ks}:{192+8*sec+2*ks+1}], v128, {W4}, s{so} offen offset:{off} sc1", "tp")
        for j in range(3):
            vm.op(f"buffer_load_dwordx2 a[{216+2*j}:{217+2*j}], v129, s[{SM1}:{SM1+3}], 0 offen offset:{128*j}", "tp")
        vm.op(f"buffer_load_dword v140, v130, {W4}, 0 offen sc1", "tp")
        stamp("flag1b all seen")
assert not sal
stamp("conv mfma done")
A(f"""v_lshlrev_b32 v9, 4, v2
s_lshl_b32 s{T0}, s{sWAVE}, 13
s_add_u32 s{T0}, s{T0}, {L_RED}
v_add_u32 v10, s{T0}, v9
s_lshl_b32 s{T0}, s{sWAVE}, 11
s_add_u32 s{T0}, s{T0}, {L_RED}
v_add_u32 v11, s{T0}, v9
v_lshrrev_b32 v5, 1, v4
v_sub_u32 v5, 1, v5
v_mul_u32_u24 v5, {OSZ}, v5
v_lshlrev_b32 v6, 4, v3
v_sub_u32 v5, v5, v6
v_and_b32 v6, 1, v4
v_lshlrev_b32 v6, 3, v6
v_sub_u32 v5, v5, v6
s_lshl_b32 s{T0}, s{sWAVE}, 9
s_sub_u32 s{T0}, {L_U + 16*(127-16) + 8}, s{T0}
v_add_u32 v5, s{T0}, v5""")
for n in range(8):
    A(f"ds_write_b128 v10, v[{ACC+4*n}:{ACC+4*n+3}] offset:{1024*n}")
UE = 128
for jn in range(2):
    for c in range(2):
        A(f"ds_read_b64 v[{UE+4*jn+2*c}:{UE+4*jn+2*c+1}], v5 offset:{256*(1-jn) + c*USZ}")
A("s_waitcnt lgkmcnt(0)\ns_barrier")
RR = 64
for jn in range(2):
    for src in range(4):
        r = RR + 16 * jn + 4 * src
        A(f"ds_read_b128 v[{r}:{r+3}], v11 offset:{8192*src + 1024*jn}")
vm.wait("qe", "se", "me")
XO, XS = 112, 120
SAp, C1p, GAp, C2p = ME, ME + 2, ME + 4, ME + 6
A(f"s_mov_b32 s{T2}, {X1S}\ns_mov_b32 s{T3}, {X1P}")
for jn in range(2):
    A(f"s_waitcnt lgkmcnt({4*(1-jn)})")
    seqs = []
    for r in range(4):
        Y, QF, QC, H, X = [24 + 10 * r + 2 * k for k in range(5)]
        b = RR + 16 * jn
        dw = 1 if r < 2 else 0
        sq = []
        for c in range(2):
            src = UE + 4 * jn + 2 * c + dw
            sq.append(f"v_and_b32 v{X+c}, 0xffff0000, v{src}" if r % 2 == 0 else f"v_lshlrev_b32 v{X+c}, 16, v{src}")
        st = SE + 8 * jn + 2 * r
        sq += f"""v_add_f32 v{Y}, v{b+r}, v{b+4+r}
        v_add_f32 v{Y+1}, v{b+8+r}, v{b+12+r}
        v_lshlrev_b32 v{QF}, 16, v{QE+4*jn+r}
        v_and_b32 v{QF+1}, 0xffff0000, v{QE+4*jn+r}
        v_pk_fma_f32 v[{Y}:{Y+1}], v[{X}:{X+1}], v[20:21], v[{Y}:{Y+1}]
        v_pk_add_f32 v[{QC}:{QC+1}], v[{QF}:{QF+1}], v[{st}:{st+1}] op_sel:[0,1] op_sel_hi:[1,1] neg_lo:[0,1] neg_hi:[0,1]
        v_pk_mul_f32 v[{H}:{H+1}], v[{QC}:{QC+1}], v[{st}:{st+1}] op_sel_hi:[1,0]
        v_pk_fma_f32 v[{H}:{H+1}], v[{H}:{H+1}], v[{C1p}:{C1p+1}], v[{SAp}:{SAp+1}]
        v_pk_mul_f32 v[{H}:{H+1}], v[{H}:{H+1}], v[{Y}:{Y+1}]
        v_pk_fma_f32 v[{QC}:{QC+1}], v[{H}:{H+1}], v[{GAp}:{GAp+1}], v[{QC}:{QC+1}]
        v_pk_fma_f32 v[{QF}:{QF+1}], v[{H}:{H+1}], v[{GAp}:{GAp+1}], v[{QF}:{QF+1}]
        v_pk_mul_f32 v[{QC}:{QC+1}], v[{QC}:{QC+1}], v[{C2p}:{C2p+1}]
        v_cvt_pk_bf16_f32 v{XO+4*jn+r}, v{QF}, v{QF+1}
        v_cvt_pk_bf16_f32 v{XS+4*jn+r}, v{QC}, v{QC+1}""".split("\n")
        seqs.append(sq)
    for gi, grp in enumerate(zip(*seqs)):
        for x in grp: A(x)
        if gi < P("W1_EPI", 8): w1_issue(1)
    vm.op(f"buffer_store_dwordx4 v[{XS+4*jn}:{XS+4*jn+3}], v14, {W4}, s{T2} offen offset:{1024*jn} sc1 {os.environ.get('F_ST2', '')}", "st2")
    vm.op(f"buffer_store_dwordx4 v[{XO+4*jn}:{XO+4*jn+3}], v14, {W4}, s{T3} offen offset:{1024*jn} sc1 {os.environ.get('F_ST2', '')}", "st2")
stamp("st2 issued")
w1_issue(99)
TP, B1R, M1R = 144, 208, 140
vm.wait("tp")
for i in range(24): A(f"v_accvgpr_read_b32 v{TP+i}, a{192+i}")
for i in range(6): A(f"v_accvgpr_read_b32 v{B1R+i}, a{216+i}")
for sec in range(3):
    b = TP + 8 * sec
    A(f"""v_pk_add_f32 v[{b}:{b+1}], v[{b}:{b+1}], v[{b+2}:{b+3}]
    v_pk_add_f32 v[{b+4}:{b+5}], v[{b+4}:{b+5}], v[{b+6}:{b+7}]""")
for sec in range(3):
    b = TP + 8 * sec
    A(f"""v_pk_add_f32 v[{b}:{b+1}], v[{b}:{b+1}], v[{b+4}:{b+5}]
    v_cvt_pk_bf16_f32 v{b+2}, v{b}, v{b+1}""")
A(f"""v_lshlrev_b32 v{TP+8}, 16, v{TP+10}
v_and_b32 v{TP+9}, 0xffff0000, v{TP+10}
v_lshlrev_b32 v{TP+16}, 16, v{TP+18}
v_and_b32 v{TP+17}, 0xffff0000, v{TP+18}
v_add_f32 v{TP+8}, 1.0, v{TP+8}
v_add_f32 v{TP+9}, 1.0, v{TP+9}
v_cvt_pk_bf16_f32 v{TP+10}, v{TP+8}, v{TP+9}
v_lshlrev_b32 v9, 2, v0
v_add_u32 v9, {L_TB}, v9
v_lshlrev_b32 v10, 3, v0
v_add_u32 v10, {L_TGB}, v10
ds_write_b32 v9, v{TP+2}
ds_write_b32 v9, v{TP+2} offset:1024
ds_write_b32 v9, v{TP+10} offset:{L_TC2-L_TB}
ds_write_b32 v9, v{TP+10} offset:{L_TC2-L_TB+1024}
ds_write_b64 v10, v[{TP+16}:{TP+17}]
v_and_b32 v9, 1, v3
v_mul_u32_u24 v9, {L_TC2-L_TB}, v9
v_lshl_add_u32 v9, v4, 4, v9
s_lshl_b32 s{T0}, s{sROT1}, 6
s_add_u32 s{T0}, s{T0}, {L_TB}
v_add_u32 v9, s{T0}, v9""")
A(f"""v_lshlrev_b32 v5, 13, v4
s_lshl_b32 s{T0}, s{sWAVE}, 15
s_lshl_b32 s{T1}, s{sR}, 8
s_add_u32 s{T0}, s{T0}, s{T1}
v_add_u32 v5, s{T0}, v5
s_and_b32 s{T1}, s{sWAVE}, 1
s_lshl_b32 s{T1}, s{T1}, 2
v_xor_b32 v7, s{T1}, v3
v_lshl_add_u32 v5, v7, 4, v5
v_add_u32 v6, {X1P}, v5
v_add_u32 v5, {X1S}, v5
v_and_b32 v7, 1, v4
v_lshlrev_b32 v8, 10, v4
v_lshl_add_u32 v8, v3, 2, v8
v_add_u32 v8, {L_X}, v8""")
for sg in range(4):
    A(f"v_xor_b32 v10, {sg}, v7\nv_lshl_add_u32 v{16+sg}, v10, 6, v8")
A(f"v_xor_b32 v10, s{sWAVE}, v7\nv_lshl_add_u32 v141, v10, 6, v8\nv_subrev_u32 v141, {L_X-L_XP}, v141")
A(f"""v_lshlrev_b32 v10, 4, v2
s_lshl_b32 s{T0}, s{sWAVE}, 10
v_add_u32 v11, s{T0}, v10
s_mul_i32 s{T0}, s{sFG}, {2*86*1024}
s_add_u32 s{T0}, s{T0}, {W2P}
v_add_u32 v20, s{T0}, v11
v_add_u32 v21, {86*1024}, v20
s_mul_i32 s{T0}, s{sR}, {2*86*1024}
s_add_u32 s{T0}, s{T0}, {HID}
v_add_u32 v22, s{T0}, v11
v_add_u32 v23, {86*1024}, v22
v_add_u32 v12, {F2}, v13
s_mul_i32 s{T0}, s{sWAVE}, 384
s_add_u32 s{T0}, s{T0}, {L_BB}
v_lshl_add_u32 v14, v4, 4, s{T0}
""")
vm.wait("st2", extra="lgkmcnt(0)")
A("s_barrier")
set_flag(0, F2, f"s_mov_b32 s{T0}, s2", 10, 11)
stamp("flag2")
MBF = 64
for t in range(16):
    A(f"ds_read_b128 v[{MBF+4*t}:{MBF+4*t+3}], v9 offset:{64*t}")
MD = 24
for i in range(12): A(f"v_mov_b32 v{MD+i}, 0")
A("s_waitcnt lgkmcnt(0)")
for t in range(16):
    vm.wait(f"w1_{t}")
    for j in range(3):
        A(f"v_mfma_f32_16x16x32_bf16 v[{MD+4*j}:{MD+4*j+3}], a[{(t*3+j)*4}:{(t*3+j)*4+3}], v[{MBF+4*t}:{MBF+4*t+3}], v[{MD+4*j}:{MD+4*j+3}]")
stamp("MB pass done")
def w2reg(i, cb):
    k = 2 * i + cb
    return f"a[{192+4*k}:{195+4*k}]" if k < 16 else f"v[{252-4*(k-16)}:{255-4*(k-16)}]"
w2q = [(i, cb) for i in range(22) for cb in range(2)]
def w2_issue(n):
    for _ in range(n):
        if not w2q: return
        i, cb = w2q.pop(0)
        vm.op(f"buffer_load_dwordx4 {w2reg(i,cb)}, v{20+cb}, {W4}, s{ROT2[i]} offen sc1{' nt' if P('NTW',0) else ''}", "w2")
A("s_nop 7\ns_nop 1")
Bq = 36
for j in range(3):
    for r in range(4):
        A(f"v_mov_b32_dpp v{Bq+4*j+r}, v{MD+4*j+r} row_newbcast:0 row_mask:0xf bank_mask:0xf")
        A(f"v_mov_b32_dpp v{Bq+12+4*j+r}, v{MD+4*j+r} row_newbcast:1 row_mask:0xf bank_mask:0xf")
for j in range(3):
    A(f"""v_lshlrev_b32 v60, 16, v{B1R+2*j}
    v_and_b32 v61, 0xffff0000, v{B1R+2*j}
    v_lshlrev_b32 v62, 16, v{B1R+2*j+1}
    v_and_b32 v63, 0xffff0000, v{B1R+2*j+1}
    v_pk_add_f32 v[{Bq+4*j}:{Bq+4*j+1}], v[{Bq+4*j}:{Bq+4*j+1}], v[60:61]
    v_pk_add_f32 v[{Bq+4*j+2}:{Bq+4*j+3}], v[{Bq+4*j+2}:{Bq+4*j+3}], v[62:63]""")
A(f"s_mov_b32 s{SX}, 0x00010001\ns_mov_b32 s{SX+1}, 0x00010001\ns_mov_b64 exec, s[{SX}:{SX+1}]")
for i in range(6):
    A(f"ds_write_b128 v14, v[{Bq+4*i}:{Bq+4*i+3}] offset:{64*i}")
A("s_mov_b64 exec, -1")
G1 = 24; SAC = 128
A("s_waitcnt lgkmcnt(0)")
for i in range(48): A(f"v_mov_b32 v{G1+i}, 0")
stamp("pre poll2")
w2e = capture(lambda: w2_issue(P("W2_EARLY", 0)))
A(f"s_cmp_eq_u32 s{sWAVE}, 0\ns_cbranch_scc1 p2w0")
for x in w2e: A(x)
A("s_branch p2join\np2w0:")
poll(12, 4, 4096, 136, "p2")
for x in w2e: A(x)
A("p2join:")
A(f"""s_cmp_lg_u32 s2, 0
s_cbranch_scc1 noep
s_cmp_lg_u32 s{sWAVE}, 0
s_cbranch_scc1 noep
v_mov_b32 v10, {EPOCH}
v_mov_b32 v11, s{sEP}
s_mov_b64 exec, 1
buffer_store_dword v11, v10, {W4}, 0 offen sc1
s_mov_b64 exec, -1
noep:
s_barrier""")
stamp("poll2 done")
A(f"s_lshl_b32 s{T5}, s{sWAVE}, 10\ns_add_u32 s{T5}, s{T5}, {L_X}")
def xs_issue(c):
    A(f"""s_add_u32 s{T0}, s{T5}, {4096*c + L_X - L_XP}
    s_mov_b32 m0, s{T0}
    s_lshl_b32 s{T1}, s{ROT1[c]}, 7""")
    vm.op(f"buffer_load_dwordx4 v5, {W4}, s{T1} offen sc1 lds", f"x{c//4}")
A(f"s_sub_u32 s{T5}, s{T5}, {L_X - L_XP}")
XS0 = P("XS0", 16)
for c in range(XS0): xs_issue(c)
def xp_issue(c):
    A(f"""s_add_u32 s{T0}, s{T5}, {4096*c}
    s_mov_b32 m0, s{T0}
    s_lshl_b32 s{T1}, s{ROT1[c]}, 7""")
    vm.op(f"buffer_load_dwordx4 v6, {W4}, s{T1} offen sc1{' nt' if P('NTX',0) else ''} lds", f"p{c//4}")
for c in range(P("XP0", 0)): xp_issue(c)
BF = [72, 88]; PF = [104, 112]; ONE = 120; D1 = 136; D2 = 128
def bl(t, st):
    for sg in range(4):
        r = BF[st] + 4 * sg
        A(f"ds_read2st64_b32 v[{r}:{r+1}], v{16+sg} offset0:{16*t} offset1:{16*t+1}")
        A(f"ds_read2st64_b32 v[{r+2}:{r+3}], v{16+sg} offset0:{16*t+2} offset1:{16*t+3}")
def pl(u, r):
    A(f"ds_read2st64_b32 v[{r}:{r+1}], v141 offset0:{16*u} offset1:{16*u+1}")
    A(f"ds_read2st64_b32 v[{r+2}:{r+3}], v141 offset0:{16*u+2} offset1:{16*u+3}")
for i in range(4): A(f"v_mov_b32 v{ONE+i}, s{sONES}\nv_mov_b32 v{D1+i}, 0\nv_mov_b32 v{D2+i}, 0")
vm.wait("x0"); A("s_barrier")
stamp("x chunk0")
W2_T0, W2_EVERY = P("W2_T0", 1), P("W2_EVERY", 4)
xpq = [("s", c) for c in range(XS0, 16)] + [("p", c) for c in range(P("XP0", 0), 16)]
for _ in range(P("XBURST", 0)):
    k_, c_ = xpq.pop(0); (xs_issue if k_ == "s" else xp_issue)(c_)
SAC = 128
BFP = [72, 80]
PFX = [[88, 92], [96, 100]]
def blp(p, t, st):
    for k in range(2):
        sg = 2 * p + k; r = BFP[st] + 4 * k
        A(f"ds_read2st64_b32 v[{r}:{r+1}], v{16+sg} offset0:{16*t} offset1:{16*t+1}")
        A(f"ds_read2st64_b32 v[{r+2}:{r+3}], v{16+sg} offset0:{16*t+2} offset1:{16*t+3}")
A(f"""v_lshrrev_b32 v11, 1, v4
v_lshlrev_b32 v11, 9, v11
v_lshl_add_u32 v11, v3, 4, v11
v_and_b32 v7, 1, v4
v_lshl_add_u32 v11, v7, 3, v11
s_mul_i32 s{T0}, s{sR}, {2*86*1024}
s_lshl_b32 s{T1}, s46, 10
s_add_u32 s{T0}, s{T0}, s{T1}
s_add_u32 s{T0}, s{T0}, {HID}
v_add_u32 v8, s{T0}, v11
v_add_u32 v9, 4096, v8
v_add_u32 v10, 8192, v8
v_add_u32 v10, s47, v10
v_min_u32 v15, 7, v2
v_lshlrev_b32 v15, 6, v15
s_lshl_b32 s{T0}, s{sR}, 9
v_add_u32 v15, s{T0}, v15""")
def epi(p):
    BBr, CSr = 104, 116
    for j in range(3):
        seqs = []
        for k in range(2):
            sg = 2 * p + k
            c = G1 + (j * 4 + sg) * 4
            sp = SAC + 2 * sg
            TT = 72 + 4 * k
            sq = []
            for hh in range(2):
                sq.append(f"v_pk_fma_f32 v[{TT+2*hh}:{TT+2*hh+1}], v[{CSr+4*j+2*hh}:{CSr+4*j+2*hh+1}], v[{sp}:{sp+1}], v[{BBr+4*j+2*hh}:{BBr+4*j+2*hh+1}] op_sel:[0,1,0] op_sel_hi:[1,1,1] neg_lo:[0,1,0] neg_hi:[0,1,0]")
            for hh in range(2):
                sq.append(f"v_pk_fma_f32 v[{c+2*hh}:{c+2*hh+1}], v[{c+2*hh}:{c+2*hh+1}], v[{sp}:{sp+1}], v[{TT+2*hh}:{TT+2*hh+1}] op_sel_hi:[1,0,1]")
            for r in range(4): sq.append(f"v_max_f32 v{c+r}, 0, v{c+r}")
            sq += [f"v_pk_mul_f32 v[{c}:{c+1}], v[{c}:{c+1}], v[{c}:{c+1}]",
                   f"v_pk_mul_f32 v[{c+2}:{c+3}], v[{c+2}:{c+3}], v[{c+2}:{c+3}]",
                   f"v_cvt_pk_bf16_f32 v{c}, v{c}, v{c+1}",
                   f"v_cvt_pk_bf16_f32 v{c+1}, v{c+2}, v{c+3}"]
            seqs.append(sq)
        for grp in zip(*seqs):
            for x in grp: A(x)
        for k in range(2):
            c = G1 + (j * 4 + 2 * p + k) * 4
            vm.op(f"buffer_store_dwordx2 v[{c}:{c+1}], v{8+j}, {W4}, {'s%d'%T3 if p else '0'} offen offset:{256*k} sc1 {os.environ.get('F_ST3', '')}", f"st3{p}")
fidx = f"s_lshl_b32 s{T0}, s{sR}, 3\ns_add_u32 s{T0}, s{T0}, s{sFG}"
for p in range(2):
    blp(p, 0, 0)
    for t in range(16):
        st = t & 1
        lds = []
        if p == 0 and t in (3, 7, 11):
            vm.wait(*{3: ["x1"], 7: ["x2", "p1"], 11: ["x3", "p3"]}[t]); A("s_barrier")
        if p == 1 and t == P("F3A_T", 5):
            vm.wait("st30"); A("s_barrier")
            set_flag(0, F3, fidx, 92, 93)
        if t + 1 < 16: lds += capture(lambda: blp(p, t + 1, st ^ 1))
        if p == 0 and 8 <= t + 1 < 16:
            for k in range(2): lds += capture(lambda: pl(2 * (t + 1 - 8) + k, PFX[st ^ 1][k]))
        A("s_waitcnt lgkmcnt(0)")
        mfs = []
        for j in range(3):
            for k in range(2):
                c = G1 + (j * 4 + 2 * p + k) * 4
                mfs.append(f"v_mfma_f32_16x16x32_bf16 v[{c}:{c+3}], a[{(t*3+j)*4}:{(t*3+j)*4+3}], v[{BFP[st]+4*k}:{BFP[st]+4*k+3}], v[{c}:{c+3}]")
        if p == 0 and t >= 8:
            for k in range(2):
                q_ = PFX[st][k]
                mfs.insert(0, f"v_mfma_f32_16x16x32_bf16 v[{D1}:{D1+3}], v[{ONE}:{ONE+3}], v[{q_}:{q_+3}], v[{D1}:{D1+3}]")
                mfs.insert(0, f"v_mfma_f32_16x16x32_bf16 v[{D2}:{D2+3}], v[{q_}:{q_+3}], v[{q_}:{q_+3}], v[{D2}:{D2+3}]")
        for mf, x in enumerate(mfs, 1):
            A(x)
            for _ in range(2):
                if lds: A(lds.pop(0))
            if mf % 2 == 0 and xpq:
                k_, c_ = xpq.pop(0); (xs_issue if k_ == "s" else xp_issue)(c_)
            elif (p == 1 or t >= W2_T0) and mf % W2_EVERY == 0: w2_issue(1)
        assert not lds
    if p == 0:
        A(f"""v_and_b32 v124, 3, v3
        v_lshrrev_b32 v125, 2, v3
        v_cmp_eq_u32 s[{SX}:{SX+1}], v125, v4
        v_lshlrev_b32 v90, 3, v3
        s_lshl_b32 s{T0}, s{sWAVE}, 7
        s_add_u32 s{T0}, s{T0}, {L_ST}
        v_add_u32 v91, s{T0}, v90
        v_add_u32 v90, {L_ST}, v90
        v_cmp_eq_u32 vcc, 1, v124
        s_nop 1
        v_cndmask_b32 v{D2}, v{D2}, v{D2+1}, vcc
        v_cmp_eq_u32 vcc, 2, v124
        s_nop 1
        v_cndmask_b32 v{D2}, v{D2}, v{D2+2}, vcc
        v_cmp_eq_u32 vcc, 3, v124
        s_nop 1
        v_cndmask_b32 v{D2}, v{D2}, v{D2+3}, vcc""")
        ln_final(D1, D2, 88, 89)
        A(f"""v_sub_f32 v89, v89, v{M1R}
        v_mul_f32 v89, v89, v88
        s_mov_b64 exec, s[{SX}:{SX+1}]
        ds_write_b64 v91, v[88:89]
        s_mov_b64 exec, -1""")
        for i in range(6):
            A(f"ds_read_b128 v[{104+4*i}:{107+4*i}], v14 offset:{64*i}")
        A(f"s_mov_b32 s{T3}, {86*1024}\ns_waitcnt lgkmcnt(0)\ns_barrier")
        for sg in range(4):
            A(f"ds_read_b64 v[{SAC+2*sg}:{SAC+2*sg+1}], v90 offset:{128*sg}")
        A("s_waitcnt lgkmcnt(0)")
        stamp("gemm1 pass A done")
    else:
        A("s_nop 7")
        stamp("gemm1 pass B done")
    epi(p)
stamp("st3 issued")
XR, BR, GR = 96, 104, 112
A(f"""v_and_b32 v8, 31, v2
v_lshrrev_b32 v9, 5, v2
s_lshl_b32 s{T2}, s{sFG}, 7
s_lshl_b32 s{T4}, s{sWAVE}, 5
s_add_u32 s{T2}, s{T2}, s{T4}
v_lshlrev_b32 v10, 3, v9
v_add_u32 v10, s{T2}, v10             ; b2 addr
v_lshlrev_b32 v11, 1, v10
v_add_u32 v11, {L_TGB}, v11
s_lshl_b32 s{T4}, s{sR}, 6
v_add_u32 v12, s{T4}, v8
v_lshlrev_b32 v19, 11, v10
v_lshl_add_u32 v19, v12, 2, v19
v_add_u32 v19, {X1P}, v19
v_lshl_add_u32 v12, v12, 10, v10
v_add_u32 v16, {F3}, v15
v_add_u32 v17, {F3B}, v15
v_lshlrev_b32 v13, 4, v2
s_lshl_b32 s{T0}, s{sWAVE}, 11
s_add_u32 s{T0}, s{T0}, {L_RED}
v_add_u32 v14, s{T0}, v13
s_lshl_b32 s{T0}, s{sWAVE}, 13
s_add_u32 s{T0}, s{T0}, {L_RED}
v_add_u32 v13, s{T0}, v13""")
vm.op(f"buffer_load_dword v18, v16, {W4}, 0 offen sc1", "f3a")
w2_issue(99)
vm.wait("st31")
A("s_barrier")
set_flag(0, F3B, fidx, 92, 93)
stamp("flag3")
G2 = 24
for i in range(64): A(f"v_mov_b32 v{G2+i}, 0")
def fcheck(tag, reg, addr, lab):
    vm.wait(tag)
    A(f"""v_cmp_ne_u32 vcc, s{sEP}, v{reg}
    s_nop 1
    s_cbranch_vccz {lab}_done""")
    poll(addr, 1, 0, reg, lab, only_wave0=False)
fcheck("f3a", 18, 16, "p3a")
stamp("poll3 done")
HD = P("HD", 6)
hq = [(sb, i) for sb in range(2) for i in range(22)]
def h_issue():
    sb, i = hq.pop(0)
    vm.op(f"buffer_load_dwordx4 a[{(22*sb+i)*4}:{(22*sb+i)*4+3}], v{22+sb}, {W4}, s{ROT2[i]} offen sc1", f"h{sb}_{i}")
for _ in range(HD): h_issue()
for k in range(2):
    A(f"ds_read_b128 v[{GR+4*k}:{GR+4*k+3}], v11 offset:{32*k}")
F3B_I = P("F3B_I", 12)
def red_w(sb):
    return [f"ds_write_b128 v14, v[{G2+16*(2*sb+cb)+4*q}:{G2+16*(2*sb+cb)+4*q+3}] offset:{sb*32768 + (2*cb+(q>>1))*8192 + (q&1)*1024}" for cb in range(2) for q in range(4)]
def red_r(sb, dst):
    return [f"ds_read_b128 v[{dst+16*k+4*sr}:{dst+16*k+4*sr+3}], v13 offset:{sb*32768 + sr*2048 + k*1024}" for k in range(2) for sr in range(4)]
def fin(sb, dst, U):
    out = []
    for k in range(2):
        c = dst + 16 * k
        out += [f"v_lshlrev_b32 v{U}, 16, v{BR+2*k}", f"v_and_b32 v{U+1}, 0xffff0000, v{BR+2*k}",
                f"v_lshlrev_b32 v{U+2}, 16, v{BR+2*k+1}", f"v_and_b32 v{U+3}, 0xffff0000, v{BR+2*k+1}"]
        for hh in range(2):
            out += [f"v_pk_add_f32 v[{c+2*hh}:{c+2*hh+1}], v[{c+2*hh}:{c+2*hh+1}], v[{c+4+2*hh}:{c+5+2*hh}]",
                    f"v_pk_add_f32 v[{c+8+2*hh}:{c+9+2*hh}], v[{c+8+2*hh}:{c+9+2*hh}], v[{c+12+2*hh}:{c+13+2*hh}]"]
        for hh in range(2):
            out += [f"v_pk_add_f32 v[{c+2*hh}:{c+2*hh+1}], v[{c+2*hh}:{c+2*hh+1}], v[{U+2*hh}:{U+2*hh+1}]"]
        x = XR + 4 * sb + 2 * k
        out += [f"v_lshlrev_b32 v{U}, 16, v{x}", f"v_and_b32 v{U+1}, 0xffff0000, v{x}",
                f"v_lshlrev_b32 v{U+2}, 16, v{x+1}", f"v_and_b32 v{U+3}, 0xffff0000, v{x+1}"]
        for hh in range(2):
            out += [f"v_pk_add_f32 v[{c+2*hh}:{c+2*hh+1}], v[{c+2*hh}:{c+2*hh+1}], v[{c+8+2*hh}:{c+9+2*hh}]"]
        for hh in range(2):
            out += [f"v_pk_fma_f32 v[{c+2*hh}:{c+2*hh+1}], v[{c+2*hh}:{c+2*hh+1}], v[{GR+4*k+2*hh}:{GR+4*k+2*hh+1}], v[{U+2*hh}:{U+2*hh+1}]"]
        out += [f"v_cvt_pk_bf16_f32 v{c}, v{c}, v{c+1}", f"v_cvt_pk_bf16_f32 v{c+1}, v{c+2}, v{c+3}",
                ("st", f"buffer_store_dwordx2 v[{c}:{c+1}], v12, s[{SOUT}:{SOUT+3}], {'s%d'%T5 if sb else '0'} offen offset:{16*k}")]
    return out
A(f"s_mov_b32 s{T5}, 32768")
side = []
for sb in range(2):
    for i in range(22):
        vm.wait(f"h{sb}_{i}")
        if sb == 1 and i == 1: side = red_w(0)
        if sb == 1 and i == 6:
            A("s_waitcnt lgkmcnt(0)\ns_barrier"); side = red_r(0, G2)
        if sb == 1 and i == 10:
            vm.wait("xr", extra="lgkmcnt(0)"); side = fin(0, G2, 120)
        for cb in range(2):
            c = G2 + 16 * (2 * sb + cb)
            A(f"v_mfma_f32_32x32x16_bf16 v[{c}:{c+15}], {w2reg(i,cb)}, a[{(22*sb+i)*4}:{(22*sb+i)*4+3}], v[{c}:{c+15}]")
            for _ in range(3):
                if side:
                    x = side.pop(0)
                    if isinstance(x, tuple): vm.op(x[1], "out")
                    else: A(x)
        if sb == 0 and i == F3B_I: vm.op(f"buffer_load_dword v18, v17, {W4}, 0 offen sc1", "f3b")
        if hq and hq[0] == (1, 0): fcheck("f3b", 18, 17, "p3b")
        if hq: h_issue()
        if sb == 1 and i == 0:
            for sb2 in range(2):
                for k in range(2):
                    for pp in range(2):
                        A(f"s_mov_b32 s{T1}, {8192*(4*k+pp)}")
                        vm.op(f"buffer_load_dword v{XR+4*sb2+2*k+pp}, v19, {W4}, s{T1} offen offset:{128*sb2} sc1", "xr")
            for k in range(2):
                vm.op(f"buffer_load_dwordx2 v[{BR+2*k}:{BR+2*k+1}], v10, s[{SM2}:{SM2+3}], 0 offen offset:{16*k}", "xr")
assert not side
stamp("gemm2 mfma done")
A("s_nop 7\ns_nop 3")
for x in red_w(1): A(x)
A("s_waitcnt lgkmcnt(0)\ns_barrier")
for x in red_r(1, 144): A(x)
f1 = fin(1, 144, 120)
A("s_waitcnt lgkmcnt(4)")
half = len(f1) // 2
for n_, x in enumerate(f1):
    if n_ == half: A("s_waitcnt lgkmcnt(0)")
    A(x[1] if isinstance(x, tuple) else x)
if STAMP:
    stamp("out issued")
    A("s_waitcnt vmcnt(0)")
    stamp("end")
    A("s_memtime s[100:101]\ns_waitcnt lgkmcnt(0)\nv_writelane_b32 v143, s100, 63")
    A(f"""v_lshlrev_b32 v1, 2, v2
    s_lshl_b32 s{T0}, s2, 10
    s_lshl_b32 s{T1}, s{sWAVE}, 8
    s_add_u32 s{T0}, s{T0}, s{T1}
    s_add_u32 s{T0}, s{T0}, {TS}
    v_add_u32 v1, s{T0}, v1
    buffer_store_dword v143, v1, {W4}, 0 offen""")
    if os.environ.get("DBGOUT"):
        sel = [1, 2, 4, 6, 7, 8, 9, 10, 12, 13, 15, 16, 17, 20, 22, 24]
        A(f"""s_cmp_lg_u32 s2, {os.environ['DBGOUT']}
        s_cbranch_scc1 k_done
        s_cmp_lg_u32 s{sWAVE}, 0
        s_cbranch_scc1 k_done
        s_load_dwordx2 s[8:9], s[0:1], 112
        v_readlane_b32 s{T1}, v143, 0
        s_waitcnt lgkmcnt(0)
        s_mov_b32 s10, 256
        s_mov_b32 s11, 0x00020000
        v_mov_b32 v5, 0""")
        for i, k in enumerate(sel):
            A(f"v_readlane_b32 s{T0}, v143, {k}\ns_sub_u32 s{T0}, s{T0}, s{T1}\nv_writelane_b32 v5, s{T0}, {i}")
        A(f"""v_lshlrev_b32 v6, 2, v2
        s_mov_b64 exec, 0xffff
        buffer_store_dword v5, v6, s[8:11], 0 offen""")
A("k_done:\ns_endpgm\nk_end:")

hdr = f"; @launch grid=(256,1,1) block=(256,1,1) lds={LDS_SZ}\n.amdgcn_target \"amdgcn-amd-amdhsa--gfx950\"\n.text\n"
out = hdr + A.text() + '.section .rodata,"a"\n' + A.kd(name, 256, 102, accum=256, agpr=256)
open(sys.argv[1], "w").write(out)
print("stamps", nst[0], "lds", LDS_SZ, file=sys.stderr)
```
